```python
import torch

def _softmax(x, axis=-1):
    return torch.softmax(x, dim=axis)

def _gelu(x):
    return torch.nn.functional.gelu(x, approximate='tanh')

def _silu(x):
    return torch.nn.functional.silu(x)

def _sigmoid(x):
    return torch.sigmoid(x)

def _layernorm(x, axis=-1, eps=1e-05):
    m = x.mean(dim=axis, keepdim=True)
    v = x.var(dim=axis, keepdim=True, unbiased=False)
    return (x - m) / torch.sqrt(v + eps)

def _scatter_add(tgt, idx, src, axis=0):
    return tgt.clone().index_add_(axis, idx, src)

def _segment_sum(src, seg, n):
    out = torch.zeros((n,) + src.shape[1:], dtype=src.dtype)
    return out.index_add_(0, seg, src)

def _pad(x, pw):
    flat = tuple((v for pair in reversed(pw) for v in pair))
    return torch.nn.functional.pad(x, flat)
kernel_name = 'concat_heads__linear_kernel_hedgehog__memory_aug_recurrent_mem_tr__prompt'

def setup_inputs():

    _w = lambda a: (lambda t: t.to(torch.bfloat16) if t.is_floating_point() else t)(torch.as_tensor(a))

    def _A_setup():
        B, S, D, H = (1, 2048, 640, 32)
        Dh = D // H
        return {'x': _w((lambda *s: torch.randn(*s, dtype=torch.bfloat16) * 0.8)(B, S, D)), 'wqkv': _w((lambda *s: torch.randn(*s, dtype=torch.bfloat16) * 0.8)(D, 3 * D)), 'w_phi': _w((lambda *s: torch.randn(*s, dtype=torch.bfloat16) * 0.8)(H, Dh, Dh) * Dh ** (-0.5)), 'wo': _w((lambda *s: torch.randn(*s, dtype=torch.bfloat16) * 0.05)(D, D))}
    _A_in = _A_setup()

    def _B_setup():
        B, S, Dm = (1, 2048, 640)
        H, Dh = (32, 192)
        M, seg = (8, 32)
        seg = min(seg, S)
        S = S // seg * seg
        return {'x': _w((lambda *s: torch.randn(*s, dtype=torch.bfloat16) * 0.05)(B, S, Dm)), 'mem0': _w((lambda *s: torch.randn(*s, dtype=torch.bfloat16) * 1.6)(B, M, Dm)), 'Wq': _w((lambda *s: torch.randn(*s, dtype=torch.bfloat16) * 0.8)(Dm, H, Dh) * Dm ** (-0.5)), 'Wk': _w((lambda *s: torch.randn(*s, dtype=torch.bfloat16) * 0.8)(Dm, H, Dh) * Dm ** (-0.5)), 'Wv': _w((lambda *s: torch.randn(*s, dtype=torch.bfloat16) * 1.6)(Dm, H, Dh) * Dm ** (-0.5)), 'Wo': _w((lambda *s: torch.randn(*s, dtype=torch.bfloat16) * 1.6)(H, Dh, Dm) * (H * Dh) ** (-0.5)), 'seg_len': seg}
    _B_in = _B_setup()
    return {'A_x': _A_in['x'], 'A_wqkv': _A_in['wqkv'], 'A_w_phi': _A_in['w_phi'], 'A_wo': _A_in['wo'], 'B_x': _B_in['x'], 'B_mem0': _B_in['mem0'], 'B_Wq': _B_in['Wq'], 'B_Wk': _B_in['Wk'], 'B_Wv': _B_in['Wv'], 'B_Wo': _B_in['Wo'], 'B_seg_len': _B_in['seg_len']}

def reference(A_x, A_wqkv, A_w_phi, A_wo, B_x, B_mem0, B_Wq, B_Wk, B_Wv, B_Wo, B_seg_len):

    def _A_ref(x, wqkv, w_phi, wo):
        B, S, D = x.shape
        H = 32
        Dh = D // H
        qkv = (lambda x, *d: x.permute(*d))((x @ wqkv).reshape(B, S, 3, H, Dh), 2, 0, 3, 1, 4)
        q, k, v = (qkv[0], qkv[1], qkv[2])
        pq = torch.einsum('bhsd,hdf->bhsf', q, w_phi)
        pk = torch.einsum('bhsd,hdf->bhsf', k, w_phi)
        phi_q = torch.concatenate([_softmax(pq, axis=-1), _softmax(-pq, axis=-1)], axis=-1)
        phi_k = torch.concatenate([_softmax(pk, axis=-1), _softmax(-pk, axis=-1)], axis=-1)
        kv = torch.einsum('bhsf,bhsd->bhfd', phi_k, v)
        z = torch.einsum('bhsf->bhf', phi_k)
        num = torch.einsum('bhqf,bhfd->bhqd', phi_q, kv)
        den = torch.einsum('bhqf,bhf->bhq', phi_q, z)[..., None] + 1e-06
        o = num / den
        return (lambda x, *d: x.permute(*d))(o, 0, 2, 1, 3).reshape(B, S, D) @ wo

    def _B_ref(x, mem0, Wq, Wk, Wv, Wo, seg_len):
        B, S, Dm = x.shape
        H, Dh = (Wq.shape[1], Wq.shape[2])
        M = mem0.shape[1]
        scale = Dh ** (-0.5)
        n_seg = S // seg_len
        L = M + seg_len
        idx = torch.arange(L)
        mask = (idx[:, None] < M) | (idx[:, None] >= idx[None, :])
        mem = mem0
        outs = []
        for s in range(n_seg):
            xs = x[:, s * seg_len:(s + 1) * seg_len, :].clone()
            h = torch.concatenate([mem, xs], axis=1)
            q = torch.einsum('btd,dhe->bhte', h, Wq)
            k = torch.einsum('btd,dhe->bhte', h, Wk)
            v = torch.einsum('btd,dhe->bhte', h, Wv)
            scores = torch.einsum('bhqe,bhke->bhqk', q, k) * scale
            scores = torch.where(mask[None, None], scores, -1000000000.0)
            p = _softmax(scores, axis=-1)
            o = torch.einsum('bhqk,bhke->bhqe', p, v)
            o = torch.einsum('bhte,hed->btd', o, Wo)
            mem = o[:, :M, :].clone()
            outs.append(o[:, M:, :])
        return torch.concatenate(outs, axis=1)
    a = _A_ref(A_x, A_wqkv, A_w_phi, A_wo)
    b = _B_ref(B_x, B_mem0, B_Wq, B_Wk, B_Wv, B_Wo, B_seg_len)
    return torch.concatenate([a, b], axis=-1)
```

```python
import re


def v(n, cnt=1):
    return f"v{n}" if cnt == 1 else f"v[{n}:{n + cnt - 1}]"


def s(n, cnt=1):
    return f"s{n}" if cnt == 1 else f"s[{n}:{n + cnt - 1}]"


class Asm:
    def __init__(self):
        self.lines = []
        self.uid = 0

    def __call__(self, text):
        for ln in text.split("\n"):
            ln = ln.strip()
            if ln:
                self.lines.append(ln)

    def label(self, name):
        self.lines.append(name + ":")

    def newlabel(self, base):
        self.uid += 1
        return f"L_{base}_{self.uid}"

    def nop(self, n):
        while n > 0:
            k = min(n, 16)
            self.lines.append(f"s_nop {k - 1}")
            n -= k

    def text(self):
        out = []
        for ln in self.lines:
            if ln.endswith(":") or ln.startswith(".") or ln.startswith(";"):
                out.append(ln)
            else:
                out.append("    " + ln)
        return "\n".join(out) + "\n"


_REG = re.compile(r"^-?(?:abs\()?\|?([vsa])(?:(\d+)|\[(\d+):(\d+)\])\|?\)?$")
TRANS = ("v_exp_f32", "v_log_f32", "v_rcp_f32", "v_rsq_f32", "v_sqrt_f32", "v_sin_f32", "v_cos_f32", "v_rcp_iflag_f32")


def _regs(tok):
    tok = tok.strip()
    if tok in ("vcc", "vcc_lo", "vcc_hi"):
        return {("s", "vcc")}
    if tok in ("exec", "exec_lo", "exec_hi"):
        return {("s", "exec")}
    if tok == "m0":
        return {("s", "m0")}
    m = _REG.match(tok)
    if not m:
        return set()
    k = m.group(1)
    if m.group(2) is not None:
        return {(k, int(m.group(2)))}
    return {(k, i) for i in range(int(m.group(3)), int(m.group(4)) + 1)}


class Ins:
    def __init__(self, text):
        self.text = text
        body = text.split(";")[0].strip()
        parts = body.split(None, 1)
        self.op = parts[0]
        rest = parts[1] if len(parts) > 1 else ""
        ops, cur, depth = [], "", 0
        for ch in rest:
            if ch in "[(":
                depth += 1
            if ch in "])":
                depth -= 1
            if ch == "," and depth == 0:
                ops.append(cur.strip())
                cur = ""
            else:
                cur += ch
        if cur.strip():
            ops.append(cur.strip())
        self.mods = ""
        if ops:
            last = ops[-1].split(None, 1)
            ops[-1] = last[0]
            self.mods = last[1] if len(last) > 1 else ""
        self.ops = ops
        op = self.op
        R = [_regs(o) for o in ops]
        self.w, self.r = set(), set()
        self.is_mfma = op.startswith("v_mfma") or op.startswith("v_smfmac")
        self.is_valu = op.startswith("v_") and not self.is_mfma
        self.is_vmem = op.startswith("buffer_") or op.startswith("global_")
        self.is_ds = op.startswith("ds_")
        self.is_salu = op.startswith("s_")
        self.is_dpp = "_dpp" in op
        self.is_perm = op.startswith("v_permlane")
        self.is_dot = op.startswith("v_dot")
        self.is_trans = any(op.startswith(t) for t in TRANS)
        self.lds_dma = self.is_vmem and re.search(r"\blds\b", self.mods) is not None
        self.states = 1
        self.ab, self.c = set(), set()
        self.passes = 0
        self.wide_store = set()
        if op == "s_nop":
            self.states = int(ops[0], 0) + 1
        elif self.is_mfma:
            self.passes = 8 if "32x32" in op else 4
            self.w = R[0]
            if op.startswith("v_smfmac"):
                self.ab = R[1] | R[2] | R[3]
                self.c = R[0]
            else:
                self.ab = R[1] | R[2]
                self.c = R[3]
            self.r = self.ab | self.c
        elif self.is_valu:
            if self.is_perm and "swap" in op:
                self.w = R[0] | R[1]
                self.r = R[0] | R[1]
            else:
                nd = 1
                if re.match(r"v_(add|sub|subrev|addc|subb)_co_", op) or op.startswith("v_div_scale") or op.startswith("v_mad_u64"):
                    nd = 2
                for x in R[:nd]:
                    self.w |= x
                for x in R[nd:]:
                    self.r |= x
                if op.startswith("v_fmac") or op.startswith("v_dot2c") or self.is_dpp or op.startswith("v_writelane"):
                    self.r |= R[0]
                if op.startswith("v_cmpx"):
                    self.w |= {("s", "exec")}
                if self.is_dot and len(R) == 4:
                    self.c = R[3]
                    self.ab = R[1] | R[2]
                elif self.is_dot:
                    self.c = R[0]
                    self.ab = R[1] | R[2]
        elif self.is_ds:
            if op.startswith("ds_read") or op.startswith("ds_bpermute") or op.startswith("ds_swizzle") or "_rtn" in op:
                self.w = R[0]
                for x in R[1:]:
                    self.r |= x
            else:
                for x in R:
                    self.r |= x
        elif self.is_vmem:
            if ("_load" in op and not self.lds_dma):
                self.w = R[0]
                for x in R[1:]:
                    self.r |= x
                if "d16" in op:
                    self.r |= R[0]
            elif "atomic" in op:
                for x in R:
                    self.r |= x
                if re.search(r"\bsc0\b", self.mods):
                    self.w = R[0]
            else:
                for x in R:
                    self.r |= x
                if op.endswith("x3") or op.endswith("x4"):
                    if op.startswith("buffer_store"):
                        self.wide_store = R[0]
                    elif op.startswith("global_store"):
                        self.wide_store = R[1]
            if self.lds_dma:
                self.r |= {("s", "m0")}
        elif self.is_salu:
            if op.startswith("s_cmp") or op.startswith("s_cbranch") or op in ("s_branch", "s_waitcnt", "s_barrier", "s_setprio", "s_sleep", "s_endpgm") or op.startswith("s_bitcmp"):
                for x in R:
                    self.r |= x
            else:
                if R:
                    self.w = R[0]
                for x in R[1:]:
                    self.r |= x
                if "saveexec" in op:
                    self.w |= {("s", "exec")}


def _vg(x):
    return {r for r in x if r[0] in "va"}


def _sg(x):
    return {r for r in x if r[0] == "s"}


def need(p, c):
    n = 0
    if p.is_valu:
        wv, ws = _vg(p.w), _sg(p.w)
        if c.is_mfma and wv & c.r:
            n = max(n, 3 if p.is_dot else 2)
        if c.is_valu:
            if (c.is_dpp or c.is_perm) and wv & c.r:
                n = max(n, 2)
            if c.op.startswith(("v_readlane", "v_readfirstlane")) and wv & c.r:
                n = max(n, 1)
            if p.is_trans and not c.is_trans and wv & c.r:
                n = max(n, 1)
            if ws & c.r:
                n = max(n, 4 if c.op.startswith(("v_readlane", "v_writelane", "v_div_fmas")) else 2)
            if c.op.startswith("v_div_fmas") and ("s", "vcc") in ws:
                n = max(n, 4)
            if ("s", "exec") in ws and (c.is_dpp or c.is_perm or c.op.startswith(("v_readlane", "v_readfirstlane", "v_writelane"))):
                n = max(n, 5)
            if p.is_dot:
                if c.op == p.op:
                    if wv & c.ab:
                        n = max(n, 3)
                elif wv & (c.r | c.w):
                    n = max(n, 3)
        if p.is_dot and (c.is_vmem or c.is_ds) and wv & (c.r | c.w):
            n = max(n, 3)
        if p.is_trans and (c.is_vmem or c.is_ds) and wv & c.r:
            n = max(n, 1)
        if c.is_vmem and ws & c.r:
            n = max(n, 5)
        if c.is_mfma and ("s", "exec") in ws:
            n = max(n, 4)
    if p.is_mfma:
        big = {4: 8, 8: 12}[p.passes]
        if c.is_mfma:
            if p.w & c.ab:
                n = max(n, big)
            if p.w & c.c:
                if not (p.w == c.c and p.op == c.op):
                    n = max(n, {4: 6, 8: 10}[p.passes])
            elif p.w & c.w:
                if p.passes != c.passes:
                    n = max(n, big)
        elif (c.is_valu or c.is_vmem or c.is_ds) and p.w & (c.r | c.w):
            n = max(n, big)
        if c.is_valu and _vg(p.c) & c.w:
            n = max(n, {4: 3, 8: 7}[p.passes])
    if p.wide_store and p.wide_store & c.w:
        n = max(n, 2)
    if p.is_salu and ("s", "m0") in p.w and (c.lds_dma or "addtid" in c.op):
        n = max(n, 1)
    return n


def check_hazards(lines):
    ins, labels = [], {}
    for ln in lines:
        t = ln.split(";")[0].strip()
        if not t or t.startswith("."):
            continue
        if t.endswith(":"):
            labels[t[:-1]] = len(ins)
            continue
        ins.append(Ins(t))
    problems = []

    def succ(i):
        x = ins[i]
        if x.op == "s_endpgm":
            return []
        if x.op == "s_branch":
            return [labels[x.ops[0]]]
        out = [i + 1] if i + 1 < len(ins) else []
        if x.op.startswith("s_cbranch"):
            out.append(labels[x.ops[0]])
        return out

    for i, p in enumerate(ins):
        if not (p.is_valu or p.is_mfma or p.wide_store or (p.is_salu and ("s", "m0") in p.w)):
            continue
        horizon = 12 if p.is_mfma else 5
        stack = [(j, 0) for j in succ(i)]
        seen = {}
        while stack:
            j, d = stack.pop()
            if d >= horizon or seen.get(j, 99) <= d:
                continue
            seen[j] = d
            c = ins[j]
            n = need(p, c)
            if n > d:
                problems.append(f"need {n} have {d}: [{i}] {p.text}  ->  [{j}] {c.text}")
            for k in succ(j):
                stack.append((k, d + c.states))
    return problems
```

```python
from asmlib import Asm, v, s

NAME = "concat_heads__linear_kernel_hedgehog__memory_aug_recurrent_mem_tr__prompt"

MB = 1 << 20
BLK = 12288
SEGSTR = 32 * BLK
WS_Q = 0
WS_K = 24 * MB
WS_V = 48 * MB
WS_O = 72 * MB
WS_KM = 96 * MB
WS_VM = 102 * MB
MSEG = 32 * 3072
WS_PART = 108 * MB
WS_RING = 160 * MB
RING_SH = 17
SLOT = 32768
RING_D = 0
RING_SC = 10240
RING_VM = 19456
RING_FV = 65536
RING_FP = 65792
RING_HD = 66048
RING_FA = 66304
RING_FB = 66560
RING_FO = 66816
WS_C = 162 * MB
C_SLOT = 262144
WS_FC = 163 * MB
WS_DIAG = 200 * MB
WS_MEMDBG = 204 * MB
WS_SIZE = 268435456
OOB = 0x40000000

P_AX, P_AWQKV, P_AWPHI, P_AWO, P_BX, P_MEM0, P_WQ, P_WK, P_WV, P_WO, P_SEG, P_OUT, P_DBG, P_WS = range(4, 32, 2)
R_WS, R_DBG, R_0, R_1, R_2, R_3 = 32, 36, 40, 44, 48, 52
sX, sW, sT, sS, sB = 56, 57, 58, 59, 60
sT0 = 61
STAMP0 = 72

RQ = 4
N_AX, N_OX, N_A = 2, 4, 4
N_P, N_O = 12, 10
SPIN = 20000


def srd(a, r, ptr, nbytes):
    a(f"s_mov_b32 {s(r)}, {s(ptr)}")
    a(f"s_and_b32 {s(r + 1)}, {s(ptr + 1)}, 0xffff")
    a(f"s_mov_b32 {s(r + 2)}, {hex(nbytes)}")
    a(f"s_mov_b32 {s(r + 3)}, 0x20000")


class Ctx:
    def __init__(self, diag=False, memdbg=False):
        self.a = Asm()
        self.tail = Asm()
        self.diag = diag
        self.memdbg = memdbg
        self.keep = 40
        self.group = 0

    def stamp(self, k, group=0):
        if self.diag and group == self.group:
            self.a(f"s_memtime {s(STAMP0 + 2 * k, 2)}")

    def save_stamps(self, add=0):
        if not self.diag:
            return
        a = self.a
        l = a.newlabel("keep")
        a(f"s_cmp_lg_u32 {s(sS)}, {self.keep + 1 + add}")
        a(f"s_cbranch_scc1 {l}")
        a(f"s_memtime {s(STAMP0 + 12, 2)}")
        a(f"s_memrealtime {s(STAMP0 + 14, 2)}")
        a("s_waitcnt lgkmcnt(0)")
        for k in range(8):
            a(f"s_mov_b32 {s(88 + k)}, {s(STAMP0 + 2 * k)}")
        a.label(l)

    def retry(self, poll_label, site=None):
        a, t = self.a, self.tail
        lr, lo = a.newlabel("retry"), a.newlabel("ok")
        a(f"s_cbranch_vccnz {lr}")
        a.label(lo)
        t.label(lr)
        if self.diag and site is not None:
            t(f"s_add_u32 {s(96 + site)}, {s(96 + site)}, 1")
        t(f"s_sub_u32 {s(sB)}, {s(sB)}, 1")
        t(f"s_cbranch_scc0 {poll_label}")
        t(f"s_mov_b32 {s(sB)}, 0")
        t(f"s_branch {lo}")

    def dump_stamps(self, n, vt=1):
        if not self.diag:
            return
        a = self.a
        a("s_waitcnt vmcnt(0) lgkmcnt(0)")
        a(f"v_mov_b32 {v(vt)}, 0")
        for k in range(n):
            a(f"v_writelane_b32 {v(vt)}, {s(88 + k)}, {k}")
        a(f"v_writelane_b32 {v(vt)}, {s(sB)}, 15")
        for k in range(3):
            a(f"v_writelane_b32 {v(vt)}, {s(96 + k)}, {8 + k}")
        a(f"s_memtime {s(STAMP0, 2)}")
        a(f"s_memrealtime {s(STAMP0 + 2, 2)}")
        a("s_waitcnt lgkmcnt(0)")
        a(f"v_writelane_b32 {v(vt)}, {s(STAMP0)}, 11")
        a(f"v_writelane_b32 {v(vt)}, {s(STAMP0 + 2)}, 12")
        a(f"v_writelane_b32 {v(vt)}, s100, 13")
        a(f"v_writelane_b32 {v(vt)}, s99, 14")
        a(f"s_lshl_b32 {s(sT0)}, {s(sX)}, 5")
        a(f"s_add_u32 {s(sT0)}, {s(sT0)}, {s(sT)}")
        a(f"s_lshl_b32 {s(sT0)}, {s(sT0)}, 3")
        a(f"s_add_u32 {s(sT0)}, {s(sT0)}, {s(sW)}")
        a(f"s_lshl_b32 {s(sT0)}, {s(sT0)}, 8")
        a(f"s_add_u32 {s(sT0)}, {s(sT0)}, {hex(WS_DIAG)}")
        a(f"v_mbcnt_lo_u32_b32 {v(vt + 1)}, -1, 0")
        a(f"v_mbcnt_hi_u32_b32 {v(vt + 1)}, -1, {v(vt + 1)}")
        a(f"v_lshlrev_b32 {v(vt + 1)}, 2, {v(vt + 1)}")
        a(f"buffer_store_dword {v(vt)}, {v(vt + 1)}, {s(R_WS, 4)}, {s(sT0)} offen")
        a("s_waitcnt vmcnt(0)")


def signal_ready(cx, vt):
    a = cx.a
    l = a.newlabel("rdy")
    a("s_barrier")
    a(f"s_cmp_lg_u32 {s(sW)}, 0")
    a(f"s_cbranch_scc1 {l}")
    a(f"s_lshl_b32 {s(sT0)}, {s(sX)}, 5")
    a(f"v_mov_b32 {v(vt)}, 1")
    a(f"v_mov_b32 {v(vt + 1)}, 4")
    a("s_mov_b64 exec, 1")
    a(f"buffer_atomic_add {v(vt)}, {v(vt + 1)}, {s(R_DBG, 4)}, {s(sT0)} offen")
    a("s_mov_b64 exec, -1")
    a.label(l)


def wait_ready(cx, vt, n_init):
    a = cx.a
    a(f"v_and_b32 {v(vt)}, 7, v0")
    a(f"v_lshlrev_b32 {v(vt)}, 5, {v(vt)}")
    lp = a.newlabel("wrdy")
    a.label(lp)
    a(f"buffer_load_dword {v(vt + 1)}, {v(vt)}, {s(R_DBG, 4)}, 0 offen offset:4 sc1")
    a("s_waitcnt vmcnt(0)")
    a(f"v_cmp_gt_u32 vcc, {n_init}, {v(vt + 1)}")
    cx.retry(lp)


def ring_next(a, reg, base, stride, depth):
    a(f"s_add_u32 {s(reg)}, {s(reg)}, {stride}")
    a(f"s_cmp_ge_u32 {s(reg)}, {hex(base + depth * stride)}")
    a(f"s_cselect_b32 vcc_lo, {depth * stride}, 0")
    a(f"s_sub_u32 {s(reg)}, {s(reg)}, vcc_lo")


def sub_srd(a, r, nbytes):
    a(f"s_mov_b32 {s(r + 2)}, {hex(nbytes)}")
    a(f"s_mov_b32 {s(r + 3)}, 0x20000")


def set_base(a, r, off):
    a(f"s_add_u32 {s(r)}, {s(R_WS)}, {s(off)}")
    a(f"s_addc_u32 {s(r + 1)}, {s(R_WS + 1)}, 0")


def slots_init(a, cur, oth, reg, ring):
    sub_srd(a, cur, SLOT)
    sub_srd(a, oth, SLOT)
    a(f"s_xor_b32 {s(reg)}, {s(ring)}, {SLOT}")
    slots_flip(a, cur, oth, reg)


def slots_flip(a, cur, oth, reg):
    set_base(a, oth, reg)
    a(f"s_xor_b32 {s(reg)}, {s(reg)}, {SLOT}")
    set_base(a, cur, reg)


def permute_columns(a, first, n, vaddr, vt):
    a(f"v_bfe_u32 {v(vt)}, v0, 1, 2")
    a(f"v_and_b32 {v(vaddr)}, 49, v0")
    a(f"v_lshl_add_u32 {v(vaddr)}, {v(vt)}, 2, {v(vaddr)}")
    a(f"v_bfe_u32 {v(vt)}, v0, 3, 1")
    a(f"v_lshl_add_u32 {v(vaddr)}, {v(vt)}, 1, {v(vaddr)}")
    a(f"v_lshlrev_b32 {v(vaddr)}, 2, {v(vaddr)}")
    for i in range(n):
        a(f"ds_bpermute_b32 {v(first + i)}, {v(vaddr)}, {v(first + i)}")
        if i % 8 == 7:
            a("s_waitcnt lgkmcnt(6)")
    a("s_waitcnt lgkmcnt(0)")
```

```python
import sys, argparse
from common import *
from asmlib import check_hazards
import role_p, role_o, role_ax, role_ox

HEADER = open("cdna_kernels/" + NAME + ".s.ref").read().split("; Override launch")[0]


DEFAULTS = dict(diag=0, memdbg=0, copysel="auto", crounds=2, group=0, keep=40, keepp=0, rq=RQ, ax=1, touch=1, nobg=0, hu=3, spos=13, vfk=34, hn=3, cspec=3, dgap=1, qdelay=1, nprobe=5, dsets=1,
                sdelay=0, udelay=6, cdelay=5, cgap=2, hd=37)


def build(**kw):
    o = dict(DEFAULTS)
    o.update(kw)
    cx = Ctx(o["diag"], o["memdbg"])
    for k_, v_ in o.items():
        setattr(cx, k_, v_)
    diag = cx.diag
    a = cx.a
    n_init = N_P + N_O + N_AX + N_OX
    a("s_cmp_ge_u32 s2, 256")
    a("s_cbranch_scc1 L_end")
    a("s_load_dwordx16 s[4:19], s[0:1], 0")
    a("s_load_dwordx8 s[20:27], s[0:1], 64")
    a("s_load_dwordx4 s[28:31], s[0:1], 96")
    a(f"s_getreg_b32 {s(sX)}, hwreg(HW_REG_XCC_ID, 0, 3)")
    a("v_lshrrev_b32 v1, 6, v0")
    a("v_and_b32 v0, 63, v0")
    a(f"v_readfirstlane_b32 {s(sW)}, v1")
    a(f"s_mov_b32 {s(sB)}, {SPIN}")
    if diag:
        a("s_memrealtime s[100:101]")
        for k in range(4):
            a(f"s_mov_b32 s{96 + k}, 0")
    a(f"v_mov_b32 v2, {role_p.L_QKX}")
    a("s_waitcnt lgkmcnt(0)")
    srd(a, R_WS, P_WS, WS_SIZE)
    srd(a, R_DBG, P_DBG, 256)
    a(f"s_cmp_lg_u32 {s(sW)}, 0")
    a("s_cbranch_scc1 L_ticket")
    a(f"s_lshl_b32 {s(sT0)}, {s(sX)}, 5")
    a("v_mov_b32 v1, 1")
    a("v_mov_b32 v3, 0")
    a("s_mov_b64 exec, 1")
    a(f"buffer_atomic_add v1, v3, {s(R_DBG, 4)}, {s(sT0)} offen sc0")
    a("s_waitcnt vmcnt(0)")
    a("ds_write_b32 v2, v1")
    a("s_mov_b64 exec, -1")
    a("s_waitcnt lgkmcnt(0)")
    a.label("L_ticket")
    a("s_barrier")
    a("ds_read_b32 v1, v2")
    a("s_waitcnt lgkmcnt(0)")
    a(f"v_readfirstlane_b32 {s(sT)}, v1")
    a("s_nop 1")
    a(f"s_cmp_lt_u32 {s(sT)}, {N_P}")
    a("s_cbranch_scc1 L_role_p")
    a(f"s_cmp_lt_u32 {s(sT)}, {N_P + N_O}")
    a("s_cbranch_scc1 L_role_o")
    a(f"s_cmp_lt_u32 {s(sT)}, {N_P + N_O + N_AX}")
    a("s_cbranch_scc1 L_role_ax")
    a(f"s_cmp_lt_u32 {s(sT)}, {N_P + N_O + N_AX + N_OX}")
    a("s_cbranch_scc1 L_role_ox")
    a.label("L_end")
    a("s_endpgm")
    role_p.role_p(cx, n_init)
    role_o.role_o(cx, n_init)
    role_ax.role_ax(cx, n_init)
    role_ox.role_ox(cx, n_init)
    a.lines += cx.tail.lines
    probs = check_hazards(a.lines)
    for p in probs:
        print("HAZARD", p, file=sys.stderr)
    k = NAME + "_kernel"
    out = HEADER
    out += "; @launch grid=(256,1,1) block=(512,1,1) lds=163840\n"
    if diag:
        out += f"; keep={cx.keep}\n; opts " + " ".join(f"{k_}={v_}" for k_, v_ in kw.items() if k_ not in ("diag", "group", "keep")) + "\n"
    out += f""".amdgcn_target "amdgcn-amd-amdhsa--gfx950"
.text
.globl {k}
.p2align 8
.type {k},@function
{k}:
"""
    out += a.text()
    out += f""".section .rodata,"a"
.p2align 6
.amdhsa_kernel {k}
  .amdhsa_next_free_vgpr 256
  .amdhsa_next_free_sgpr 102
  .amdhsa_accum_offset 256
  .amdhsa_group_segment_fixed_size 0
  .amdhsa_kernarg_size 112
  .amdhsa_user_sgpr_count 2
  .amdhsa_user_sgpr_kernarg_segment_ptr 1
  .amdhsa_system_sgpr_workgroup_id_x 1
  .amdhsa_float_denorm_mode_32 3
.end_amdhsa_kernel
"""
    return out, len(probs)


if __name__ == "__main__":
    out = sys.argv[1]
    kw = {}
    for x in sys.argv[2:]:
        k_, v_ = x.split("=")
        assert k_ in DEFAULTS, k_
        kw[k_] = v_ if isinstance(DEFAULTS[k_], str) else int(v_)
    if out == "final":
        out = "cdna_kernels/" + NAME + ".s"
    text, n = build(**kw)
    open(out, "w").write(text)
    print("wrote", out, len(text), "bytes; hazards:", n)
```

```python
import math
from common import *
from role_o import f32

sA_, sH, sPH, sRING, sTMP, sM, sBL, sMO, sXO, sT2 = 61, 62, 63, 64, 65, 66, 67, 68, 69, 70
LW = 15360


def pair_reduce(a, op, x, y, t):
    a.nop(2)
    a(f"v_permlane32_swap_b32 {v(x)}, {v(y)}")
    a(f"{op} {v(x)}, {v(x)}, {v(y)}")
    a(f"v_mov_b32 {v(y)}, {v(x)}")
    a.nop(2)
    a(f"v_permlane16_swap_b32 {v(x)}, {v(y)}")
    a(f"{op} {v(x)}, {v(x)}, {v(y)}")
    a(f"v_mov_b32 {v(y)}, {v(x)}")
    a.nop(2)
    a(f"v_permlane32_swap_b32 {v(x)}, {v(y)}")


def flag_wait(cx, vaddr, vt, sreg, label, sleep=2):
    a = cx.a
    l2 = label + "_s"
    a.label(label)
    a(f"buffer_load_dword {v(vt)}, {v(vaddr)}, {s(R_WS, 4)}, 0 offen sc1")
    a("s_waitcnt vmcnt(0)")
    a(f"v_cmp_gt_i32 vcc, {s(sreg)}, {v(vt)}")
    cx.retry(l2)
    cx.tail.label(l2)
    cx.tail(f"s_sleep {sleep}")
    cx.tail(f"s_branch {label}")


def lane0_addr(a, dst, sreg, t0, t1):
    a("v_cmp_eq_u32 vcc, 0, v0")
    a(f"v_mov_b32 {v(t0)}, {hex(OOB)}")
    a(f"v_mov_b32 {v(t1)}, {s(sreg)}")
    a(f"v_cndmask_b32 {v(dst)}, {v(t0)}, {v(t1)}, vcc")


def role_ax(cx, n_init):
    a = cx.a
    vL16, vFP, vFO, vFA, vFB, vKM, vVR, vMR, vST, vPF, vPF2, vCNT = range(1, 13)
    T0, T1, T2, T3 = 14, 15, 16, 17
    DG, MM = 20, 24
    SA0, SAM, SB0, SB1, SBM = 28, 32, 36, 40, 44
    PA, PB = 48, 52
    VF = 60
    OA = 76
    CV = 92
    Q, K = 100, 148
    sSC = 44
    a.label("L_role_ax")
    a(f"s_sub_u32 {s(sA_)}, {s(sT)}, {N_P + N_O}")
    a(f"s_and_b32 {s(sH)}, {s(sW)}, 3")
    a(f"s_lshr_b32 {s(sPH)}, {s(sW)}, 2")
    a(f"s_lshl_b32 {s(sTMP)}, {s(sA_)}, 1")
    a(f"s_add_u32 {s(sPH)}, {s(sPH)}, {s(sTMP)}")
    a(f"s_lshl_b32 {s(sRING)}, {s(sX)}, {RING_SH}")
    a(f"s_add_u32 {s(sRING)}, {s(sRING)}, {hex(WS_RING)}")
    srd(a, R_0, P_BX, 2048 * 640 * 2)
    a(f"v_lshlrev_b32 {v(vL16)}, 4, v0")
    a(f"v_lshrrev_b32 {v(T0)}, 4, v0")
    a(f"v_and_b32 {v(T1)}, 15, v0")
    a(f"s_mul_i32 {s(sM)}, {s(sH)}, 12")
    a(f"s_add_u32 {s(sM)}, {s(sM)}, {s(sRING)}")
    a(f"s_add_u32 {s(sM)}, {s(sM)}, {RING_FP}")
    a(f"v_min_u32 {v(T2)}, 2, v0")
    a(f"v_lshl_add_u32 {v(vFP)}, {v(T2)}, 2, {s(sM)}")
    a(f"s_add_u32 {s(sM)}, {s(sRING)}, {RING_FO}")
    a(f"v_and_b32 {v(T2)}, 3, v0")
    a(f"v_lshl_add_u32 {v(vFO)}, {v(T2)}, 2, {s(sM)}")
    a(f"s_lshl_b32 {s(sM)}, {s(sPH)}, 2")
    a(f"s_add_u32 {s(sM)}, {s(sM)}, {s(sH)}")
    a(f"s_lshl_b32 {s(sM)}, {s(sM)}, 2")
    a(f"s_add_u32 {s(sM)}, {s(sM)}, {s(sRING)}")
    a(f"s_add_u32 {s(sM)}, {s(sM)}, {RING_FA}")
    lane0_addr(a, vFA, sM, T2, T3)
    a(f"v_add_u32 {v(vFB)}, {RING_FB - RING_FA}, {v(vFA)}")
    a(f"s_sub_u32 {s(sM)}, {s(sPH)}, 3")
    a(f"v_mov_b32 {v(vCNT)}, {s(sM)}")
    a(f"buffer_store_dword {v(vCNT)}, {v(vFA)}, {s(R_WS, 4)}, 0 offen")
    a(f"buffer_store_dword {v(vCNT)}, {v(vFB)}, {s(R_WS, 4)}, 0 offen")
    a(f"v_and_b32 {v(T2)}, 7, v0")
    a(f"v_lshlrev_b32 {v(T2)}, 4, {v(T2)}")
    a(f"v_lshl_add_u32 {v(vKM)}, {v(T0)}, 7, {v(T2)}")
    a(f"s_mul_i32 {s(sT2)}, {s(sW)}, {LW}")
    a(f"v_bfe_u32 {v(T2)}, v0, 1, 1")
    a(f"v_lshlrev_b32 {v(T2)}, 8, {v(T2)}")
    a(f"v_lshrrev_b32 {v(T3)}, 2, v0")
    a(f"v_lshl_add_u32 {v(T2)}, {v(T3)}, 4, {v(T2)}")
    a(f"v_and_b32 {v(T3)}, 1, v0")
    a(f"v_lshl_add_u32 {v(T2)}, {v(T3)}, 3, {v(T2)}")
    a(f"v_add_u32 {v(vVR)}, {s(sT2)}, {v(T2)}")
    a(f"v_bfe_u32 {v(T2)}, v0, 2, 3")
    a(f"v_mul_u32_u24 {v(T2)}, 384, {v(T2)}")
    a(f"v_and_b32 {v(T3)}, 3, v0")
    a(f"v_lshl_add_u32 {v(T2)}, {v(T3)}, 3, {v(T2)}")
    a(f"v_add_u32 {v(T2)}, 12288, {v(T2)}")
    a(f"v_add_u32 {v(vMR)}, {s(sT2)}, {v(T2)}")
    a(f"v_and_b32 {v(T2)}, 1, {v(T0)}")
    a(f"v_lshlrev_b32 {v(T2)}, 10, {v(T2)}")
    a(f"v_lshrrev_b32 {v(T3)}, 1, {v(T0)}")
    a(f"v_lshl_add_u32 {v(T2)}, {v(T3)}, 8, {v(T2)}")
    a(f"v_lshl_add_u32 {v(vST)}, {v(T1)}, 4, {v(T2)}")
    a(f"s_mul_i32 {s(sM)}, {s(sH)}, 10240")
    a(f"v_lshl_add_u32 {v(vPF)}, v0, 7, {s(sM)}")
    a(f"s_add_u32 {s(sM)}, {s(sM)}, 8192")
    a(f"v_lshl_add_u32 {v(vPF2)}, {v(T1)}, 7, {s(sM)}")
    a(f"v_mov_b32 {v(T3)}, 0xff800000")
    for i in range(4):
        a(f"v_lshl_add_u32 {v(T2)}, {v(T0)}, 2, {i}")
        a(f"v_cmp_gt_u32 vcc, {v(T2)}, {v(T1)}")
        a.nop(2)
        a(f"v_cndmask_b32 {v(DG + i)}, 0, {v(T3)}, vcc")
    a(f"v_cmp_lt_u32 vcc, 1, {v(T0)}")
    a.nop(2)
    for i in range(4):
        a(f"v_cndmask_b32 {v(MM + i)}, 0, {v(T3)}, vcc")
    a(f"s_mov_b32 {s(sSC)}, {f32(192 ** -0.5 * math.log2(math.e))}")
    a(f"s_lshl_b32 {s(sM)}, {s(sX)}, 2")
    a(f"s_add_u32 {s(sM)}, {s(sM)}, {s(sH)}")
    a(f"s_lshl_b32 {s(sTMP)}, {s(sPH)}, 5")
    a(f"s_add_u32 {s(sM)}, {s(sM)}, {s(sTMP)}")
    a(f"s_mul_i32 {s(sBL)}, {s(sM)}, {BLK}")
    a(f"s_mul_i32 {s(sMO)}, {s(sM)}, 3072")
    a(f"s_mul_i32 {s(sXO)}, {s(sPH)}, 40960")
    a(f"s_mov_b32 {s(sS)}, {s(sPH)}")
    a("s_waitcnt vmcnt(0)")
    signal_ready(cx, T2)
    a(f"buffer_load_dword {v(T2)}, {v(vPF)}, {s(R_0, 4)}, {s(sXO)} offen")
    a(f"buffer_load_dword {v(T2)}, {v(vPF2)}, {s(R_0, 4)}, {s(sXO)} offen")
    if cx.touch:
        a(f"v_lshlrev_b32 {v(T3)}, 7, v0")
        a(f"v_and_b32 {v(T1)}, 0xfff, {v(T3)}")
        for base in (WS_V, WS_K, WS_Q, WS_O):
            a(f"s_add_u32 {s(sTMP)}, {s(sBL)}, {hex(base)}")
            a(f"buffer_load_dword {v(T2)}, {v(T3)}, {s(R_WS, 4)}, {s(sTMP)} offen sc1")
            a(f"s_add_u32 {s(sTMP)}, {s(sTMP)}, 8192")
            a(f"buffer_load_dword {v(T2)}, {v(T1)}, {s(R_WS, 4)}, {s(sTMP)} offen sc1")
        a(f"v_min_u32 {v(T1)}, {23 * 128}, {v(T3)}")
        for base in (WS_KM, WS_VM):
            a(f"s_add_u32 {s(sTMP)}, {s(sMO)}, {hex(base)}")
            a(f"buffer_load_dword {v(T2)}, {v(T1)}, {s(R_WS, 4)}, {s(sTMP)} offen sc1")
    wait_ready(cx, 18, n_init)

    def three(base, fn):
        for part in range(3):
            a(f"s_add_u32 {s(sTMP)}, {s(sBL)}, {hex(base + part * 4096)}")
            for o in range(4):
                fn(4 * part + o, o * 1024, part)

    a.label("L_ax_loop")
    a(f"s_add_u32 {s(sM)}, {s(sS)}, 1")
    a(f"s_add_u32 {s(sXO)}, {s(sXO)}, {4 * 40960}")
    a(f"v_mov_b32 {v(vCNT)}, {s(sM)}")
    flag_wait(cx, vFP, T2, sM, "L_ax_w1", 8)
    cx.stamp(0)
    three(WS_Q, lambda k, o, p: a(f"buffer_load_dwordx4 {v(Q + 4 * k, 4)}, {v(vL16)}, {s(R_WS, 4)}, {s(sTMP)} offen offset:{o} sc1"))
    three(WS_K, lambda k, o, p: a(f"buffer_load_dwordx4 {v(K + 4 * k, 4)}, {v(vL16)}, {s(R_WS, 4)}, {s(sTMP)} offen offset:{o} sc1"))

    def vdma(k, o, p):
        if o == 0:
            a(f"s_add_u32 m0, {s(sT2)}, {p * 4096}")
            a("s_nop 0")
        a(f"buffer_load_dwordx4 {v(vL16)}, {s(R_WS, 4)}, {s(sTMP)} offen offset:{o} sc1 lds")
    three(WS_V, vdma)
    a(f"buffer_load_dword {v(T2)}, {v(vPF)}, {s(R_0, 4)}, {s(sXO)} offen")
    a(f"buffer_load_dword {v(T2)}, {v(vPF2)}, {s(R_0, 4)}, {s(sXO)} offen")
    a("s_waitcnt vmcnt(14)")
    cx.stamp(1)
    for t in range(6):
        for acc, kt, qt, c0 in ((SA0, 0, 0, v(DG, 4)), (SB0, 0, 1, "0"), (SB1, 1, 1, v(DG, 4))):
            c = c0 if t == 0 else v(acc, 4)
            a(f"v_mfma_f32_16x16x32_bf16 {v(acc, 4)}, {v(K + 8 * t + 4 * kt, 4)}, {v(Q + 8 * t + 4 * qt, 4)}, {c}")
    a(f"s_add_u32 {s(sM)}, {s(sS)}, 2")
    flag_wait(cx, vFP, T2, sM, "L_ax_w2", 1)
    cx.stamp(2)
    a(f"s_add_u32 {s(sTMP)}, {s(sMO)}, {hex(WS_KM)}")
    for t in range(6):
        a(f"buffer_load_dwordx4 {v(K + 4 * t, 4)}, {v(vKM)}, {s(R_WS, 4)}, {s(sTMP)} offen offset:{t * 512} sc1")
    a(f"s_add_u32 m0, {s(sT2)}, 12288")
    a(f"s_add_u32 {s(sTMP)}, {s(sMO)}, {hex(WS_VM)}")
    for o in range(3):
        a(f"buffer_load_dwordx4 {v(vL16)}, {s(R_WS, 4)}, {s(sTMP)} offen offset:{o * 1024} sc1 lds")
    a(f"buffer_load_dword {v(T3)}, {v(vFO)}, {s(R_WS, 4)}, 0 offen sc1")
    for t in range(6):
        a(f"s_waitcnt vmcnt({9 - t})")
        for acc, qt in ((SAM, 0), (SBM, 1)):
            c = v(MM, 4) if t == 0 else v(acc, 4)
            a(f"v_mfma_f32_16x16x32_bf16 {v(acc, 4)}, {v(K + 4 * t, 4)}, {v(Q + 8 * t + 4 * qt, 4)}, {c}")
    a("s_waitcnt vmcnt(0)")
    a(f"buffer_store_dword {v(vCNT)}, {v(vFA)}, {s(R_WS, 4)}, 0 offen")
    cx.stamp(3)

    def vread(tau):
        b = VF + 6 * (tau & 1)
        a(f"ds_read_b64_tr_b16 {v(b, 2)}, {v(vMR)} offset:{tau * 32}")
        for u in range(2):
            a(f"ds_read_b64_tr_b16 {v(b + 2 + 2 * u, 2)}, {v(vVR)} offset:{(tau >> 1) * 2048 + (tau & 1) * 512 + u * 1024}")
    vread(0)
    A = [SA0 + i for i in range(4)] + [SAM + i for i in range(4)]
    B = [SB0 + i for i in range(8)] + [SBM + i for i in range(4)]
    X, Y = T0, T1

    def tree(op3, op2, dst, regs):
        a(f"{op3} {v(dst)}, {v(regs[0])}, {v(regs[1])}, {v(regs[2])}")
        k = 3
        while k + 1 < len(regs):
            a(f"{op3} {v(dst)}, {v(dst)}, {v(regs[k])}, {v(regs[k + 1])}")
            k += 2
        if k < len(regs):
            a(f"{op2} {v(dst)}, {v(dst)}, {v(regs[k])}")
    tree("v_max3_f32", "v_max_f32", Y, B)
    tree("v_max3_f32", "v_max_f32", X, A)
    pair_reduce(a, "v_max_f32", X, Y, T2)
    a(f"v_mul_f32 {v(X)}, {s(sSC)}, {v(X)}")
    a(f"v_mul_f32 {v(Y)}, {s(sSC)}, {v(Y)}")
    for regs, m in ((A, X), (B, Y)):
        for r in regs:
            a(f"v_fma_f32 {v(r)}, {v(r)}, {s(sSC)}, -{v(m)}")
    for r in A + B:
        a(f"v_exp_f32 {v(r)}, {v(r)}")
    for regs, m in ((A, X), (B, Y)):
        a(f"v_add_f32 {v(m)}, {v(regs[0])}, {v(regs[1])}")
        for r in regs[2:]:
            a(f"v_add_f32 {v(m)}, {v(m)}, {v(r)}")
    pair_reduce(a, "v_add_f32", X, Y, T2)
    a(f"v_rcp_f32 {v(X)}, {v(X)}")
    a(f"v_rcp_f32 {v(Y)}, {v(Y)}")
    for regs, m in ((A, X), (B, Y)):
        for r in regs:
            a(f"v_mul_f32 {v(r)}, {v(r)}, {v(m)}")
    for dst, src in ((PA, SAM), (PA + 2, SA0), (PB, SBM), (PB + 2, SB0), (PB + 4, SB1)):
        for i in range(2):
            a(f"v_cvt_pk_bf16_f32 {v(dst + i)}, {v(src + 2 * i)}, {v(src + 2 * i + 1)}")
    a(f"s_sub_u32 {s(sM)}, {s(sS)}, {cx.rq - 1}")
    a(f"v_cmp_gt_i32 vcc, {s(sM)}, {v(T3)}")
    a("s_cbranch_vccz L_ax_free")
    flag_wait(cx, vFO, T3, sM, "L_ax_w3", 2)
    a.label("L_ax_free")
    cx.stamp(4)

    def out(tau):
        o, c = OA + 8 * (tau & 1), CV + 4 * (tau & 1)
        for i in range(4):
            a(f"v_cvt_pk_bf16_f32 {v(c + i)}, {v(o + 2 * i)}, {v(o + 2 * i + 1)}")
        if tau % 4 == 0:
            a(f"s_add_u32 {s(sTMP)}, {s(sBL)}, {hex(WS_O + (tau >> 2) * 4096)}")
        else:
            a.nop(1)
        a(f"v_permlane16_swap_b32 {v(c)}, {v(c + 2)}")
        a(f"v_permlane16_swap_b32 {v(c + 1)}, {v(c + 3)}")
        a(f"buffer_store_dwordx4 {v(c, 4)}, {v(vST)}, {s(R_WS, 4)}, {s(sTMP)} offen offset:{((tau >> 1) & 1) * 2048 + (tau & 1) * 512}")
    for tau in range(12):
        b, o = VF + 6 * (tau & 1), OA + 8 * (tau & 1)
        if tau < 11:
            vread(tau + 1)
        a(f"s_waitcnt lgkmcnt({3 if tau < 11 else 0})")
        a(f"v_mfma_f32_16x16x32_bf16 {v(o + 4, 4)}, {v(b, 4)}, {v(PB, 4)}, 0")
        a(f"v_mfma_f32_16x16x32_bf16 {v(o, 4)}, {v(b, 4)}, {v(PA, 4)}, 0")
        a(f"v_mfma_f32_16x16x16_bf16 {v(o + 4, 4)}, {v(b + 4, 2)}, {v(PB + 4, 2)}, {v(o + 4, 4)}")
        if tau == 1:
            a.nop(1)
        if tau:
            out(tau - 1)
    out(11)
    a(f"s_add_u32 {s(sS)}, {s(sS)}, 4")
    if cx.rq != 4:
        ring_next(a, sBL, 0, 4 * SEGSTR, cx.rq // 4)
        ring_next(a, sMO, 0, 4 * MSEG, cx.rq // 4)
    a("s_waitcnt vmcnt(0)")
    a(f"buffer_store_dword {v(vCNT)}, {v(vFB)}, {s(R_WS, 4)}, 0 offen")
    cx.stamp(5)
    cx.save_stamps(3)
    a(f"s_cmp_lt_u32 {s(sS)}, 64")
    a("s_cbranch_scc1 L_ax_loop")
    cx.dump_stamps(8, 14)
    a("s_endpgm")
```

```python
import math
import struct
from common import *

L_VX = 0
L_UM = 98304
L_P = 110592
L_OWN = 114688
L_NEAR = 115712

sI, sRING, sTMP, sM = 62, 63, 64, 65
sA, sB2, sC, sD, sE, sF = 66, 67, 68, 69, 70, 71
R_CUR, R_OTH, R_C = R_1, R_2, R_3
T0, T1, T2, T3, T4, T5 = 20, 21, 22, 23, 24, 25


def f32(x):
    return hex(struct.unpack("<I", struct.pack("<f", x))[0])


def role_o(cx, n_init):
    a = cx.a
    a.label("L_role_o")
    cx.stamp(0, 4)
    a(f"s_sub_u32 {s(sI)}, {s(sT)}, {N_P}")
    a(f"s_lshl_b32 {s(sRING)}, {s(sX)}, {RING_SH}")
    a(f"s_add_u32 {s(sRING)}, {s(sRING)}, {hex(WS_RING)}")
    srd(a, R_0, P_WO, 6144 * 640 * 2)
    srd(a, R_1, P_MEM0, 8 * 640 * 2)
    vSTG = 26
    a(f"v_lshrrev_b32 {v(T0)}, 3, v0")
    a(f"v_and_b32 {v(T1)}, 2, {v(T0)}")
    a(f"s_and_b32 {s(sTMP)}, {s(sW)}, 1")
    a(f"s_lshl_b32 {s(sTMP)}, {s(sTMP)}, 2")
    a(f"v_or_b32 {v(T1)}, {s(sTMP)}, {v(T1)}")
    a(f"v_and_b32 {v(T2)}, 7, v0")
    a(f"v_xor_b32 {v(T1)}, {v(T1)}, {v(T2)}")
    a(f"v_lshlrev_b32 {v(T1)}, 4, {v(T1)}")
    a(f"s_mul_i32 {s(sM)}, {s(sX)}, 768")
    a(f"s_lshl_b32 {s(sTMP)}, {s(sW)}, 3")
    a(f"s_add_u32 {s(sTMP)}, {s(sTMP)}, {s(sM)}")
    a(f"v_add_u32 {v(T0)}, {s(sTMP)}, {v(T0)}")
    a(f"v_mul_u32_u24 {v(T0)}, 1280, {v(T0)}")
    a(f"s_lshl_b32 {s(sTMP)}, {s(sI)}, 7")
    a(f"v_add3_u32 {v(vSTG)}, {v(T0)}, {v(T1)}, {s(sTMP)}")
    a(f"s_lshl_b32 {s(sTMP)}, {s(sW)}, 10")
    for z in range(12):
        a(f"s_add_u32 m0, {s(sTMP)}, {z * 8192}")
        a(f"s_mov_b32 {s(sM)}, {z * 64 * 1280}")
        a(f"buffer_load_dwordx4 {v(vSTG)}, {s(R_0, 4)}, {s(sM)} offen lds")
    a(f"v_lshrrev_b32 {v(T0)}, 4, v0")
    a(f"v_and_b32 {v(T1)}, 15, v0")
    a(f"v_lshrrev_b32 {v(T2)}, 2, {v(T1)}")
    a(f"v_and_b32 {v(T3)}, 1, {v(T1)}")
    a(f"v_lshl_add_u32 {v(T4)}, {v(T2)}, 1, {v(T3)}")
    a(f"v_bfe_u32 {v(T5)}, v0, 1, 1")
    a(f"s_mov_b32 {s(sS)}, 0")
    a(f"s_cmp_ge_u32 {s(sW)}, 4")
    a("s_cbranch_scc1 L_o_u")
    s_wave(cx, n_init)
    a.label("L_o_u")
    u_wave(cx, n_init)


def vx_dma(cx, vL16, sLDS, sSRC):
    a = cx.a
    for base, n in ((0, 4), (4096, 4), (8192, 4)):
        a(f"s_add_u32 m0, {s(sLDS)}, {L_VX + base}")
        a(f"s_add_u32 {s(sTMP)}, {s(sSRC)}, {base}")
        for o in range(n):
            a(f"buffer_load_dwordx4 {v(vL16)}, {s(R_WS, 4)}, {s(sTMP)} offen offset:{o * 1024} sc1 lds")
    ring_next(a, sSRC, WS_V, SEGSTR, cx.rq)


def vx_setup(a, sLDS, sSRC):
    a(f"s_mul_i32 {s(sSRC)}, {s(sX)}, {4 * BLK}")
    a(f"s_mul_i32 {s(sLDS)}, {s(sW)}, {BLK}")
    a(f"s_add_u32 {s(sSRC)}, {s(sSRC)}, {s(sLDS)}")
    a(f"s_add_u32 {s(sSRC)}, {s(sSRC)}, {hex(WS_V)}")


def tr_addr(a, dst):
    a(f"v_bfe_u32 v27, v0, 2, 2")
    a(f"v_and_b32 {v(T2)}, 2, v27")
    a(f"v_and_b32 {v(T3)}, 1, {v(T0)}")
    a(f"v_lshl_or_b32 {v(T2)}, {v(T3)}, 2, {v(T2)}")
    a(f"v_or_b32 {v(T2)}, {v(T2)}, {v(T5)}")
    a(f"v_lshlrev_b32 {v(T2)}, 4, {v(T2)}")
    a(f"v_lshl_add_u32 {v(T2)}, {v(T0)}, 10, {v(T2)}")
    a(f"v_lshl_add_u32 {v(T2)}, v27, 7, {v(T2)}")
    a(f"v_and_b32 {v(T3)}, 1, v0")
    a(f"v_lshl_add_u32 {v(dst)}, {v(T3)}, 3, {v(T2)}")


def s_wave(cx, n_init):
    a = cx.a
    vNEG, vL16, vHU, vSX, vMSK, vPW, vPM, vOW, vDW, vDR, vVG, vUW, vIDX, vTR = range(1, 15)
    HT = 16
    VM = 112
    ACC = 124
    UC = 140
    WO = 160
    CA = 32
    E2 = 40
    SC = 44
    E = 54
    PK = 60
    CR = 64
    TT = 28
    sVXO, sPH, sPS, sCS = sA, sB2, sC, sF
    sLO, sHI, sSC = 40, 41, 42
    a(f"v_mov_b32 {v(vNEG)}, -1")
    a(f"v_lshlrev_b32 {v(vL16)}, 4, v0")
    hint_addr(a, vHU)
    a(f"v_and_b32 {v(T2)}, 60, v0")
    a(f"v_and_b32 {v(T3)}, 1, v0")
    a(f"v_lshl_or_b32 {v(T2)}, {v(T3)}, 1, {v(T2)}")
    a(f"v_or_b32 {v(T2)}, {v(T2)}, {v(T5)}")
    a(f"s_mul_i32 {s(sM)}, {s(sW)}, 3072")
    a(f"s_add_u32 {s(sM)}, {s(sM)}, {RING_VM}")
    a(f"v_lshl_add_u32 {v(vVG)}, {v(T2)}, 4, {s(sM)}")
    a(f"s_lshl_b32 {s(sM)}, {s(sW)}, 9")
    a(f"s_add_u32 {s(sM)}, {s(sM)}, {L_UM}")
    a(f"v_lshl_add_u32 {v(vUW)}, v0, 3, {s(sM)}")
    a(f"v_mul_u32_u24 {v(vIDX)}, 0xaaaa, {v(T5)}")
    a(f"v_add_u32 {v(vIDX)}, 0x4444, {v(vIDX)}")
    tr_addr(a, vTR)
    a(f"s_mul_i32 {s(sM)}, {s(sW)}, {6 * 4096}")
    a(f"v_add_u32 {v(vTR)}, {s(sM)}, {v(vTR)}")
    a(f"s_mul_i32 {s(sM)}, {s(sW)}, {3 * 768}")
    a(f"s_add_u32 {s(sM)}, {s(sM)}, {RING_SC}")
    a(f"v_lshl_add_u32 {v(vSX)}, v0, 2, {s(sM)}")
    a(f"v_or_b32 {v(vMSK)}, 8, {v(vSX)}")
    a(f"s_lshl_b32 {s(sTMP)}, {s(sW)}, 10")
    a(f"s_add_u32 {s(sTMP)}, {s(sTMP)}, {L_P}")
    a(f"v_bfe_u32 {v(T2)}, v0, 2, 1")
    a(f"v_bfe_u32 {v(T3)}, v0, 3, 1")
    a(f"v_and_b32 {v(TT)}, 1, v0")
    a(f"v_lshlrev_b32 {v(TT + 1)}, 1, {v(T3)}")
    a(f"v_xor_b32 {v(TT + 1)}, {v(TT + 1)}, {v(T0)}")
    a(f"v_lshlrev_b32 {v(TT + 1)}, 3, {v(TT + 1)}")
    a(f"v_lshl_add_u32 {v(TT + 1)}, {v(T3)}, 7, {v(TT + 1)}")
    a(f"v_lshl_add_u32 {v(TT + 1)}, {v(T2)}, 8, {v(TT + 1)}")
    a(f"v_add_u32 {v(TT + 1)}, {s(sTMP)}, {v(TT + 1)}")
    a(f"v_lshl_add_u32 {v(vPW)}, {v(T2)}, 6, {v(TT + 1)}")
    a(f"v_lshl_add_u32 {v(vPW)}, {v(TT)}, 5, {v(vPW)}")
    a(f"v_lshl_add_u32 {v(vPW)}, {v(T5)}, 2, {v(vPW)}")
    a(f"v_xor_b32 {v(T2)}, 1, {v(T2)}")
    a(f"v_lshl_add_u32 {v(vPM)}, {v(T2)}, 6, {v(TT + 1)}")
    a(f"v_lshl_add_u32 {v(vPM)}, {v(T5)}, 5, {v(vPM)}")
    a(f"v_lshl_add_u32 {v(vPM)}, {v(TT)}, 2, {v(vPM)}")
    for i in range(4):
        a(f"v_mov_b32 {v(PK + i)}, 0")
    a(f"v_add_u32 {v(T2)}, {s(sTMP)}, {v(vL16)}")
    a(f"ds_write_b128 {v(T2)}, {v(PK, 4)}")
    a(f"v_bfe_u32 {v(T2)}, v0, 1, 2")
    a(f"v_lshl_add_u32 {v(T1)}, {v(T2)}, 2, {v(TT)}")
    a(f"v_lshl_add_u32 {v(T1)}, {v(T3)}, 1, {v(T1)}")
    a(f"s_lshl_b32 {s(sM)}, {s(sI)}, 14")
    a(f"s_lshl_b32 {s(sTMP)}, {s(sW)}, 11")
    a(f"s_add_u32 {s(sM)}, {s(sM)}, {s(sTMP)}")
    a(f"s_add_u32 {s(sCS)}, {s(sM)}, {hex(WS_C)}")
    a(f"s_lshl_b32 {s(sTMP)}, {s(sX)}, 8")
    a(f"s_add_u32 {s(sM)}, {s(sM)}, {s(sTMP)}")
    a(f"v_lshl_add_u32 {v(T2)}, v0, 2, {s(sM)}")
    for k in range(7):
        a(f"v_xor_b32 {v(CA + k)}, {(k + 1) * 256}, {v(T2)}")
    a(f"s_lshl_b32 {s(sTMP)}, {s(sW)}, 8")
    a(f"s_add_u32 {s(sTMP)}, {s(sTMP)}, {L_OWN}")
    a(f"v_lshl_add_u32 {v(vOW)}, v0, 2, {s(sTMP)}")
    a(f"s_lshl_b32 {s(sM)}, {s(sI)}, 2")
    a(f"s_add_u32 {s(sM)}, {s(sM)}, {s(sW)}")
    a(f"s_lshl_b32 {s(sTMP)}, {s(sM)}, 5")
    a(f"s_lshl_b32 {s(sM)}, {s(sM)}, 8")
    a(f"v_lshl_add_u32 {v(vDR)}, v0, 2, {s(sM)}")
    a(f"v_and_b32 {v(T2)}, 15, v0")
    a(f"v_lshlrev_b32 {v(T2)}, 1, {v(T2)}")
    a(f"v_lshl_add_u32 {v(T2)}, {v(T0)}, 6, {v(T2)}")
    a(f"v_add_u32 {v(vDW)}, {s(sM)}, {v(T2)}")
    a(f"v_mul_u32_u24 {v(T2)}, 2560, {v(T0)}")
    a(f"v_lshl_add_u32 {v(T2)}, {v(T1)}, 1, {v(T2)}")
    a(f"buffer_load_short_d16 {v(T3)}, {v(T2)}, {s(R_1, 4)}, {s(sTMP)} offen")
    a(f"buffer_load_short_d16 {v(TT)}, {v(T2)}, {s(R_1, 4)}, {s(sTMP)} offen offset:1280")
    a(f"s_add_u32 {s(sPS)}, {s(sRING)}, {SLOT}")
    a(f"buffer_store_dword {v(vNEG)}, {v(vDR)}, {s(R_WS, 4)}, {s(sPS)} offen")
    a(f"v_mov_b32 {v(T4)}, {L_NEAR}")
    a(f"ds_write2_b32 {v(T4)}, {v(vNEG)}, {v(vNEG)} offset1:1")
    a("s_waitcnt vmcnt(1)")
    a(f"buffer_store_short {v(T3)}, {v(vDW)}, {s(R_WS, 4)}, {s(sRING)} offen")
    a(f"buffer_store_short {v(TT)}, {v(vDW)}, {s(R_WS, 4)}, {s(sRING)} offen offset:32")
    a("s_waitcnt vmcnt(0) lgkmcnt(0)")
    cx.stamp(1, 4)
    signal_ready(cx, T0)
    for t in range(4):
        a(f"v_xor_b32 {v(T2)}, {32 * t}, {v(vTR)}")
        for k in range(6):
            for u in range(2):
                a(f"ds_read_b64_tr_b16 {v(WO + 24 * t + 4 * k + 2 * u, 2)}, {v(T2)} offset:{k * 4096 + u * 512}")
        a("s_waitcnt lgkmcnt(0)")
    permute_columns(a, WO, 96, T2, T3)
    a(f"s_mov_b32 {s(sLO)}, 0x3f80")
    a(f"s_mov_b32 {s(sHI)}, 0x3f800000")
    a(f"s_mov_b32 {s(sSC)}, {f32(192 ** -0.5 * math.log2(math.e))}")
    a(f"s_mov_b32 {s(sSC + 1)}, {s(sSC)}")
    vx_setup(a, sM, sVXO)
    cx.stamp(2, 4)
    near_probe(cx, sCS, sPS, T4)
    cx.stamp(3, 4)
    slots_init(a, R_CUR, R_OTH, sPS, sRING)
    a(f"s_mov_b32 {s(sPH)}, 0")
    a("s_barrier")
    cx.stamp(4, 4)
    vx_dma(cx, vL16, sM, sVXO)
    near_pick(cx, sCS)
    a(f"s_add_u32 {s(sCS)}, {s(sCS)}, {hex(WS_C)}")
    sub_srd(a, R_C, C_SLOT)
    set_base(a, R_C, sCS)
    a("s_waitcnt vmcnt(0)")
    a("s_barrier")
    a("s_setprio 3")

    a.label("L_os_loop")
    a("s_barrier")
    cx.stamp(0)
    cx.stamp(0, 3)
    cx.stamp(5, 4)
    vx_dma(cx, vL16, sM, sVXO)
    for i in range(16):
        a(f"v_mov_b32 {v(ACC + i)}, 0")
    hint_wait(cx, vHU, HT, "L_os_hint", cx.hn)
    cx.stamp(1)
    cx.stamp(1, 3)
    a.label("L_os_pollv")
    for j in range(3):
        a(f"buffer_load_dwordx4 {v(VM + 4 * j, 4)}, {v(vVG)}, {s(R_CUR, 4)}, 0 offen offset:{1024 * j} sc1")
    for j in range(3):
        a(f"s_waitcnt vmcnt({2 - j})")
        if j == 0:
            a(f"v_max3_u32 {v(TT)}, {v(VM)}, {v(VM + 1)}, {v(VM + 2)}")
            a(f"v_max_u32 {v(TT)}, {v(TT)}, {v(VM + 3)}")
        else:
            a(f"v_max3_u32 {v(TT)}, {v(TT)}, {v(VM + 4 * j)}, {v(VM + 4 * j + 1)}")
            a(f"v_max3_u32 {v(TT)}, {v(TT)}, {v(VM + 4 * j + 2)}, {v(VM + 4 * j + 3)}")
    a(f"v_cmp_eq_u32 vcc, -1, {v(TT)}")
    cx.retry("L_os_pollv", 3)
    cx.stamp(2, 3)

    def score_loads(o):
        for k in range(9):
            o(f"buffer_load_dword {v(SC + k)}, {v(vMSK if k % 3 == 2 else vSX)}, {s(R_CUR, 4)}, 0 offen offset:{256 * k} sc1")

    def post(t):
        for i in range(2):
            a(f"v_cvt_pk_bf16_f32 {v(UC + 2 * t + i)}, {v(ACC + 4 * t + 2 * i)}, {v(ACC + 4 * t + 2 * i + 1)}")
        a(f"ds_write_b64 {v(vUW)}, {v(UC + 2 * t, 2)} offset:{2048 * t}")
    for k in range(12):
        t, j = k // 3, k % 3
        if k == cx.spos:
            score_loads(a)
        a(f"v_smfmac_f32_16x16x64_bf16 {v(ACC + 4 * t, 4)}, {v(VM + 4 * j, 4)}, {v(WO + 24 * t + 8 * j, 8)}, {v(vIDX)}")
    if cx.spos == 12:
        score_loads(a)
    for t in range(4):
        post(t)
    if cx.spos > 12:
        if cx.spos > 13:
            a(f"s_sleep {cx.spos - 13}")
        score_loads(a)
    cx.stamp(3, 3)
    a("s_waitcnt lgkmcnt(0)")
    a("s_barrier")
    cx.stamp(4, 3)
    a.label("L_os_polls")
    for j in range(3):
        a(f"s_waitcnt vmcnt({6 - 3 * j})")
        if j == 0:
            a(f"v_max3_u32 {v(TT)}, {v(SC)}, {v(SC + 1)}, {v(SC + 2)}")
        else:
            a(f"v_max3_u32 {v(TT)}, {v(TT)}, {v(SC + 3 * j)}, {v(SC + 3 * j + 1)}")
            a(f"v_max_u32 {v(TT)}, {v(TT)}, {v(SC + 3 * j + 2)}")
        if j == 2:
            a(f"v_cmp_eq_u32 vcc, -1, {v(TT)}")
        for k in range(6):
            c = v(E + k) if j else "0"
            a(f"v_dot2_f32_bf16 {v(E + k)}, {v(SC + 3 * j + k // 2)}, {s(sLO + k % 2)}, {c}")
    cx.retry("L_os_sre", 1)
    cx.tail.label("L_os_sre")
    score_loads(cx.tail)
    cx.tail("s_branch L_os_polls")
    cx.stamp(2)
    cx.stamp(5, 3)
    a.nop(1)
    a(f"v_max3_f32 {v(TT)}, {v(E)}, {v(E + 2)}, {v(E + 4)}")
    a(f"v_max3_f32 {v(TT + 1)}, {v(E + 1)}, {v(E + 3)}, {v(E + 5)}")
    DPP = ("quad_perm:[1,0,3,2]", "quad_perm:[2,3,0,1]", "row_half_mirror", "row_mirror")

    def across(op):
        for d in DPP:
            a.nop(1)
            for b in range(2):
                a(f"{op} {v(TT + b)}, {v(TT + b)}, {v(TT + b)} {d} row_mask:0xf bank_mask:0xf")
    across("v_max_f32_dpp")
    a(f"v_pk_mul_f32 {v(TT, 2)}, {v(TT, 2)}, {s(sSC, 2)}")
    for k in range(3):
        a(f"v_pk_fma_f32 {v(E + 2 * k, 2)}, {v(E + 2 * k, 2)}, {s(sSC, 2)}, {v(TT, 2)} neg_lo:[0,0,1] neg_hi:[0,0,1]")
    for k in range(6):
        a(f"v_exp_f32 {v(E + k)}, {v(E + k)}")
    a(f"v_pk_add_f32 {v(TT, 2)}, {v(E, 2)}, {v(E + 2, 2)}")
    a(f"v_pk_fma_f32 {v(TT, 2)}, {v(E + 4, 2)}, 0.5, {v(TT, 2)} op_sel_hi:[1,0,1]")
    a.nop(1)
    across("v_add_f32_dpp")
    a(f"v_rcp_f32 {v(TT)}, {v(TT)}")
    a(f"v_rcp_f32 {v(TT + 1)}, {v(TT + 1)}")
    a.nop(1)
    for k in range(3):
        a(f"v_pk_mul_f32 {v(E + 2 * k, 2)}, {v(E + 2 * k, 2)}, {v(TT, 2)}")
    for k in range(3):
        a(f"v_cvt_pk_bf16_f32 {v(PK + k)}, {v(E + 2 * k)}, {v(E + 2 * k + 1)}")
        if k == 1:
            a(f"ds_write2st64_b32 {v(vPW)}, {v(PK)}, {v(PK + 1)} offset1:2")
    a(f"ds_write_b32 {v(vPM)}, {v(PK + 2)}")
    a("s_waitcnt lgkmcnt(0)")
    cx.stamp(3)
    a("s_barrier")
    cx.stamp(4)

    NR = cx.crounds
    a("s_barrier")
    a(f"ds_read_b32 {v(TT)}, {v(vOW)}")
    a(f"buffer_store_dword {v(vNEG)}, {v(vDR)}, {s(R_CUR, 4)}, 0 offen")
    a("s_waitcnt lgkmcnt(0)")
    a(f"v_lshlrev_b32 {v(E2)}, 16, {v(TT)}")
    a(f"v_and_b32 {v(E2 + 1)}, 0xffff0000, {v(TT)}")

    def cloads(o, k):
        for x in range(7):
            o(f"buffer_load_dword {v(CR + 8 * k + x)}, {v(CA + x)}, {s(R_C, 4)}, 0 offen sc1")

    def csum(b, lo, hi):
        for x in range(lo, hi):
            a(f"v_dot2_f32_bf16 {v(E)}, {v(b + x)}, {s(sLO)}, {v(E2) if x == 0 else v(E)}")
            a(f"v_dot2_f32_bf16 {v(E + 1)}, {v(b + x)}, {s(sHI)}, {v(E2 + 1) if x == 0 else v(E + 1)}")

    a(f"s_sleep {cx.cdelay}")
    for k in range(NR):
        if k and cx.cgap:
            a(f"s_sleep {cx.cgap}")
        cloads(a, k)
    tl = cx.tail
    for k in range(NR):
        b = CR + 8 * k
        a.label(f"L_os_c{k}")
        a(f"s_waitcnt vmcnt({7 * (NR - 1)})")
        for q in range(4):
            a(f"v_bitop3_b32 {v(PK + q)}, {v(b + 2 * q)}, {v(b + min(2 * q + 1, 6))}, {s(sPH)} bitop3:0x7e")
        a(f"v_or3_b32 {v(PK)}, {v(PK)}, {v(PK + 1)}, {v(PK + 2)}")
        a(f"v_bitop3_b32 {v(PK)}, {v(PK)}, {v(PK + 3)}, 1 bitop3:0xa8")
        a(f"v_cmp_ne_u32 vcc, 0, {v(PK)}")
        csum(b, 0, cx.cspec)
        a(f"s_cbranch_vccnz L_os_r{k}")
        a.label(f"L_os_g{k}")
        csum(b, cx.cspec, 7)
        a(f"s_add_u32 {s(sS)}, {s(sS)}, 1")
        a(f"s_xor_b32 {s(sCS)}, {s(sCS)}, {C_SLOT}")
        a(f"s_bfe_u32 {s(sPH)}, {s(sS)}, 0x10001")
        a(f"v_cvt_pk_bf16_f32 {v(TT)}, {v(E)}, {v(E + 1)}")
        a(f"buffer_store_short {v(TT)}, {v(vDW)}, {s(R_OTH, 4)}, 0 offen")
        a(f"buffer_store_short_d16_hi {v(TT)}, {v(vDW)}, {s(R_OTH, 4)}, 0 offen offset:32")
        if k < NR - 1:
            a("s_branch L_os_csum")
        tl.label(f"L_os_r{k}")
        if cx.diag:
            tl("s_add_u32 s96, s96, 1")
        tl(f"s_sub_u32 {s(sB)}, {s(sB)}, 1")
        tl(f"s_cbranch_scc1 L_os_x{k}")
        cloads(tl, k)
        tl(f"s_branch L_os_c{(k + 1) % NR}")
        tl.label(f"L_os_x{k}")
        tl(f"s_mov_b32 {s(sB)}, 0")
        tl(f"s_branch L_os_g{k}")
    a.label("L_os_csum")
    cx.stamp(5)
    slots_flip(a, R_CUR, R_OTH, sPS)
    set_base(a, R_C, sCS)
    cx.save_stamps()
    a(f"s_cmp_lt_u32 {s(sS)}, 63")
    a("s_cbranch_scc1 L_os_loop")
    cx.dump_stamps(8)
    a("s_endpgm")


def near_probe(cx, reg, tmp, vaddr):
    a = cx.a
    if cx.copysel != "auto":
        return
    t0, t1, d, best = 44, 46, 48, 50
    a(f"s_mov_b32 {s(best)}, -1")
    a(f"s_mov_b32 {s(best + 1)}, -1")
    a(f"s_mov_b32 {s(tmp)}, {cx.nprobe - 1}")
    lp = a.newlabel("near")
    a.label(lp)
    for c in range(2):
        a(f"s_memtime {s(t0, 2)}")
        a("s_waitcnt lgkmcnt(0)")
        a(f"s_load_dword {s(d)}, {s(P_WS, 2)}, {s(reg)} glc")
        a("s_waitcnt lgkmcnt(0)")
        a(f"s_memtime {s(t1, 2)}")
        a("s_waitcnt lgkmcnt(0)")
        a(f"s_sub_u32 {s(d)}, {s(t1)}, {s(t0)}")
        a(f"s_min_u32 {s(best + c)}, {s(best + c)}, {s(d)}")
        a(f"s_xor_b32 {s(reg)}, {s(reg)}, 8192")
    a(f"s_add_u32 {s(reg)}, {s(reg)}, 256")
    a(f"s_sub_u32 {s(tmp)}, {s(tmp)}, 1")
    a(f"s_cbranch_scc0 {lp}")
    for c in range(2):
        a(f"v_mov_b32 {v(T0 + c)}, {s(best + c)}")
        a(f"ds_min_u32 {v(vaddr)}, {v(T0 + c)} offset:{4 * c}")
    a("s_waitcnt lgkmcnt(0)")


def near_pick(cx, reg):
    a = cx.a
    if cx.copysel != "auto":
        a(f"s_lshr_b32 {s(reg)}, {s(sX)}, 2")
        if cx.copysel == "nx":
            a(f"s_xor_b32 {s(reg)}, {s(reg)}, 1")
        a(f"s_lshl_b32 {s(reg)}, {s(reg)}, 13")
        return
    a(f"v_mov_b32 {v(T2)}, {L_NEAR}")
    a(f"ds_read_b64 {v(T0, 2)}, {v(T2)}")
    a("s_waitcnt lgkmcnt(0)")
    a(f"v_cmp_lt_u32 vcc, {v(T1)}, {v(T0)}")
    if cx.diag:
        a(f"v_lshl_or_b32 {v(T2)}, {v(T0)}, 16, {v(T1)}")
        a("s_nop 0")
        a(f"v_readfirstlane_b32 s98, {v(T2)}")
    a("s_nop 3")
    a(f"s_and_b32 {s(reg)}, vcc_lo, 8192")


def hint_addr(a, vHU):
    a(f"s_and_b32 {s(sM)}, {s(sW)}, 3")
    a(f"s_mul_i32 {s(sM)}, {s(sM)}, 12")
    a(f"s_add_u32 {s(sM)}, {s(sM)}, {s(sRING)}")
    a(f"s_add_u32 {s(sM)}, {s(sM)}, {RING_FP}")
    a(f"v_min_u32 {v(T2)}, 2, v0")
    a(f"v_lshl_add_u32 {v(vHU)}, {v(T2)}, 2, {s(sM)}")


def hint_wait(cx, vHU, tt, label, n=3):
    a = cx.a
    for k in range(n - 1):
        a(f"buffer_load_dword {v(tt + k)}, {v(vHU)}, {s(R_WS, 4)}, 0 offen sc1")
    a.label(label)
    for k in range(n):
        a(f"buffer_load_dword {v(tt + (k + n - 1) % n)}, {v(vHU)}, {s(R_WS, 4)}, 0 offen sc1")
        a(f"s_waitcnt vmcnt({n - 1})")
        a(f"v_cmp_ge_u32 vcc, {s(sS)}, {v(tt + k)}")
        if k < n - 1:
            a(f"s_cbranch_vccz {label}_ok")
    cx.retry(label)
    a.label(label + "_ok")


def u_wave(cx, n_init):
    a = cx.a
    vNEG, vL16, vUR, vPR, vIDP, vCW, vFV, vTR, vOW, vPR1, vHD, vHC, vCW2 = range(1, 14)
    TT = 28
    F = 32
    ACC = 80
    PA = 96
    UB = 100
    WO = 132
    sCS, sCS2, sPH = sA, sB2, sC
    HT = 228
    a(f"v_mov_b32 {v(vNEG)}, -1")
    a(f"v_lshlrev_b32 {v(vL16)}, 4, v0")
    a(f"s_lshl_b32 {s(sM)}, {s(sW)}, 11")
    a(f"s_add_u32 {s(sM)}, {s(sM)}, {L_UM - 4 * 2048}")
    a(f"v_lshl_add_u32 {v(vUR)}, v0, 3, {s(sM)}")
    a(f"s_lshl_b32 {s(sM)}, {s(sI)}, 2")
    a(f"s_add_u32 {s(sM)}, {s(sM)}, {s(sRING)}")
    a(f"s_add_u32 {s(sM)}, {s(sM)}, {RING_HD}")
    a(f"s_and_b32 {s(sTMP)}, {s(sW)}, 3")
    a(f"s_cselect_b32 {s(sM)}, {hex(OOB)}, {s(sM)}")
    a(f"v_cmp_eq_u32 vcc, 0, v0")
    a(f"v_mov_b32 {v(T2)}, {hex(OOB)}")
    a(f"v_mov_b32 {v(T3)}, {s(sM)}")
    a(f"v_cndmask_b32 {v(vHD)}, {v(T2)}, {v(T3)}, vcc")
    a(f"v_mov_b32 {v(vHC)}, 0")
    a(f"buffer_store_dword {v(vHC)}, {v(vHD)}, {s(R_WS, 4)}, 0 offen")
    a(f"v_and_b32 {v(T2)}, 1, {v(T0)}")
    a(f"v_lshlrev_b32 {v(T3)}, 1, {v(T2)}")
    a(f"v_xor_b32 {v(T3)}, {v(T3)}, {v(T1)}")
    a(f"v_lshlrev_b32 {v(T3)}, 3, {v(T3)}")
    a(f"v_lshl_add_u32 {v(T3)}, {v(T2)}, 7, {v(T3)}")
    a(f"v_lshrrev_b32 {v(T2)}, 1, {v(T0)}")
    a(f"v_lshl_add_u32 {v(T3)}, {v(T2)}, 9, {v(T3)}")
    a(f"v_add_u32 {v(vPR)}, {L_P}, {v(T3)}")
    a(f"v_xor_b32 {v(vPR1)}, {256 + 64}, {v(vPR)}")
    a(f"v_mul_u32_u24 {v(vIDP)}, {hex(0xdede - 0x8484)}, {v(T5)}")
    a(f"v_add_u32 {v(vIDP)}, 0x8484, {v(vIDP)}")
    a(f"s_and_b32 {s(sE)}, {s(sW)}, 3")
    a(f"s_lshl_b32 {s(sM)}, {s(sI)}, 14")
    a(f"s_lshl_b32 {s(sTMP)}, {s(sE)}, 11")
    a(f"s_add_u32 {s(sM)}, {s(sM)}, {s(sTMP)}")
    a(f"s_lshl_b32 {s(sTMP)}, {s(sX)}, 8")
    a(f"s_add_u32 {s(sM)}, {s(sM)}, {s(sTMP)}")
    a(f"v_lshl_add_u32 {v(vCW)}, v0, 2, {s(sM)}")
    a(f"v_min_u32 {v(T2)}, 47, v0")
    a(f"s_add_u32 {s(sM)}, {s(sRING)}, {RING_FV}")
    a(f"v_lshl_add_u32 {v(vFV)}, {v(T2)}, 2, {s(sM)}")
    a(f"s_lshl_b32 {s(sTMP)}, {s(sE)}, 8")
    a(f"s_add_u32 {s(sTMP)}, {s(sTMP)}, {L_OWN}")
    a(f"v_lshl_add_u32 {v(vOW)}, v0, 2, {s(sTMP)}")
    for k in range(4):
        a(f"s_mov_b32 {s(sM)}, {hex(WS_C + (k >> 1) * C_SLOT + (k & 1) * 8192)}")
        a(f"buffer_store_dword {v(vNEG)}, {v(vCW)}, {s(R_WS, 4)}, {s(sM)} offen sc1")
    tr_addr(a, vTR)
    a(f"s_lshl_b32 {s(sTMP)}, {s(sE)}, 5")
    a(f"v_xor_b32 {v(vTR)}, {s(sTMP)}, {v(vTR)}")
    for h in range(4):
        a(f"v_mov_b32 {v(UB + 8 * h + 6)}, 0")
        a(f"v_mov_b32 {v(UB + 8 * h + 7)}, 0")
    a("s_waitcnt vmcnt(0)")
    signal_ready(cx, T0)
    for t in range(24):
        if t == 12:
            a(f"v_add_u32 {v(vTR)}, {12 * 4096}, {v(vTR)}")
        for u in range(2):
            a(f"ds_read_b64_tr_b16 {v(WO + 4 * t + 2 * u, 2)}, {v(vTR)} offset:{(t % 12) * 4096 + u * 512}")
        if t % 4 == 3:
            a("s_waitcnt lgkmcnt(4)")
    a("s_waitcnt lgkmcnt(0)")
    permute_columns(a, WO, 96, T0, T1)
    wait_ready(cx, T0, n_init)

    a("s_setprio 2")

    def vflags(label, add):
        a(f"s_add_u32 {s(sTMP)}, {s(sS)}, {add}")
        a.label(label)
        a(f"buffer_load_dword {v(TT)}, {v(vFV)}, {s(R_WS, 4)}, 0 offen sc1")
        a("s_waitcnt vmcnt(0)")
        a(f"v_cmp_gt_u32 vcc, {s(sTMP)}, {v(TT)}")
        cx.retry(label)

    vflags("L_ou_v0", 1)
    a("s_barrier")
    near_pick(cx, sCS2)
    a(f"v_add_u32 {v(vCW2)}, {s(sCS2)}, {v(vCW)}")
    a(f"v_xor_b32 {v(vCW)}, 8192, {v(vCW2)}")
    a(f"s_mov_b32 {s(sCS)}, {hex(WS_C)}")
    sub_srd(a, R_C, C_SLOT)
    set_base(a, R_C, sCS)
    a("s_barrier")

    a.label("L_ou_loop")

    def cvt_head(h):
        b = ACC + 8 * (h & 1)
        return [f"v_cvt_pk_bf16_f32 {v(UB + 8 * h + 4 * m + i)}, {v(b + 4 * m + 2 * i)}, {v(b + 4 * m + 2 * i + 1)}"
                for m in range(2) for i in range(2)]

    D = 10

    def rd(k):
        a(f"ds_read_b128 {v(F + 4 * (k % 12), 4)}, {v(vL16)} offset:{L_VX + k * 1024}")

    def mm(k):
        h, t, m = k // 12, (k % 12) // 2, k % 2
        acc = ACC + 8 * (h & 1) + 4 * m
        c = "0" if t == 0 else v(acc, 4)
        a(f"v_mfma_f32_16x16x32_bf16 {v(acc, 4)}, {v(F + 4 * (k % 12), 4)}, {v(WO + 4 * (6 * h + t), 4)}, {c}")
    for k in range(D):
        rd(k)
    pend = []
    for k in range(36):
        if k % 2 == 0:
            a(f"s_waitcnt lgkmcnt({D - 2})")
        mm(k)
        rd(k + D)
        if k % 12 == 4 and k > 12:
            pend = cvt_head(k // 12 - 1)
        if pend and k % 2 == 1:
            a(pend.pop(0))
        if k == cx.hd:
            a(f"buffer_store_dword {v(vHC)}, {v(vHD)}, {s(R_WS, 4)}, 0 offen")
        if k == cx.vfk:
            a(f"buffer_load_dword {v(HT)}, {v(vFV)}, {s(R_WS, 4)}, 0 offen sc1")
    rd(46)
    rd(47)
    cx.stamp(5)
    cx.save_stamps()
    if cx.hd >= 36:
        a(f"s_sleep {cx.hd - 36}")
        a(f"buffer_store_dword {v(vHC)}, {v(vHD)}, {s(R_WS, 4)}, 0 offen")
    a(f"s_add_u32 {s(sTMP)}, {s(sS)}, 2")
    a(f"s_waitcnt vmcnt({1 if cx.hd > cx.vfk else 0}) lgkmcnt(0)")
    a(f"v_cmp_gt_u32 vcc, {s(sTMP)}, {v(HT)}")
    a("s_cbranch_vccnz L_ou_vwait")
    a.label("L_ou_vok")
    a("s_barrier")
    cx.stamp(0)
    pend = cvt_head(2)
    for k in range(36, 48):
        mm(k)
        if pend:
            a(pend.pop(0))
        elif k < 44:
            a(f"v_mov_b32 {v(PA + k - 40)}, 0")
    a(f"v_add_u32 {v(vHC)}, 1, {v(vHC)}")
    a(f"s_bfe_u32 {s(sPH)}, {s(sS)}, 0x10001")
    a.nop(5)
    for x in cvt_head(3):
        a(x)
    cx.stamp(1)
    a("s_barrier")
    for h in range(4):
        a(f"ds_read_b64 {v(UB + 8 * h + 2, 2)}, {v(vUR)} offset:{h * 512}")
    cx.stamp(2)
    a("s_waitcnt lgkmcnt(0)")
    a("s_barrier")
    for h in range(4):
        a(f"ds_read_b64_tr_b16 {v(F + 4 * h, 2)}, {v(vPR)} offset:{h * 1024}")
        a(f"ds_read_b64_tr_b16 {v(F + 4 * h + 2, 2)}, {v(vPR1)} offset:{h * 1024}")
    for h in range(4):
        a(f"s_waitcnt lgkmcnt({6 - 2 * h})")
        a(f"v_smfmac_f32_16x16x64_bf16 {v(PA, 4)}, {v(F + 4 * h, 4)}, {v(UB + 8 * h, 8)}, {v(vIDP)}")
    a(f"s_add_u32 {s(sS)}, {s(sS)}, 1")
    a.nop(7)
    a(f"v_pk_add_f32 {v(PA, 2)}, {v(PA, 2)}, {v(PA + 2, 2)}")
    a(f"v_cvt_pk_bf16_f32 {v(TT + 1)}, {v(PA)}, {v(PA + 1)}")
    a(f"v_and_or_b32 {v(TT)}, {v(TT + 1)}, -2, {s(sPH)}")
    a(f"buffer_store_dword {v(TT)}, {v(vCW)}, {s(R_C, 4)}, 0 offen sc1")
    a(f"buffer_store_dword {v(TT)}, {v(vCW2)}, {s(R_C, 4)}, 0 offen sc1")
    a(f"ds_write_b32 {v(vOW)}, {v(TT)}")
    cx.stamp(4)
    a(f"s_xor_b32 {s(sCS)}, {s(sCS)}, {C_SLOT}")
    set_base(a, R_C, sCS)
    a(f"s_cmp_lt_u32 {s(sS)}, 63")
    a("s_waitcnt lgkmcnt(0)")
    a("s_barrier")
    a("s_cbranch_scc1 L_ou_loop")
    a(f"buffer_store_dword {v(vHC)}, {v(vHD)}, {s(R_WS, 4)}, 0 offen")
    cx.dump_stamps(8)
    a("s_endpgm")
    a.label("L_ou_vwait")
    if cx.diag:
        a("s_add_u32 s97, s97, 1")
    vflags("L_ou_vf", 2)
    a("s_branch L_ou_vok")
```

```python
from common import *
from role_ax import flag_wait, lane0_addr

sC, sRING, sTMP, sM, sOB, sPO, sRO, sOO, sL = 62, 63, 64, 65, 66, 67, 68, 69, 70
PSEG = 4 * 8 * 8 * 2560


def role_ox(cx, n_init):
    a = cx.a
    vL16, vFB, vFO, vFC, vFCR, vPW, vPW2, vPR, vOUT, vCNT, vSTG, vTR = range(1, 13)
    T0, T1, T2, T3, T4 = 13, 14, 15, 16, 17
    F = 20
    ACC = 52
    W0, W1 = 64, 160
    RD = 160
    a.label("L_role_ox")
    a(f"s_sub_u32 {s(sC)}, {s(sT)}, {N_P + N_O + N_AX}")
    a(f"s_lshl_b32 {s(sRING)}, {s(sX)}, {RING_SH}")
    a(f"s_add_u32 {s(sRING)}, {s(sRING)}, {hex(WS_RING)}")
    srd(a, R_0, P_WO, 6144 * 640 * 2)
    srd(a, R_1, P_OUT, 2048 * 1280 * 2)
    a(f"v_lshlrev_b32 {v(vL16)}, 4, v0")
    a(f"s_add_u32 {s(sM)}, {s(sRING)}, {RING_FB}")
    a(f"v_and_b32 {v(T2)}, 3, v0")
    a(f"v_lshl_add_u32 {v(vFB)}, {v(T2)}, 2, {s(sM)}")
    a(f"s_lshl_b32 {s(sM)}, {s(sC)}, 2")
    a(f"s_add_u32 {s(sM)}, {s(sM)}, {s(sRING)}")
    a(f"s_add_u32 {s(sM)}, {s(sM)}, {RING_FO}")
    a(f"s_cmp_eq_u32 {s(sW)}, 4")
    a(f"s_cselect_b32 {s(sM)}, {s(sM)}, {hex(OOB)}")
    lane0_addr(a, vFO, sM, T2, T3)
    a(f"s_lshl_b32 {s(sM)}, {s(sC)}, 10")
    a(f"s_add_u32 {s(sM)}, {s(sM)}, {hex(WS_FC)}")
    a(f"v_lshrrev_b32 {v(T2)}, 3, v0")
    a(f"v_lshl_add_u32 {v(vFCR)}, {v(T2)}, 7, {s(sM)}")
    a(f"s_lshl_b32 {s(sTMP)}, {s(sX)}, 7")
    a(f"s_add_u32 {s(sM)}, {s(sM)}, {s(sTMP)}")
    a(f"s_cmp_eq_u32 {s(sW)}, 4")
    a(f"s_cselect_b32 {s(sM)}, {s(sM)}, {hex(OOB)}")
    lane0_addr(a, vFC, sM, T2, T3)
    a(f"v_mov_b32 {v(vCNT)}, 0")
    a(f"buffer_store_dword {v(vCNT)}, {v(vFO)}, {s(R_WS, 4)}, 0 offen")
    a(f"buffer_store_dword {v(vCNT)}, {v(vFC)}, {s(R_WS, 4)}, 0 offen sc1")
    a(f"v_lshrrev_b32 {v(T0)}, 4, v0")
    a(f"v_bfe_u32 {v(T2)}, v0, 2, 2")
    a(f"v_mul_u32_u24 {v(T2)}, 20480, {v(T2)}")
    a(f"v_lshl_add_u32 {v(T2)}, {v(T0)}, 6, {v(T2)}")
    a(f"v_and_b32 {v(T3)}, 3, v0")
    a(f"v_lshl_add_u32 {v(T2)}, {v(T3)}, 4, {v(T2)}")
    a(f"s_mul_i32 {s(sM)}, {s(sX)}, 2560")
    a(f"s_lshl_b32 {s(sTMP)}, {s(sW)}, 8")
    a(f"s_add_u32 {s(sTMP)}, {s(sTMP)}, {s(sM)}")
    a(f"v_add_u32 {v(vPW)}, {s(sTMP)}, {v(T2)}")
    a(f"s_lshr_b32 {s(sTMP)}, {s(sW)}, 1")
    a(f"s_lshl_b32 {s(sTMP)}, {s(sTMP)}, 8")
    a(f"s_add_u32 {s(sM)}, {s(sM)}, {s(sTMP)}")
    a(f"s_and_b32 {s(sTMP)}, {s(sW)}, 1")
    a(f"s_mul_i32 {s(sTMP)}, {s(sTMP)}, 81920")
    a(f"s_add_u32 {s(sM)}, {s(sM)}, {s(sTMP)}")
    a(f"s_add_u32 {s(sM)}, {s(sM)}, 2048")
    a(f"v_add_u32 {v(vPW2)}, {s(sM)}, {v(T2)}")
    a(f"s_sub_u32 {s(sTMP)}, {s(sW)}, 5")
    a(f"s_lshl_b32 {s(sTMP)}, {s(sTMP)}, 6")
    a(f"v_add_u32 {v(T1)}, {s(sTMP)}, v0")
    a(f"v_cmp_gt_u32 vcc, 160, {v(T1)}")
    a(f"s_mul_i32 {s(sM)}, {s(sX)}, 20480")
    a(f"v_lshl_add_u32 {v(T2)}, {v(T1)}, 4, {s(sM)}")
    a(f"v_mov_b32 {v(vOUT)}, {hex(OOB)}")
    a(f"v_cndmask_b32 {v(vPR)}, {v(vOUT)}, {v(T2)}, vcc")
    a(f"v_mul_u32_u24 {v(T3)}, 2560, {v(T3)}")
    a(f"v_lshrrev_b32 {v(T1)}, 2, {v(T1)}")
    a(f"v_lshl_add_u32 {v(T3)}, {v(T1)}, 3, {v(T3)}")
    a(f"s_mul_i32 {s(sM)}, {s(sX)}, {4 * 2560}")
    a(f"s_mul_i32 {s(sTMP)}, {s(sC)}, 320")
    a(f"s_add_u32 {s(sM)}, {s(sM)}, {s(sTMP)}")
    a(f"s_add_u32 {s(sM)}, {s(sM)}, 1280")
    a(f"v_add_u32 {v(T3)}, {s(sM)}, {v(T3)}")
    a(f"v_cndmask_b32 {v(vOUT)}, {v(vOUT)}, {v(T3)}, vcc")
    a(f"v_lshrrev_b32 {v(T1)}, 3, v0")
    a(f"v_and_b32 {v(T2)}, 2, {v(T1)}")
    a(f"s_and_b32 {s(sM)}, {s(sW)}, 1")
    a(f"s_lshl_b32 {s(sM)}, {s(sM)}, 2")
    a(f"v_or_b32 {v(T2)}, {s(sM)}, {v(T2)}")
    a(f"v_and_b32 {v(T3)}, 7, v0")
    a(f"v_xor_b32 {v(T2)}, {v(T2)}, {v(T3)}")
    a(f"v_lshlrev_b32 {v(T2)}, 4, {v(T2)}")
    a(f"s_mul_i32 {s(sM)}, {s(sX)}, 768")
    a(f"s_lshl_b32 {s(sL)}, {s(sW)}, 3")
    a(f"s_add_u32 {s(sM)}, {s(sM)}, {s(sL)}")
    a(f"v_add_u32 {v(T1)}, {s(sM)}, {v(T1)}")
    a(f"v_mul_u32_u24 {v(T1)}, 1280, {v(T1)}")
    a(f"v_add3_u32 {v(vSTG)}, {v(T1)}, {v(T2)}, {s(sTMP)}")
    a(f"v_bfe_u32 {v(T1)}, v0, 2, 2")
    a(f"v_and_b32 {v(T2)}, 2, {v(T1)}")
    a(f"v_and_b32 {v(T3)}, 1, {v(T0)}")
    a(f"v_lshl_or_b32 {v(T2)}, {v(T3)}, 2, {v(T2)}")
    a(f"v_bfe_u32 {v(T3)}, v0, 1, 1")
    a(f"v_or_b32 {v(T2)}, {v(T2)}, {v(T3)}")
    a(f"v_lshlrev_b32 {v(T2)}, 4, {v(T2)}")
    a(f"v_lshl_add_u32 {v(T2)}, {v(T0)}, 10, {v(T2)}")
    a(f"v_lshl_add_u32 {v(T2)}, {v(T1)}, 7, {v(T2)}")
    a(f"v_and_b32 {v(T3)}, 1, v0")
    a(f"v_lshl_add_u32 {v(vTR)}, {v(T3)}, 3, {v(T2)}")
    a("s_waitcnt vmcnt(0)")
    signal_ready(cx, T0)
    wait_ready(cx, T0, n_init)

    def trread(reg):
        for t in range(24):
            if t == 12:
                a(f"v_add_u32 {v(T0)}, {12 * 4096}, {v(T0)}")
            for u in range(2):
                a(f"ds_read_b64_tr_b16 {v(reg + 4 * t + 2 * u, 2)}, {v(T0)} offset:{(t % 12) * 4096 + u * 512}")
            if t % 4 == 3:
                a("s_waitcnt lgkmcnt(4)")
        a("s_waitcnt lgkmcnt(0)")

    a(f"s_lshl_b32 {s(sL)}, {s(sW)}, 10")
    for p, colb in enumerate((0, 128, 192)):
        for z in range(12):
            a(f"s_add_u32 m0, {s(sL)}, {z * 8192}")
            a(f"s_mov_b32 {s(sM)}, {z * 64 * 1280 + colb}")
            a(f"buffer_load_dwordx4 {v(vSTG)}, {s(R_0, 4)}, {s(sM)} offen lds")
        a("s_waitcnt vmcnt(0)")
        a("s_barrier")
        skip = f"L_ox_p{p}"
        a(f"s_cmp_{'lt' if p == 1 else 'ge'}_u32 {s(sW)}, 4")
        a(f"s_cbranch_scc1 {skip}")
        if p < 2:
            a(f"s_and_b32 {s(sM)}, {s(sW)}, 3")
        else:
            a(f"s_lshr_b32 {s(sM)}, {s(sW)}, 1")
            a(f"s_add_u32 {s(sM)}, {s(sM)}, 2")
        a(f"s_lshl_b32 {s(sM)}, {s(sM)}, 5")
        a(f"v_xor_b32 {v(T0)}, {s(sM)}, {v(vTR)}")
        trread(W1 if p == 2 else W0)
        a.label(skip)
        a("s_barrier")
    a(f"s_mul_i32 {s(sL)}, {s(sW)}, 3072")
    a(f"s_mul_i32 {s(sOB)}, {s(sX)}, {4 * BLK}")
    a(f"s_add_u32 {s(sOB)}, {s(sOB)}, {s(sL)}")
    a(f"s_add_u32 {s(sOB)}, {s(sOB)}, {hex(WS_O)}")
    a(f"s_mul_i32 {s(sPO)}, {s(sC)}, {8 * 8 * 2560}")
    a(f"s_add_u32 {s(sPO)}, {s(sPO)}, {hex(WS_PART)}")
    a(f"s_sub_u32 {s(sRO)}, {s(sPO)}, {2 * PSEG}")
    a(f"s_mov_b32 {s(sS)}, 0")
    a(f"s_cmp_ge_u32 {s(sW)}, 4")
    a("s_cbranch_scc1 L_ox_b")
    a(f"s_bitcmp1_b32 {s(sW)}, 0")
    a("s_cbranch_scc1 L_ox_a1")

    def red_loads():
        for x in range(8):
            if x % 2 == 0:
                a(f"s_add_u32 {s(sTMP)}, {s(sRO)}, {x * 2560}")
            a(f"buffer_load_dwordx4 {v(RD + 4 * x, 4)}, {v(vPR)}, {s(R_WS, 4)}, {s(sTMP)} offen offset:{(x & 1) * 2560} sc1")
        a(f"s_add_u32 {s(sRO)}, {s(sRO)}, {PSEG}")

    def red_sum(back):
        for x in range(1, 8):
            for i in range(4):
                a(f"v_add_f32 {v(RD + i)}, {v(RD + i)}, {v(RD + 4 * x + i)}")
        a(f"s_sub_u32 {s(sOO)}, {s(sS)}, {back}")
        a(f"s_cselect_b32 {s(sOO)}, 64, {s(sOO)}")
        a(f"s_mul_i32 {s(sOO)}, {s(sOO)}, {32 * 2560}")
        a(f"v_cvt_pk_bf16_f32 {v(T1)}, {v(RD)}, {v(RD + 1)}")
        a(f"v_cvt_pk_bf16_f32 {v(T2)}, {v(RD + 2)}, {v(RD + 3)}")
        a(f"buffer_store_dwordx2 {v(T1, 2)}, {v(vOUT)}, {s(R_1, 4)}, {s(sOO)} offen")

    def body(tag, extra):
        lead = extra is None

        def stores():
            a(f"s_add_u32 {s(sTMP)}, {s(sPO)}, 81920")
            a(f"buffer_store_dwordx4 {v(ACC, 4)}, {v(vPW)}, {s(R_WS, 4)}, {s(sPO)} offen sc1")
            a(f"buffer_store_dwordx4 {v(ACC + 4, 4)}, {v(vPW)}, {s(R_WS, 4)}, {s(sTMP)} offen sc1")
            if not lead:
                a(f"buffer_store_dwordx4 {v(ACC + 8, 4)}, {v(vPW2)}, {s(R_WS, 4)}, {s(sPO)} offen sc1")
            a(f"s_add_u32 {s(sPO)}, {s(sPO)}, {PSEG}")

        def fb_addr(add):
            a(f"s_add_u32 {s(sTMP)}, {s(sS)}, {add}")
            a(f"s_and_b32 {s(sTMP)}, {s(sTMP)}, 3")
            a(f"s_lshl_b32 {s(sTMP)}, {s(sTMP)}, 4")
            a(f"v_add_u32 {v(T3)}, {s(sTMP)}, {v(vFB)}")
        if lead:
            fb_addr(0)
            a(f"v_mov_b32 {v(T4)}, 0")
        a.label(f"L_ox_loop{tag}")
        cx.stamp(0)
        if lead:
            a(f"s_cmp_lg_u32 {s(sW)}, 4")
            a("s_cbranch_scc1 L_ox_bok")
            a(f"s_add_u32 {s(sM)}, {s(sS)}, 1")
            a(f"v_cmp_gt_i32 vcc, {s(sM)}, {v(T4)}")
            a("s_cbranch_vccz L_ox_bok")
            flag_wait(cx, T3, T4, sM, "L_ox_wb", 1)
            a.label("L_ox_bok")
        a("s_barrier")
        cx.stamp(1)
        for half in range(2):
            a(f"s_add_u32 m0, {s(sL)}, {half * 24576}")
            a(f"s_add_u32 {s(sTMP)}, {s(sOB)}, {half * 24576}")
            for o in range(3):
                a(f"buffer_load_dwordx4 {v(vL16)}, {s(R_WS, 4)}, {s(sTMP)} offen offset:{o * 1024} sc1 lds")
        ring_next(a, sOB, WS_O, SEGSTR, cx.rq)
        for half in range(2):
            a(f"s_waitcnt vmcnt({3 if half == 0 else 0})")
            a("s_barrier")
            cx.stamp(2 + half)
            D = 6

            def rd(k):
                a(f"ds_read_b128 {v(F + 4 * (k % 8), 4)}, {v(vL16)} offset:{half * 24576 + k * 1024}")
            for k in range(D):
                rd(k)
            if half == 0:
                if lead:
                    a(f"buffer_load_dword {v(T0)}, {v(vFCR)}, {s(R_WS, 4)}, 0 offen sc1")
                a(f"s_cmp_eq_u32 {s(sS)}, 0")
                a(f"s_cbranch_scc1 L_ox_ns{tag}")
                stores()
                a.label(f"L_ox_ns{tag}")
            elif lead:
                a(f"buffer_store_dword {v(vCNT)}, {v(vFC)}, {s(R_WS, 4)}, 0 offen sc1")
                a(f"v_add_u32 {v(vCNT)}, 1, {v(vCNT)}")
                a(f"s_sub_u32 {s(sM)}, {s(sS)}, 1")
                a(f"buffer_store_dword {v(vCNT)}, {v(vFO)}, {s(R_WS, 4)}, 0 offen")
                a(f"v_cmp_gt_i32 vcc, {s(sM)}, {v(T0)}")
                a("s_cbranch_vccz L_ox_cok")
                flag_wait(cx, vFCR, T0, sM, "L_ox_wc", 1)
                a.label("L_ox_cok")
                red_loads()
                fb_addr(1)
            for k in range(24):
                t, m = 12 * half + k // 2, k % 2
                if m == 0:
                    a(f"s_waitcnt lgkmcnt({min(D - 2, 22 - k)})")
                c = "0" if t == 0 else v(ACC + 4 * m, 4)
                a(f"v_mfma_f32_16x16x32_bf16 {v(ACC + 4 * m, 4)}, {v(W0 + 4 * t, 4)}, {v(F + 4 * (k % 8), 4)}, {c}")
                if m == extra:
                    c = "0" if t == 0 else v(ACC + 8, 4)
                    a(f"v_mfma_f32_16x16x32_bf16 {v(ACC + 8, 4)}, {v(W1 + 4 * t, 4)}, {v(F + 4 * (k % 8), 4)}, {c}")
                if k + D < 24:
                    rd(k + D)
                if lead and half == 1 and k == 10:
                    a(f"buffer_load_dword {v(T4)}, {v(T3)}, {s(R_WS, 4)}, 0 offen sc1")
        cx.stamp(4)
        if lead:
            a("s_waitcnt vmcnt(0)")
            red_sum(2)
        cx.stamp(5)
        a(f"s_add_u32 {s(sS)}, {s(sS)}, 1")
        cx.save_stamps()
        a(f"s_cmp_lt_u32 {s(sS)}, 64")
        a(f"s_cbranch_scc1 L_ox_loop{tag}")
        a.nop(3)
        stores()
        if lead:
            a(f"s_mov_b32 {s(sM)}, 63")
            flag_wait(cx, vFCR, T0, sM, "L_ox_wcd", 1)
        a("s_waitcnt vmcnt(0)")
        a("s_barrier")
        if lead:
            a(f"buffer_store_dword {v(vCNT)}, {v(vFC)}, {s(R_WS, 4)}, 0 offen sc1")
            red_loads()
            a("s_waitcnt vmcnt(0)")
            red_sum(2)
            flag_wait(cx, vFCR, T0, sS, "L_ox_wce", 1)
            red_loads()
            a("s_waitcnt vmcnt(0)")
            red_sum(1)
        cx.dump_stamps(8, 14)
        a("s_endpgm")

    body("a0", 0)
    a.label("L_ox_a1")
    body("a1", 1)
    a.label("L_ox_b")
    body("b", None)
```

```python
from common import *
import role_ax

STG = 49152
XB0, XB1 = 98304, 0
L_MEM = 147456
L_QKX = 157696
L_KX = 49152

sH, sJ, sHH, sRING = 61, 62, 63, 64
sQ, sK, sPAR, sPARO, sXO, sM = 65, 66, 67, 68, 69, 70
sTMP = 71
R_CUR, R_OTH = R_0, R_1

vXA0, vXA1, vMEM, vIDX, vNEG, vGST = 1, 2, 3, 4, 5, 6
vKXW, vKXR, vQKW, vQKR, vSC, vKM = 7, 8, 9, 10, 11, 12
vXG, vDG4, vDG1, vDL4, vDL1, vVR, vVP, vFL, vRS = 7, 8, 9, 10, 11, 12, 13, 14, 15
F = 16
ACC = 56
KXO = 72
XO = 80
CV = 88
W0 = 96
W1 = 176
T0, T1, T2, T3, T4, T5 = 56, 57, 58, 59, 60, 61
vSTG, vTR = 62, 63


def stage_chunk(a, cc):
    buf = (cc % 3) * STG
    for M in range(3):
        for hi in range(2):
            a(f"s_add_u32 m0, {s(sTMP)}, {buf + M * 16384 + hi * 8192}")
            a(f"s_mov_b32 {s(sM)}, {(128 * cc + 64 * hi) * 12288}")
            a(f"buffer_load_dwordx4 {v(vSTG)}, {s(R_0 + 4 * M, 4)}, {s(sM)} offen lds")


def read_chunk(a, cc, tiles):
    buf = (cc % 3) * STG
    a(f"v_add_u32 {v(T0)}, {buf}, {v(vTR)}")
    n = 0
    for M, reg in tiles:
        for tl in range(4):
            for u in range(2):
                r = reg + (4 * cc + tl) * 4 + 2 * u
                a(f"ds_read_b64_tr_b16 {v(r, 2)}, {v(T0)} offset:{M * 16384 + tl * 4096 + u * 512}")
                n += 1
                if n % 12 == 0:
                    a("s_waitcnt lgkmcnt(4)")
    a("s_waitcnt lgkmcnt(0)")


def x_dma(a, k):
    if k:
        a("s_add_u32 m0, m0, 896")
        a("s_nop 0")
    a(f"buffer_load_dwordx4 {v(vXG)}, {s(R_3, 4)}, {s(sXO)} offen offset:{128 * k} lds")


def xread(a, t, m):
    slot = (2 * t + m) % 10
    a(f"ds_read_b128 {v(F + 4 * slot, 4)}, {v(vXA0 + (t & 1))} offset:{m * 20480 + (t >> 1) * 1024}")


NOBG = 0


def background(a, tiles, hook=None):
    D = 4
    for t in range(D):
        xread(a, t, 0)
        xread(a, t, 1)
    for t in range(20):
        ahead = min(D - 1, 19 - t)
        a(f"s_waitcnt lgkmcnt({2 * ahead})")
        first = True
        for m in range(2):
            for ti, reg in enumerate(tiles):
                acc = ACC + 8 * ti + 4 * m
                slot = (2 * t + m) % 10
                c = "0" if t == 0 else v(acc, 4)
                if not NOBG or t == 0:
                    a(f"v_mfma_f32_16x16x32_bf16 {v(acc, 4)}, {v(reg + 4 * t, 4)}, {v(F + 4 * slot, 4)}, {c}")
                if first and t + D < 20:
                    xread(a, t + D, 0)
                    xread(a, t + D, 1)
                first = False
        if hook:
            hook(t)


def common_addr(cx):
    a = cx.a
    a(f"s_mul_i32 {s(sH)}, {s(sT)}, 11")
    a(f"s_lshr_b32 {s(sH)}, {s(sH)}, 5")
    a(f"s_mul_i32 {s(sJ)}, {s(sH)}, 3")
    a(f"s_sub_u32 {s(sJ)}, {s(sT)}, {s(sJ)}")
    a(f"s_lshl_b32 {s(sHH)}, {s(sX)}, 2")
    a(f"s_add_u32 {s(sHH)}, {s(sHH)}, {s(sH)}")
    a(f"s_lshl_b32 {s(sRING)}, {s(sX)}, {RING_SH}")
    a(f"s_add_u32 {s(sRING)}, {s(sRING)}, {hex(WS_RING)}")
    srd(a, R_0, P_WQ, 640 * 6144 * 2)
    srd(a, R_1, P_WK, 640 * 6144 * 2)
    srd(a, R_2, P_WV, 640 * 6144 * 2)
    srd(a, R_3, P_BX, 2048 * 640 * 2)
    a(f"v_lshrrev_b32 {v(T0)}, 3, v0")
    a(f"v_and_b32 {v(T1)}, 2, {v(T0)}")
    a(f"s_and_b32 {s(sTMP)}, {s(sW)}, 1")
    a(f"s_lshl_b32 {s(sTMP)}, {s(sTMP)}, 2")
    a(f"v_or_b32 {v(T1)}, {s(sTMP)}, {v(T1)}")
    a(f"v_and_b32 {v(T2)}, 7, v0")
    a(f"v_xor_b32 {v(T1)}, {v(T1)}, {v(T2)}")
    a(f"v_lshlrev_b32 {v(T1)}, 4, {v(T1)}")
    a(f"s_lshl_b32 {s(sTMP)}, {s(sW)}, 3")
    a(f"v_add_u32 {v(T0)}, {s(sTMP)}, {v(T0)}")
    a(f"v_mul_u32_u24 {v(T0)}, 12288, {v(T0)}")
    a(f"s_mul_i32 {s(sTMP)}, {s(sHH)}, 384")
    a(f"s_lshl_b32 {s(sM)}, {s(sJ)}, 7")
    a(f"s_add_u32 {s(sTMP)}, {s(sTMP)}, {s(sM)}")
    a(f"v_add3_u32 {v(vSTG)}, {v(T0)}, {v(T1)}, {s(sTMP)}")
    a(f"v_lshrrev_b32 {v(T0)}, 4, v0")
    a(f"v_bfe_u32 {v(T1)}, v0, 2, 2")
    a(f"v_and_b32 {v(T2)}, 2, {v(T1)}")
    a(f"v_and_b32 {v(T3)}, 1, {v(T0)}")
    a(f"v_lshl_or_b32 {v(T2)}, {v(T3)}, 2, {v(T2)}")
    a(f"v_bfe_u32 {v(T3)}, v0, 1, 1")
    a(f"s_and_b32 {s(sTMP)}, {s(sW)}, 3")
    a(f"s_lshl_b32 {s(sTMP)}, {s(sTMP)}, 1")
    a(f"v_or_b32 {v(T3)}, {s(sTMP)}, {v(T3)}")
    a(f"v_xor_b32 {v(T2)}, {v(T2)}, {v(T3)}")
    a(f"v_lshlrev_b32 {v(T2)}, 4, {v(T2)}")
    a(f"v_lshl_add_u32 {v(T2)}, {v(T0)}, 10, {v(T2)}")
    a(f"v_lshl_add_u32 {v(T2)}, {v(T1)}, 7, {v(T2)}")
    a(f"v_and_b32 {v(T3)}, 1, v0")
    a(f"v_lshl_add_u32 {v(vTR)}, {v(T3)}, 3, {v(T2)}")
    a(f"v_and_b32 {v(T1)}, 15, v0")
    a(f"v_lshrrev_b32 {v(T2)}, 1, {v(T1)}")
    a(f"v_xor_b32 {v(T2)}, {v(T2)}, {v(T0)}")
    a(f"v_lshlrev_b32 {v(T2)}, 4, {v(T2)}")
    a(f"v_and_b32 {v(T3)}, 7, v0")
    a(f"v_lshl_add_u32 {v(T2)}, {v(T3)}, 7, {v(T2)}")
    a(f"v_bfe_u32 {v(T3)}, v0, 3, 1")
    a(f"v_mul_u32_u24 {v(T3)}, 10240, {v(T3)}")
    a(f"v_add_u32 {v(T2)}, {v(T2)}, {v(T3)}")
    a(f"v_add_u32 {v(vXA0)}, {XB0}, {v(T2)}")
    a(f"v_xor_b32 {v(vXA1)}, 64, {v(vXA0)}")
    a(f"v_and_b32 {v(T2)}, 60, v0")
    a(f"v_and_b32 {v(T3)}, 1, v0")
    a(f"v_lshl_or_b32 {v(T2)}, {v(T3)}, 1, {v(T2)}")
    a(f"v_bfe_u32 {v(T3)}, v0, 1, 1")
    a(f"v_or_b32 {v(T2)}, {v(T2)}, {v(T3)}")
    a(f"v_lshlrev_b32 {v(vMEM)}, 4, {v(T2)}")
    a(f"v_add_u32 {v(vMEM)}, {L_MEM}, {v(vMEM)}")
    a(f"v_bfe_u32 {v(T3)}, v0, 1, 1")
    a(f"v_mul_u32_u24 {v(vIDX)}, 0xaaaa, {v(T3)}")
    a(f"v_add_u32 {v(vIDX)}, 0x4444, {v(vIDX)}")
    a(f"v_mov_b32 {v(vNEG)}, -1")
    a(f"s_and_b32 {s(sTMP)}, {s(sW)}, 3")
    a(f"s_lshr_b32 {s(sM)}, {s(sTMP)}, 1")
    a(f"s_lshl_b32 {s(sM)}, {s(sM)}, 11")
    a(f"s_and_b32 {s(sTMP)}, {s(sTMP)}, 1")
    a(f"s_lshl_b32 {s(sTMP)}, {s(sTMP)}, 9")
    a(f"s_add_u32 {s(sM)}, {s(sM)}, {s(sTMP)}")
    a(f"s_lshl_b32 {s(sTMP)}, {s(sJ)}, 12")
    a(f"s_add_u32 {s(sM)}, {s(sM)}, {s(sTMP)}")
    a(f"s_mul_i32 {s(sTMP)}, {s(sHH)}, {BLK}")
    a(f"s_add_u32 {s(sM)}, {s(sM)}, {s(sTMP)}")
    a(f"v_and_b32 {v(T2)}, 1, {v(T0)}")
    a(f"v_lshlrev_b32 {v(T2)}, 10, {v(T2)}")
    a(f"v_lshrrev_b32 {v(T3)}, 1, {v(T0)}")
    a(f"v_lshl_add_u32 {v(T2)}, {v(T3)}, 8, {v(T2)}")
    a(f"v_lshl_add_u32 {v(T2)}, {v(T1)}, 4, {v(T2)}")
    a(f"v_add_u32 {v(vGST)}, {s(sM)}, {v(T2)}")
    a(f"v_lshrrev_b32 {v(T2)}, 2, {v(T1)}")
    a(f"v_and_b32 {v(T3)}, 1, {v(T1)}")
    a(f"v_lshl_add_u32 {v(T4)}, {v(T2)}, 1, {v(T3)}")
    a(f"v_bfe_u32 {v(T5)}, v0, 1, 1")
    a(f"s_mov_b32 {s(sS)}, 0")


def weights(cx, tiles, is_v, n_init):
    a = cx.a
    a(f"s_lshl_b32 {s(sTMP)}, {s(sW)}, 10")
    for cc in range(3):
        stage_chunk(a, cc)
    for cc in range(5):
        if cc < 3:
            n = 12
        elif cc == 3:
            n = 16 if is_v else 6
        else:
            n = 10 if is_v else 0
        a(f"s_waitcnt vmcnt({n})")
        if cc in (0, 2, 4):
            cx.stamp(1 + cc // 2, 4)
        if cc == 0:
            signal_ready(cx, T0)
            a(f"s_lshl_b32 {s(sTMP)}, {s(sW)}, 10")
        else:
            a("s_barrier")
        read_chunk(a, cc, tiles)
        if cc < 3:
            a("s_barrier")
        if cc < 2:
            stage_chunk(a, cc + 3)
        if cc == 2 and is_v:
            a(f"s_mul_i32 {s(sM)}, {s(sW)}, 10240")
            a(f"s_add_u32 m0, {s(sM)}, {XB0 - 4 * 10240}")
            a(f"s_mov_b32 {s(sXO)}, 0")
            for k in range(10):
                x_dma(a, k)
    if is_v:
        permute_columns(a, W0, 80, T0, T1)
        wait_ready(cx, T0, n_init)
    a("s_barrier")
    cx.stamp(4, 4)


def role_p(cx, n_init):
    a = cx.a
    global NOBG
    NOBG = cx.nobg
    a.label("L_role_p")
    cx.stamp(0, 4)
    common_addr(cx)
    a(f"s_cmp_ge_u32 {s(sW)}, 4")
    a("s_cbranch_scc1 L_p_v")
    qk_wave(cx, n_init)
    a.label("L_p_v")
    v_wave(cx, n_init)


def qk_wave(cx, n_init):
    a = cx.a
    a(f"s_lshl_b32 {s(sTMP)}, {s(sW)}, 10")
    a(f"s_add_u32 {s(sTMP)}, {s(sTMP)}, {L_KX}")
    a(f"v_lshl_add_u32 {v(vKXW)}, v0, 3, {s(sTMP)}")
    a(f"s_and_b32 {s(sTMP)}, {s(sW)}, 1")
    a(f"s_lshl_b32 {s(sTMP)}, {s(sTMP)}, 9")
    a(f"s_add_u32 {s(sTMP)}, {s(sTMP)}, {L_KX}")
    a(f"v_lshl_add_u32 {v(vKXR)}, v0, 3, {s(sTMP)}")
    a(f"v_lshrrev_b32 {v(T2)}, 1, {v(T0)}")
    a(f"v_lshlrev_b32 {v(T2)}, 3, {v(T2)}")
    a(f"v_xor_b32 {v(T2)}, {v(T2)}, {v(T1)}")
    a(f"v_lshlrev_b32 {v(T2)}, 3, {v(T2)}")
    a(f"v_lshl_add_u32 {v(T2)}, {v(T0)}, 7, {v(T2)}")
    a(f"s_lshl_b32 {s(sTMP)}, {s(sW)}, 9")
    a(f"s_add_u32 {s(sTMP)}, {s(sTMP)}, {L_QKX}")
    a(f"v_add_u32 {v(vQKW)}, {s(sTMP)}, {v(T2)}")
    a(f"v_lshrrev_b32 {v(T2)}, 2, v0")
    a(f"v_mov_b32 {v(vQKR)}, {L_QKX}")
    l3 = a.newlabel("p_w3")
    a(f"s_cmp_lg_u32 {s(sW)}, 3")
    a(f"s_cbranch_scc1 {l3}")
    a(f"v_and_b32 {v(T2)}, 3, {v(T2)}")
    a(f"v_and_b32 {v(T3)}, 1, {v(T0)}")
    a(f"v_lshl_add_u32 {v(T2)}, {v(T3)}, 3, {v(T2)}")
    a(f"v_lshrrev_b32 {v(T3)}, 1, {v(T0)}")
    a(f"v_lshl_add_u32 {v(vQKR)}, {v(T3)}, 9, {v(vQKR)}")
    a.label(l3)
    a(f"v_lshlrev_b32 {v(T3)}, 3, {v(T5)}")
    a(f"v_xor_b32 {v(T2)}, {v(T2)}, {v(T3)}")
    a(f"v_lshl_add_u32 {v(vQKR)}, {v(T2)}, 3, {v(vQKR)}")
    a(f"v_and_b32 {v(T3)}, 3, v0")
    a(f"v_lshl_add_u32 {v(vQKR)}, {v(T3)}, 7, {v(vQKR)}")
    a(f"s_mul_i32 {s(sM)}, {s(sT)}, 768")
    a(f"s_add_u32 {s(sM)}, {s(sM)}, {RING_SC}")
    a(f"s_lshl_b32 {s(sTMP)}, {s(sW)}, 8")
    a(f"s_cmp_eq_u32 {s(sW)}, 3")
    a(f"s_cselect_b32 {s(sTMP)}, {hex(OOB)}, {s(sTMP)}")
    a(f"s_add_u32 {s(sM)}, {s(sM)}, {s(sTMP)}")
    a(f"v_lshl_add_u32 {v(vSC)}, v0, 2, {s(sM)}")
    a(f"s_mul_i32 {s(sM)}, {s(sHH)}, 3072")
    a(f"s_lshl_b32 {s(sTMP)}, {s(sJ)}, 10")
    a(f"s_add_u32 {s(sM)}, {s(sM)}, {s(sTMP)}")
    a(f"v_lshlrev_b32 {v(T2)}, 7, {v(T0)}")
    a(f"v_lshl_add_u32 {v(T2)}, {v(T4)}, 4, {v(T2)}")
    a(f"v_xor_b32 {v(T3)}, 1, {v(T5)}")
    a(f"v_lshl_add_u32 {v(T2)}, {v(T3)}, 30, {v(T2)}")
    a(f"v_add_u32 {v(vKM)}, {s(sM)}, {v(T2)}")
    a(f"s_add_u32 {s(sPAR)}, {s(sRING)}, {SLOT}")
    for so in (sRING, sPAR):
        a(f"buffer_store_dword {v(vNEG)}, {v(vSC)}, {s(R_WS, 4)}, {s(so)} offen")
    weights(cx, [(0, W0), (1, W1)], False, n_init)
    slots_init(a, R_CUR, R_OTH, sPAR, sRING)
    a(f"s_mov_b32 {s(sQ)}, {hex(WS_Q)}")
    a(f"s_mov_b32 {s(sK)}, {hex(WS_K)}")
    a(f"s_mov_b32 {s(sM)}, {hex(WS_KM)}")
    a(f"s_mov_b32 {s(sS)}, -1")

    a.label("L_pqk_loop")
    a("s_setprio 0")
    cx.stamp(5)
    cx.stamp(0, 1)
    background(a, [W0, W1], hook=lambda t: cx.stamp(1, 1) if t == 9 else None)
    cx.stamp(2, 1)
    a(f"s_cmp_eq_u32 {s(sS)}, -1")
    a("s_cbranch_scc1 L_pqk_first")
    a.label("L_pqk_crit")
    a("s_setprio 2")
    cx.stamp(3, 1)
    a("s_waitcnt vmcnt(0)")
    cx.stamp(4, 1)
    cx.stamp(0)
    a("s_barrier")
    cx.stamp(5, 4)
    cx.stamp(0, 2)
    if cx.qdelay:
        a(f"s_sleep {cx.qdelay}")
    for t in range(10):
        a(f"ds_read_b128 {v(F + 4 * t, 4)}, {v(vMEM)} offset:{t * 1024}")
    for w in range(4):
        a(f"ds_read_b64 {v(KXO + 2 * w, 2)}, {v(vKXR)} offset:{w * 1024}")
    for t in range(10):
        a(f"s_waitcnt lgkmcnt({13 - t})")
        a(f"v_smfmac_f32_16x16x64_bf16 {v(CV, 4)}, {v(F + 4 * t, 4)}, {v(W0 + 8 * t, 8)}, {v(vIDX)}")
        if t == 0:
            cx.stamp(1, 2)
        if t == 9:
            cx.stamp(2, 2)
        a(f"v_smfmac_f32_16x16x64_bf16 {v(CV + 4, 4)}, {v(F + 4 * t, 4)}, {v(W1 + 8 * t, 8)}, {v(vIDX)}")
    a(f"s_cmp_ge_u32 {s(sW)}, 2")
    a.nop(6)
    a(f"v_pk_add_f32 {v(CV, 2)}, {v(CV, 2)}, {v(CV + 2, 2)}")
    a(f"v_pk_add_f32 {v(CV + 4, 2)}, {v(CV + 4, 2)}, {v(CV + 6, 2)}")
    a(f"v_cvt_pk_bf16_f32 v14, {v(CV)}, {v(CV + 1)}")
    a(f"v_cvt_pk_bf16_f32 v15, {v(CV + 4)}, {v(CV + 5)}")
    a(f"ds_write_b64 {v(vQKW)}, v[14:15]")
    a("s_cbranch_scc1 L_pqk_23")

    def exchange(offs):
        a("s_waitcnt lgkmcnt(0)")
        cx.stamp(1)
        cx.stamp(3, 2)
        a("s_barrier")
        cx.stamp(4, 2)
        for i, o in enumerate(offs):
            a(f"ds_read_b64_tr_b16 {v(XO + 2 * i, 2)}, {v(vQKR)} offset:{o}")

    def scores(B):
        exchange([0, 512, 1024, 1536])
        a("s_waitcnt lgkmcnt(2)")
        a(f"v_mfma_f32_16x16x32_bf16 {v(CV, 4)}, {v(XO, 4)}, {v(B, 4)}, 0")
        a("s_waitcnt lgkmcnt(0)")
        a(f"v_mfma_f32_16x16x32_bf16 {v(CV, 4)}, {v(XO + 4, 4)}, {v(B + 4, 4)}, {v(CV, 4)}")
        a.nop(8)
        a(f"v_cvt_pk_bf16_f32 v14, {v(CV)}, {v(CV + 1)}")
        a(f"buffer_store_dword v14, {v(vSC)}, {s(R_CUR, 4)}, 0 offen")
        cx.stamp(2)
        cx.stamp(5, 2)
        a("s_barrier")
        a("s_branch L_pqk_join")

    scores(KXO)
    a.label("L_pqk_23")
    a(f"s_cmp_eq_u32 {s(sW)}, 3")
    a("s_cbranch_scc1 L_pqk_3")
    scores(XO)
    a.label("L_pqk_3")
    exchange([0, 32, 1024, 1056])
    a("s_waitcnt lgkmcnt(0)")
    a("s_barrier")
    a(f"buffer_store_dwordx4 {v(XO, 4)}, {v(vKM)}, {s(R_WS, 4)}, {s(sM)} offen")
    a(f"buffer_store_dwordx4 {v(XO + 4, 4)}, {v(vKM)}, {s(R_WS, 4)}, {s(sM)} offen offset:512")
    a.label("L_pqk_join")
    a(f"buffer_store_dword {v(vNEG)}, {v(vSC)}, {s(R_OTH, 4)}, 0 offen")
    ring_next(a, sM, WS_KM, MSEG, cx.rq)
    slots_flip(a, R_CUR, R_OTH, sPAR)
    a(f"s_cmp_eq_u32 {s(sS)}, 63")
    a("s_cbranch_scc1 L_pqk_end")
    a.label("L_pqk_out")
    a("s_setprio 0")
    for i in range(8):
        a(f"v_cvt_pk_bf16_f32 {v(F + i)}, {v(ACC + 2 * i)}, {v(ACC + 2 * i + 1)}")
    a(f"ds_write_b64 {v(vKXW)}, {v(F + 4, 2)}")
    a(f"ds_write_b64 {v(vKXW)}, {v(F + 6, 2)} offset:512")
    a(f"v_permlane16_swap_b32 {v(F)}, {v(F + 2)}")
    a(f"v_permlane16_swap_b32 {v(F + 1)}, {v(F + 3)}")
    a(f"buffer_store_dwordx4 {v(F, 4)}, {v(vGST)}, {s(R_WS, 4)}, {s(sQ)} offen")
    for i in range(8):
        a(f"v_mov_b32 {v(CV + i)}, 0")
    a("s_waitcnt lgkmcnt(0)")
    a(f"v_permlane16_swap_b32 {v(F + 4)}, {v(F + 6)}")
    a(f"v_permlane16_swap_b32 {v(F + 5)}, {v(F + 7)}")
    a(f"buffer_store_dwordx4 {v(F + 4, 4)}, {v(vGST)}, {s(R_WS, 4)}, {s(sK)} offen")
    a(f"v_xor_b32 {v(vXA0)}, {XB0 ^ XB1}, {v(vXA0)}")
    a(f"v_xor_b32 {v(vXA1)}, {XB0 ^ XB1}, {v(vXA1)}")
    ring_next(a, sQ, WS_Q, SEGSTR, cx.rq)
    a(f"s_add_u32 {s(sK)}, {s(sQ)}, {hex(WS_K - WS_Q)}")
    a(f"s_add_u32 {s(sS)}, {s(sS)}, 1")
    cx.save_stamps(cx.keepp)
    a(f"s_cmp_lt_u32 {s(sS)}, 63")
    a("s_cbranch_scc1 L_pqk_loop")
    a("s_branch L_pqk_crit")
    a.label("L_pqk_end")
    a("s_waitcnt vmcnt(0)")
    a("s_barrier")
    cx.dump_stamps(8)
    a("s_endpgm")
    a.label("L_pqk_first")
    a("s_barrier")
    a.nop(4)
    a("s_branch L_pqk_out")


def v_wave(cx, n_init):
    a = cx.a
    DR, DR2 = 64, 176
    vZ, vST, vFA, vFAD = 76, 77, 78, 79
    sHD = sJ
    sVX = sK
    a(f"s_and_b32 {s(sTMP)}, {s(sW)}, 3")
    a(f"v_lshrrev_b32 {v(T2)}, 3, v0")
    a(f"s_lshl_b32 {s(sM)}, {s(sTMP)}, 3")
    a(f"v_add_u32 {v(T2)}, {s(sM)}, {v(T2)}")
    a(f"v_bfe_u32 {v(T3)}, {v(T2)}, 1, 3")
    a(f"v_and_b32 {v(vXG)}, 7, v0")
    a(f"v_xor_b32 {v(T3)}, {v(T3)}, {v(vXG)}")
    a(f"v_mul_u32_u24 {v(T2)}, 1280, {v(T2)}")
    a(f"v_lshl_add_u32 {v(vXG)}, {v(T3)}, 4, {v(T2)}")
    a(f"s_mul_i32 {s(sM)}, {s(sTMP)}, 2560")
    a(f"v_lshl_add_u32 {v(vDG4)}, v0, 4, {s(sM)}")
    a(f"v_lshl_add_u32 {v(vDG1)}, v0, 2, {s(sM)}")
    a(f"v_add_u32 {v(vDL4)}, {L_MEM}, {v(vDG4)}")
    a(f"v_add_u32 {v(vDL1)}, {L_MEM + 2048}, {v(vDG1)}")
    a(f"s_lshl_b32 {s(sM)}, {s(sT)}, 2")
    a(f"s_add_u32 {s(sM)}, {s(sM)}, {s(sTMP)}")
    a(f"s_lshl_b32 {s(sXO)}, {s(sM)}, 2")
    a(f"s_add_u32 {s(sXO)}, {s(sXO)}, {s(sRING)}")
    a(f"s_add_u32 {s(sXO)}, {s(sXO)}, {RING_FV}")
    a(f"v_cmp_eq_u32 vcc, 0, v0")
    a(f"v_mov_b32 {v(T2)}, {hex(OOB)}")
    a(f"v_mov_b32 {v(T3)}, {s(sXO)}")
    a(f"v_cndmask_b32 {v(vFL)}, {v(T2)}, {v(T3)}, vcc")
    a(f"s_lshl_b32 {s(sM)}, {s(sM)}, 8")
    a(f"s_add_u32 {s(sM)}, {s(sM)}, {RING_VM}")
    a(f"v_lshl_add_u32 {v(vRS)}, v0, 2, {s(sM)}")
    a(f"v_lshlrev_b32 {v(T2)}, 6, {v(T0)}")
    a(f"v_lshl_add_u32 {v(T2)}, {v(T1)}, 1, {v(T2)}")
    a(f"v_add_u32 {v(vVR)}, {s(sM)}, {v(T2)}")
    a(f"s_mul_i32 {s(sM)}, {s(sHH)}, 3072")
    a(f"s_lshl_b32 {s(sXO)}, {s(sJ)}, 7")
    a(f"s_add_u32 {s(sM)}, {s(sM)}, {s(sXO)}")
    a(f"s_lshl_b32 {s(sXO)}, {s(sTMP)}, 5")
    a(f"s_add_u32 {s(sM)}, {s(sM)}, {s(sXO)}")
    a(f"v_mul_u32_u24 {v(T2)}, 768, {v(T0)}")
    a(f"v_bfe_u32 {v(T3)}, v0, 1, 2")
    a(f"v_lshl_add_u32 {v(T2)}, {v(T3)}, 3, {v(T2)}")
    a(f"v_bfe_u32 {v(T3)}, v0, 3, 1")
    a(f"v_lshl_add_u32 {v(T2)}, {v(T3)}, 2, {v(T2)}")
    a(f"v_and_b32 {v(T3)}, 1, v0")
    a(f"v_lshl_add_u32 {v(T2)}, {v(T3)}, 1, {v(T2)}")
    a(f"v_add_u32 {v(vVP)}, {s(sM)}, {v(T2)}")
    a(f"v_and_b32 {v(T2)}, 1, {v(T0)}")
    a(f"v_lshrrev_b32 {v(T3)}, 1, {v(T0)}")
    a(f"v_sub_u32 {v(T2)}, {v(T3)}, {v(T2)}")
    a(f"v_mul_i32_i24 {v(T2)}, 768, {v(T2)}")
    a(f"v_add_u32 {v(vGST)}, {v(vGST)}, {v(T2)}")
    a(f"s_lshl_b32 {s(sM)}, {s(sH)}, 2")
    a(f"s_add_u32 {s(sM)}, {s(sM)}, {s(sRING)}")
    a(f"s_add_u32 {s(sM)}, {s(sM)}, {RING_FA}")
    a(f"v_bfe_u32 {v(T2)}, v0, 2, 2")
    a(f"v_lshl_add_u32 {v(vFA)}, {v(T2)}, 4, {s(sM)}")
    vPF, vCNT = 74, 75
    a(f"s_lshl_b32 {s(sM)}, {s(sT)}, 2")
    a(f"s_add_u32 {s(sM)}, {s(sM)}, {s(sRING)}")
    a(f"s_add_u32 {s(sM)}, {s(sM)}, {RING_FP}")
    a(f"s_cmp_eq_u32 {s(sW)}, 4")
    a(f"s_cselect_b32 {s(sM)}, {s(sM)}, {hex(OOB)}")
    a(f"v_mov_b32 {v(T2)}, {hex(OOB)}")
    a(f"v_mov_b32 {v(T3)}, {s(sM)}")
    a(f"v_cndmask_b32 {v(vPF)}, {v(T2)}, {v(T3)}, vcc")
    a(f"v_mov_b32 {v(vCNT)}, 0")
    a(f"s_add_u32 {s(sPAR)}, {s(sRING)}, {SLOT}")
    a(f"buffer_store_dword {v(vNEG)}, {v(vRS)}, {s(R_WS, 4)}, {s(sRING)} offen")
    a(f"buffer_store_dword {v(vNEG)}, {v(vRS)}, {s(R_WS, 4)}, {s(sPAR)} offen")
    a(f"buffer_store_dword {v(vCNT)}, {v(vFL)}, {s(R_WS, 4)}, 0 offen")
    a(f"buffer_store_dword {v(vCNT)}, {v(vPF)}, {s(R_WS, 4)}, 0 offen")
    weights(cx, [(2, W0)], True, n_init)
    slots_init(a, R_CUR, R_OTH, sPAR, sRING)
    a(f"s_mov_b32 {s(sVX)}, {hex(WS_V)}")
    a(f"s_mov_b32 {s(sM)}, {hex(WS_VM)}")
    sXL = sH
    a(f"s_mul_i32 {s(sXL)}, {s(sW)}, 10240")
    a(f"s_add_u32 {s(sXL)}, {s(sXL)}, {XB1 - 4 * 10240 & 0xffffffff}")

    a(f"s_mov_b32 {s(sS)}, -1")
    a(f"s_add_u32 {s(sHD)}, {s(sRING)}, {RING_HD}")
    a(f"v_min_u32 {v(vZ)}, 9, v0")
    a(f"v_lshl_add_u32 {v(vZ)}, {v(vZ)}, 2, {s(sHD)}")
    a(f"v_mov_b32 {v(vST)}, 0")

    a.label("L_pv_loop")
    a("s_setprio 2")
    cx.stamp(5)
    a(f"s_add_u32 {s(sXO)}, {s(sXO)}, {32 * 1280}")
    a(f"s_mov_b32 m0, {s(sXL)}")
    a(f"s_xor_b32 {s(sXL)}, {s(sXL)}, {XB0 ^ XB1}")
    cx.stamp(0, 1)
    if cx.ax:
        a(f"buffer_load_dword {v(vFAD)}, {v(vFA)}, {s(R_WS, 4)}, 0 offen sc1")
    background(a, [W0], hook=lambda t: x_dma(a, t // 2) if t % 2 == 1 else None)
    cx.stamp(2, 1)
    a(f"v_add_u32 {v(vCNT)}, 1, {v(vCNT)}")
    a.nop(3)
    for i in range(4):
        a(f"v_cvt_pk_bf16_f32 {v(CV + 2 * (i & 1) + (i >> 1))}, {v(ACC + 2 * i)}, {v(ACC + 2 * i + 1)}")
    a(f"v_xor_b32 {v(vXA0)}, {XB0 ^ XB1}, {v(vXA0)}")
    a(f"v_xor_b32 {v(vXA1)}, {XB0 ^ XB1}, {v(vXA1)}")
    a(f"v_permlane32_swap_b32 {v(CV)}, {v(CV + 1)}")
    a(f"v_permlane32_swap_b32 {v(CV + 2)}, {v(CV + 3)}")
    if cx.ax:
        a(f"s_sub_u32 {s(sTMP)}, {s(sS)}, {cx.rq + 1}")
        a("s_waitcnt vmcnt(10)")
        a(f"v_cmp_gt_i32 vcc, {s(sTMP)}, {v(vFAD)}")
        a("s_cbranch_vccz L_pv_free")
        role_ax.flag_wait(cx, vFA, vFAD, sTMP, "L_pv_wfree", 1)
        a.label("L_pv_free")
    a(f"buffer_store_dwordx4 {v(CV, 4)}, {v(vGST)}, {s(R_WS, 4)}, {s(sVX)} offen")
    ring_next(a, sVX, WS_V, SEGSTR, cx.rq)
    cx.stamp(3, 1)
    a("s_waitcnt vmcnt(0)")
    cx.stamp(5, 1)
    a(f"buffer_store_dword {v(vCNT)}, {v(vFL)}, {s(R_WS, 4)}, 0 offen")
    a(f"s_cmp_eq_u32 {s(sS)}, -1")
    a("s_cbranch_scc1 L_pv_first")
    a.label("L_pv_crit")
    for i in range(4):
        a(f"v_mov_b32 {v(ACC + i)}, 0")
    a(f"v_add_u32 {v(vST)}, 1, {v(vST)}")
    a("s_setprio 3")
    cx.stamp(3)
    n = cx.hn
    for k in range(n - 1):
        a(f"buffer_load_dword {v(CV + 4 + k)}, {v(vZ)}, {s(R_WS, 4)}, 0 offen sc1")
    a.label("L_pv_hint")
    for k in range(n):
        a(f"buffer_load_dword {v(CV + 4 + (k + n - 1) % n)}, {v(vZ)}, {s(R_WS, 4)}, 0 offen sc1")
        a(f"s_waitcnt vmcnt({n - 1})")
        a(f"v_cmp_gt_u32 vcc, {s(sS)}, {v(CV + 4 + k)}")
        if k < n - 1:
            a("s_cbranch_vccz L_pv_hok")
    cx.retry("L_pv_hint", 1)
    a.label("L_pv_hok")
    cx.stamp(4)

    def dloads(b):
        a(f"buffer_load_dwordx4 {v(b, 4)}, {v(vDG4)}, {s(R_CUR, 4)}, 0 offen sc1")
        a(f"buffer_load_dwordx4 {v(b + 4, 4)}, {v(vDG4)}, {s(R_CUR, 4)}, 0 offen offset:1024 sc1")
        a(f"buffer_load_dword {v(b + 8)}, {v(vDG1)}, {s(R_CUR, 4)}, 0 offen offset:2048 sc1")
        a(f"buffer_load_dword {v(b + 9)}, {v(vDG1)}, {s(R_CUR, 4)}, 0 offen offset:2304 sc1")

    def dcheck(b, n):
        a(f"s_waitcnt vmcnt({n + 3})")
        a(f"ds_write_b128 {v(vDL4)}, {v(b, 4)}")
        a(f"v_max3_u32 {v(CV)}, {v(b)}, {v(b + 1)}, {v(b + 2)}")
        a(f"s_waitcnt vmcnt({n + 2})")
        a(f"ds_write_b128 {v(vDL4)}, {v(b + 4, 4)} offset:1024")
        a(f"v_max3_u32 {v(CV)}, {v(CV)}, {v(b + 3)}, {v(b + 4)}")
        a(f"v_max3_u32 {v(CV)}, {v(CV)}, {v(b + 5)}, {v(b + 6)}")
        a(f"s_waitcnt vmcnt({n})")
        a(f"ds_write2st64_b32 {v(vDL1)}, {v(b + 8)}, {v(b + 9)} offset1:1")
        a(f"v_max3_u32 {v(CV)}, {v(CV)}, {v(b + 7)}, {v(b + 8)}")
        a(f"v_max_u32 {v(CV)}, {v(CV)}, {v(b + 9)}")
        a(f"v_cmp_eq_u32 vcc, -1, {v(CV)}")
        a("s_waitcnt lgkmcnt(0)")

    def quick(b):
        a("s_waitcnt vmcnt(4)")
        a(f"v_max3_u32 {v(CV)}, {v(b)}, {v(b + 4)}, {v(b + 8)}")
        a(f"v_max_u32 {v(CV)}, {v(CV)}, {v(b + 9)}")
        a(f"v_cmp_eq_u32 vcc, -1, {v(CV)}")

    if cx.dsets == 1:
        a.label("L_pv_poll")
        dloads(DR)
        dcheck(DR, 0)
        cx.retry("L_pv_poll", 0)
    else:
        a.label("L_pv_again")
        dloads(DR)
        if cx.dgap:
            a(f"s_sleep {cx.dgap}")
        a.label("L_pv_poll")
        dloads(DR2)
        quick(DR)
        a("s_cbranch_vccz L_pv_got")
        dloads(DR)
        quick(DR2)
        cx.retry("L_pv_poll", 0)
        dcheck(DR2, 8)
        a("s_branch L_pv_got2")
        a.label("L_pv_got")
        dcheck(DR, 8)
        a.label("L_pv_got2")
        cx.retry("L_pv_again")
    cx.stamp(0)
    a("s_barrier")
    cx.stamp(0, 2)
    for t in range(10):
        a(f"ds_read_b128 {v(F + 4 * t, 4)}, {v(vMEM)} offset:{t * 1024}")
    for t in range(10):
        a(f"s_waitcnt lgkmcnt({9 - t})")
        a(f"v_smfmac_f32_16x16x64_bf16 {v(ACC, 4)}, {v(F + 4 * t, 4)}, {v(W0 + 8 * t, 8)}, {v(vIDX)}")
        if t == cx.hu:
            a(f"buffer_store_dword {v(vST)}, {v(vPF)}, {s(R_WS, 4)}, 0 offen")
    cx.stamp(1)
    a.nop(8)
    a(f"v_add_f32 {v(ACC)}, {v(ACC)}, {v(ACC + 2)}")
    a(f"v_add_f32 {v(ACC + 1)}, {v(ACC + 1)}, {v(ACC + 3)}")
    a(f"v_cvt_pk_bf16_f32 {v(CV)}, {v(ACC)}, {v(ACC + 1)}")
    a(f"buffer_store_short {v(CV)}, {v(vVR)}, {s(R_CUR, 4)}, 0 offen")
    a(f"buffer_store_short_d16_hi {v(CV)}, {v(vVR)}, {s(R_CUR, 4)}, 0 offen offset:32")
    cx.stamp(2)
    cx.stamp(5, 2)
    a(f"buffer_store_dword {v(vNEG)}, {v(vRS)}, {s(R_OTH, 4)}, 0 offen")
    if cx.memdbg:
        a("s_waitcnt vmcnt(0)")
        a(f"s_lshl_b32 {s(sTMP)}, {s(sS)}, 3")
        a(f"s_add_u32 {s(sTMP)}, {s(sTMP)}, {s(sX)}")
        a(f"s_lshl_b32 {s(sTMP)}, {s(sTMP)}, 16")
        a(f"s_add_u32 {s(sTMP)}, {s(sTMP)}, {hex(WS_MEMDBG)}")
        a(f"buffer_store_dwordx4 {v(DR, 4)}, {v(vDG4)}, {s(R_WS, 4)}, {s(sTMP)} offen")
        a(f"buffer_store_dwordx4 {v(DR + 4, 4)}, {v(vDG4)}, {s(R_WS, 4)}, {s(sTMP)} offen offset:1024")
        a(f"buffer_store_dword {v(DR + 8)}, {v(vDG1)}, {s(R_WS, 4)}, {s(sTMP)} offen offset:2048")
        a(f"buffer_store_dword {v(DR + 9)}, {v(vDG1)}, {s(R_WS, 4)}, {s(sTMP)} offen offset:2304")
    slots_flip(a, R_CUR, R_OTH, sPAR)
    a(f"s_add_u32 {s(sS)}, {s(sS)}, 1")
    a(f"buffer_store_short {v(CV)}, {v(vVP)}, {s(R_WS, 4)}, {s(sM)} offen")
    a(f"buffer_store_short_d16_hi {v(CV)}, {v(vVP)}, {s(R_WS, 4)}, {s(sM)} offen offset:384")
    ring_next(a, sM, WS_VM, MSEG, cx.rq)
    a("s_setprio 0")
    a("s_barrier")
    a("s_barrier")
    cx.save_stamps(cx.keepp)
    a(f"s_cmp_lt_u32 {s(sS)}, 63")
    a("s_cbranch_scc1 L_pv_loop")
    a(f"s_cmp_eq_u32 {s(sS)}, 63")
    a("s_cbranch_scc1 L_pv_crit")
    a("s_waitcnt vmcnt(0)")
    a("s_barrier")
    a(f"v_mov_b32 {v(CV)}, 65")
    a(f"buffer_store_dword {v(CV)}, {v(vPF)}, {s(R_WS, 4)}, 0 offen")
    cx.dump_stamps(8)
    a("s_endpgm")
    a.label("L_pv_first")
    a(f"s_mov_b32 {s(sS)}, 0")
    a("s_barrier")
    a("s_branch L_pv_loop")
```

```python
import sys, os, tarfile, itertools
from gen import build, DEFAULTS
os.makedirs("../out/sw", exist_ok=True)
for f in os.listdir("../out/sw"): os.remove("../out/sw/" + f)
n = 0
for spec in sys.argv[1:]:
    keys, vals = [], []
    for x in spec.split():
        k, v = x.split("="); keys.append(k); vals.append(v.split(","))
    for combo in itertools.product(*vals):
        kw = {k: (v if isinstance(DEFAULTS[k], str) else int(v)) for k, v in zip(keys, combo)}
        text, h = build(diag=1, group=9, keep=10, **kw)
        assert h == 0
        open(f"../out/sw/v{n:03d}.asm", "w").write(text); n += 1
with tarfile.open("../out/sw.tar", "w") as t: t.add("../out/sw", arcname="sw")
print(n, "variants")
```

```python
from asmlib import Asm, v, s

NAME = "concat_heads__linear_kernel_hedgehog__memory_aug_recurrent_mem_tr__prompt"

MB = 1 << 20
BLK = 12288
SEGSTR = 32 * BLK
WS_Q = 0
WS_K = 24 * MB
WS_V = 48 * MB
WS_O = 72 * MB
WS_KM = 96 * MB
WS_VM = 102 * MB
MSEG = 32 * 3072
WS_PART = 108 * MB
WS_RING = 160 * MB
RING_SH = 17
SLOT = 32768
RING_D = 0
RING_SC = 10240
RING_VM = 19456
RING_FV = 65536
RING_FP = 67584
RING_HD = 69632
RING_FQ = 65792
RING_FD = 66048
RING_FA = 66304
RING_FB = 66560
RING_FO = 66816
WS_C = 162 * MB
C_SLOT = 1048576
C_REP = 163840
WS_N = WS_C + 163840
WS_FC = 161 * MB
WS_PHI = 164 * MB
WS_OA = 172 * MB
WS_DIAG = 200 * MB
WS_MEMDBG = 204 * MB
WS_SIZE = 268435456
OOB = 0x40000000

P_AX, P_AWQKV, P_AWPHI, P_AWO, P_BX, P_MEM0, P_WQ, P_WK, P_WV, P_WO, P_SEG, P_OUT, P_DBG, P_WS = range(4, 32, 2)
R_WS, R_DBG, R_0, R_1, R_2, R_3 = 32, 36, 40, 44, 48, 52
sX, sW, sT, sS, sB = 56, 57, 58, 59, 60
sT0 = 61
STAMP0 = 72

RQ = 4
N_AX, N_OX, N_A = 2, 4, 4
N_P, N_O = 12, 10
SPIN = 300000


def srd(a, r, ptr, nbytes):
    a(f"s_mov_b32 {s(r)}, {s(ptr)}")
    a(f"s_and_b32 {s(r + 1)}, {s(ptr + 1)}, 0xffff")
    a(f"s_mov_b32 {s(r + 2)}, {hex(nbytes)}")
    a(f"s_mov_b32 {s(r + 3)}, 0x20000")


class Ctx:
    def __init__(self, diag=False, memdbg=False):
        self.a = Asm()
        self.tail = Asm()
        self.diag = diag
        self.memdbg = memdbg
        self.keep = 40
        self.group = 0

    def stamp(self, k, group=0):
        if self.diag and group == self.group:
            self.a(f"s_memtime {s(STAMP0 + 2 * k, 2)}")

    def save_stamps(self, add=0):
        if not self.diag:
            return
        a = self.a
        l = a.newlabel("keep")
        a(f"s_cmp_lg_u32 {s(sS)}, {self.keep + 1 + add}")
        a(f"s_cbranch_scc1 {l}")
        a(f"s_memtime {s(STAMP0 + 12, 2)}")
        a(f"s_memrealtime {s(STAMP0 + 14, 2)}")
        a("s_waitcnt lgkmcnt(0)")
        for k in range(8):
            a(f"s_mov_b32 {s(88 + k)}, {s(STAMP0 + 2 * k)}")
        a.label(l)

    def trace(self, reg):
        if not (self.diag and self.trc):
            return
        a = self.a
        a(f"s_memtime {s(STAMP0 + 12, 2)}")
        a("s_lshl_b32 s98, s97, 10")
        a("s_add_u32 s98, s98, s96")
        a(f"s_lshl_b32 {s(STAMP0 + 14)}, s99, 20")
        a(f"s_add_u32 s98, s98, {s(STAMP0 + 14)}")
        if self.trc == 2:
            a(f"s_memrealtime {s(STAMP0 + 14, 2)}")
        a(f"s_mov_b32 m0, {s(sS)}")
        a("s_waitcnt lgkmcnt(0)")
        if self.trc == 2:
            a(f"s_mov_b32 s98, {s(STAMP0 + 14)}")
        a(f"v_writelane_b32 {v(reg)}, {s(STAMP0 + 12)}, m0")
        a(f"v_writelane_b32 {v(reg + 1)}, s98, m0")

    def retry(self, poll_label, site=None):
        a, t = self.a, self.tail
        lr, lo = a.newlabel("retry"), a.newlabel("ok")
        a(f"s_cbranch_vccnz {lr}")
        a.label(lo)
        t.label(lr)
        if self.diag and site is not None:
            t(f"s_add_u32 {s(96 + site)}, {s(96 + site)}, 1")
        t(f"s_sub_u32 {s(sB)}, {s(sB)}, 1")
        t(f"s_cbranch_scc0 {poll_label}")
        t(f"s_mov_b32 {s(sB)}, 0")
        t(f"s_branch {lo}")

    def dump_stamps(self, n, vt=1, trc=None):
        if not self.diag:
            return
        a = self.a
        a("s_waitcnt vmcnt(0) lgkmcnt(0)")
        a(f"v_mov_b32 {v(vt)}, 0")
        for k in range(n):
            a(f"v_writelane_b32 {v(vt)}, {s(88 + k)}, {k}")
        a(f"v_writelane_b32 {v(vt)}, {s(sB)}, 15")
        for k in range(3):
            a(f"v_writelane_b32 {v(vt)}, {s(96 + k)}, {8 + k}")
        a(f"s_memtime {s(STAMP0, 2)}")
        a(f"s_memrealtime {s(STAMP0 + 2, 2)}")
        a("s_waitcnt lgkmcnt(0)")
        a(f"v_writelane_b32 {v(vt)}, {s(STAMP0)}, 11")
        a(f"v_writelane_b32 {v(vt)}, {s(STAMP0 + 2)}, 12")
        a(f"v_writelane_b32 {v(vt)}, s100, 13")
        a(f"v_writelane_b32 {v(vt)}, s99, 14")
        a(f"v_writelane_b32 {v(vt)}, s101, 16")
        a(f"s_lshl_b32 {s(sT0)}, {s(sX)}, 5")
        a(f"s_add_u32 {s(sT0)}, {s(sT0)}, {s(sT)}")
        a(f"s_lshl_b32 {s(sT0)}, {s(sT0)}, 3")
        a(f"s_add_u32 {s(sT0)}, {s(sT0)}, {s(sW)}")
        a(f"s_lshl_b32 {s(sT0)}, {s(sT0)}, 8")
        a(f"s_add_u32 {s(sT0)}, {s(sT0)}, {hex(WS_DIAG)}")
        a(f"v_mbcnt_lo_u32_b32 {v(vt + 1)}, -1, 0")
        a(f"v_mbcnt_hi_u32_b32 {v(vt + 1)}, -1, {v(vt + 1)}")
        a(f"v_lshlrev_b32 {v(vt + 1)}, 2, {v(vt + 1)}")
        a(f"buffer_store_dword {v(vt)}, {v(vt + 1)}, {s(R_WS, 4)}, {s(sT0)} offen")
        if trc is not None and self.trc:
            for k in range(2):
                a(f"s_add_u32 {s(sT0)}, {s(sT0)}, {MB}")
                a(f"buffer_store_dword {v(trc + k)}, {v(vt + 1)}, {s(R_WS, 4)}, {s(sT0)} offen")
        a("s_waitcnt vmcnt(0)")


def signal_ready(cx, vt):
    a = cx.a
    l = a.newlabel("rdy")
    a("s_barrier")
    a(f"s_cmp_lg_u32 {s(sW)}, 0")
    a(f"s_cbranch_scc1 {l}")
    a(f"s_lshl_b32 {s(sT0)}, {s(sX)}, 4")
    a(f"v_mov_b32 {v(vt)}, 1")
    a(f"v_mov_b32 {v(vt + 1)}, 8")
    a("s_mov_b64 exec, 1")
    a(f"buffer_atomic_add {v(vt)}, {v(vt + 1)}, {s(R_DBG, 4)}, {s(sT0)} offen")
    a("s_mov_b64 exec, -1")
    a.label(l)


DBG_GO = 252


def collect_ready(cx, vt, n_init):
    a = cx.a
    t0, t1, d, best, adr, n = 44, 46, 48, 50, 52, 53
    a(f"s_lshl_b32 {s(sT0)}, {s(sX)}, 8")
    a(f"s_or_b32 {s(sT0)}, {s(sT0)}, {s(sT)}")
    a(f"s_cmp_lg_u32 {s(sT0)}, 31")
    a("s_cbranch_scc1 L_col_skip")
    a(f"v_mov_b32 {v(vt)}, 0")
    a(f"v_mov_b32 {v(vt + 1)}, -1")
    a(f"ds_write2_b32 {v(vt)}, {v(vt + 1)}, {v(vt + 1)} offset1:1")
    a(f"s_mul_i32 {s(adr)}, {s(sW)}, {16384 + 768}")
    a(f"s_add_u32 {s(adr)}, {s(adr)}, {hex(WS_C)}")
    a(f"s_mov_b32 {s(best)}, -1")
    a(f"s_mov_b32 {s(best + 1)}, -1")
    a(f"s_mov_b32 {s(n)}, {cx.nprobe - 1}")
    a.label("L_near")
    for c in range(2):
        a(f"s_memtime {s(t0, 2)}")
        a("s_waitcnt lgkmcnt(0)")
        a(f"s_load_dword {s(d)}, {s(P_WS, 2)}, {s(adr)} glc")
        a("s_waitcnt lgkmcnt(0)")
        a(f"s_memtime {s(t1, 2)}")
        a("s_waitcnt lgkmcnt(0)")
        a(f"s_sub_u32 {s(d)}, {s(t1)}, {s(t0)}")
        a(f"s_min_u32 {s(best + c)}, {s(best + c)}, {s(d)}")
        a(f"s_xor_b32 {s(adr)}, {s(adr)}, 8192")
    a(f"s_sub_u32 {s(n)}, {s(n)}, 1")
    a("s_cbranch_scc0 L_near")
    a("s_barrier")
    for c in range(2):
        a(f"v_mov_b32 {v(vt + 1)}, {s(best + c)}")
        a(f"ds_min_u32 {v(vt)}, {v(vt + 1)} offset:{4 * c}")
    a("s_waitcnt lgkmcnt(0)")
    a("s_barrier")
    a(f"s_cmp_lg_u32 {s(sW)}, 0")
    a("s_cbranch_scc1 L_col_skip")
    a(f"ds_read_b64 {v(vt + 2, 2)}, {v(vt)}")
    a(f"v_lshlrev_b32 {v(vt)}, 4, v0")
    a("s_mov_b64 exec, 0xff")
    a.label("L_col")
    a(f"v_mov_b32 {v(vt + 1)}, 0")
    a(f"buffer_atomic_add {v(vt + 1)}, {v(vt)}, {s(R_DBG, 4)}, 0 offen offset:8 sc0")
    a("s_waitcnt vmcnt(0) lgkmcnt(0)")
    a(f"v_cmp_gt_u32 vcc, {n_init}, {v(vt + 1)}")
    cx.retry("L_cols")
    cx.tail.label("L_cols")
    cx.tail("s_sleep 8")
    cx.tail("s_branch L_col")
    a("s_mov_b64 exec, 1")
    a(f"v_cmp_lt_u32 vcc, {v(vt + 3)}, {v(vt + 2)}")
    if cx.diag:
        a(f"buffer_store_dwordx2 {v(vt + 2, 2)}, {v(vt)}, {s(R_DBG, 4)}, 0 offen offset:240 sc1")
    a.nop(2)
    a(f"v_cndmask_b32 {v(vt + 1)}, 1, 2, vcc")
    a(f"buffer_store_dword {v(vt + 1)}, {v(vt)}, {s(R_DBG, 4)}, 0 offen offset:{DBG_GO} sc1")
    a("s_mov_b64 exec, -1")
    a.label("L_col_skip")


def wait_ready(cx, vt, n_init, wave, first_v=False, early=False, keep=None, nv=1):
    a = cx.a
    skip, lp = a.newlabel("nrdy"), a.newlabel("wrdy")
    a(f"s_cmp_lg_u32 {s(sW)}, {wave}")
    a(f"s_cbranch_scc1 {skip}")
    a(f"v_mov_b32 {v(vt)}, 0")
    if early:
        a("s_sleep 64")
    a.label(lp)
    a(f"buffer_load_dword {v(vt + 1)}, {v(vt)}, {s(R_DBG, 4)}, 0 offen offset:{DBG_GO} sc1")
    a("s_waitcnt vmcnt(0)")
    a(f"v_cmp_gt_u32 vcc, 1, {v(vt + 1)}")
    cx.retry(lp + "s")
    cx.tail.label(lp + "s")
    cx.tail("s_sleep 4")
    cx.tail(f"s_branch {lp}")
    if keep is not None:
        a(f"v_mov_b32 {v(vt)}, {keep}")
        a(f"ds_write_b32 {v(vt)}, {v(vt + 1)}")
        a("s_waitcnt lgkmcnt(0)")
    if first_v:
        a(f"s_lshl_b32 {s(sT0)}, {s(sX)}, {RING_SH}")
        a(f"s_add_u32 {s(sT0)}, {s(sT0)}, {hex(WS_RING + RING_FV)}")
        a(f"v_min_u32 {v(vt)}, 47, v0")
        a(f"v_lshl_add_u32 {v(vt)}, {v(vt)}, 2, {s(sT0)}")
        a.label(lp + "v")
        a(f"buffer_load_dword {v(vt + 1)}, {v(vt)}, {s(R_WS, 4)}, 0 offen sc1")
        a("s_waitcnt vmcnt(0)")
        a(f"v_cmp_gt_u32 vcc, {nv}, {v(vt + 1)}")
        cx.retry(lp + "w")
        cx.tail.label(lp + "w")
        cx.tail(f"s_sleep {first_v}")
        cx.tail(f"s_branch {lp}v")
    a.label(skip)


def ring_next(a, reg, base, stride, depth):
    a(f"s_add_u32 {s(reg)}, {s(reg)}, {stride}")
    a(f"s_cmp_ge_u32 {s(reg)}, {hex(base + depth * stride)}")
    a(f"s_cselect_b32 vcc_lo, {depth * stride}, 0")
    a(f"s_sub_u32 {s(reg)}, {s(reg)}, vcc_lo")


def sub_srd(a, r, nbytes):
    a(f"s_mov_b32 {s(r + 2)}, {hex(nbytes)}")
    a(f"s_mov_b32 {s(r + 3)}, 0x20000")


def set_base(a, r, off):
    a(f"s_add_u32 {s(r)}, {s(R_WS)}, {s(off)}")
    a(f"s_addc_u32 {s(r + 1)}, {s(R_WS + 1)}, 0")


def slots_init(a, cur, oth, reg, ring):
    sub_srd(a, cur, SLOT)
    sub_srd(a, oth, SLOT)
    a(f"s_xor_b32 {s(reg)}, {s(ring)}, {SLOT}")
    slots_flip(a, cur, oth, reg)


def slots_flip(a, cur, oth, reg):
    set_base(a, oth, reg)
    a(f"s_xor_b32 {s(reg)}, {s(reg)}, {SLOT}")
    set_base(a, cur, reg)


def permute_addr(a, vaddr, vt):
    a(f"v_bfe_u32 {v(vt)}, v0, 1, 2")
    a(f"v_and_b32 {v(vaddr)}, 49, v0")
    a(f"v_lshl_add_u32 {v(vaddr)}, {v(vt)}, 2, {v(vaddr)}")
    a(f"v_bfe_u32 {v(vt)}, v0, 3, 1")
    a(f"v_lshl_add_u32 {v(vaddr)}, {v(vt)}, 1, {v(vaddr)}")
    a(f"v_lshlrev_b32 {v(vaddr)}, 2, {v(vaddr)}")


def permute_columns(a, first, n, vaddr, vt=None):
    if vt is not None:
        permute_addr(a, vaddr, vt)
    for i in range(n):
        a(f"ds_bpermute_b32 {v(first + i)}, {v(vaddr)}, {v(first + i)}")
        if i % 8 == 7:
            a("s_waitcnt lgkmcnt(6)")
    a("s_waitcnt lgkmcnt(0)")


def help_fetch(cx, vt):
    a = cx.a
    r0 = cx.hrow
    srd(a, R_0, P_WQ, 640 * 6144 * 2)
    srd(a, R_1, P_WK, 640 * 6144 * 2)
    srd(a, R_2, P_WV, 640 * 6144 * 2)
    a(f"v_min_u32 {v(vt)}, 59, v0")
    a(f"v_mul_u32_u24 {v(vt + 1)}, 43, {v(vt)}")
    a(f"v_lshrrev_b32 {v(vt + 1)}, 9, {v(vt + 1)}")
    a(f"v_mul_u32_u24 {v(vt + 1)}, {12288 - 12 * 128}, {v(vt + 1)}")
    a(f"v_lshl_add_u32 {v(vt)}, {v(vt)}, 7, {v(vt + 1)}")
    a(f"s_sub_u32 s61, {s(sT)}, {N_P + N_O}")
    a(f"s_mul_i32 s62, {s(sW)}, 10")
    a("s_add_u32 s61, s61, s62")
    a(f"s_mul_i32 s61, s61, {5 * 12288}")
    a(f"s_mul_i32 s62, {s(sX)}, 1536")
    a("s_add_u32 s61, s61, s62")
    a(f"s_add_u32 s61, s61, {r0 * 12288}")
    for M in range(3):
        a(f"buffer_load_dword {v(vt + 1)}, {v(vt)}, {s(R_0 + 4 * M, 4)}, s61 offen{' nt' if cx.hnt else ''}")
```

```python
import math
from common import *
from role_o import f32
from role_ax import pair_reduce, flag_wait, lane0_addr
import role_ox

sC, sH, sTMP, sM, sBUF, sXO, sL, sPH, sN = 62, 63, 64, 65, 66, 67, 68, 69, 70
XBUF = 40960
L_IMG = 3 * XBUF
RS = 168
L_KV = L_IMG + 64 * RS
GB = 45056
WS_FAA = WS_FC + 8192


def role_a(cx, n_init):
    a = cx.a
    vXG, vXA0, vXA1, vIW, vIV, vKA, vKB, vPH4, vPH1, vFL, vFR = range(1, 12)
    T0, T1, T2, T3, T4, T5 = 12, 13, 14, 15, 16, 17
    vG, vC = 18, 19
    F = 20
    ACC = 44
    KV = 52
    WPA, WPB = 56, 60
    B = 64
    PA, PB = 68, 72
    EM = 76
    PH = 84
    W0, W1 = 96, 176
    sLOG = 52
    a.label("L_role_a")
    a(f"s_sub_u32 {s(sC)}, {s(sT)}, {N_P + N_O + N_AX + N_OX}")
    a(f"s_lshl_b32 {s(sH)}, {s(sX)}, 2")
    a(f"s_add_u32 {s(sH)}, {s(sH)}, {s(sC)}")
    a(f"v_lshrrev_b32 {v(vG)}, 4, v0")
    a(f"v_and_b32 {v(vC)}, 15, v0")
    a(f"s_lshl_b32 {s(sM)}, {s(sH)}, 7")
    a(f"s_add_u32 {s(sM)}, {s(sM)}, {hex(WS_FAA)}")
    a(f"s_cmp_eq_u32 {s(sW)}, 0")
    a(f"s_cselect_b32 {s(sM)}, {s(sM)}, {hex(OOB)}")
    lane0_addr(a, vFL, sM, T0, T1)
    a(f"v_mov_b32 {v(T0)}, 0")
    a(f"buffer_store_dword {v(T0)}, {v(vFL)}, {s(R_WS, 4)}, 0 offen sc1")
    a(f"v_lshrrev_b32 {v(T1)}, 1, v0")
    a(f"v_lshlrev_b32 {v(T1)}, 7, {v(T1)}")
    a(f"v_add_u32 {v(vFR)}, {hex(WS_FAA)}, {v(T1)}")
    role_ox.reducer_init(cx, sC, T2)
    a("s_waitcnt vmcnt(0)")
    signal_ready(cx, T0)
    help_fetch(cx, 250)
    collect_ready(cx, T0, n_init)
    srd(a, R_0, P_AWQKV, 640 * 1920 * 2)
    srd(a, R_1, P_AX, 2048 * 640 * 2)
    srd(a, R_2, P_AWPHI, 32 * 400 * 2)
    wait_ready(cx, T0, n_init, 0, 16 if cx.aw else False, True, nv=cx.aw)
    a("s_barrier")

    if cx.xp & 1:
        a("s_branch L_a_done")
    cx.stamp(0)
    a(f"v_mov_b32 {v(T0)}, 0")
    for lim, add in ((4, 2520), (7, 1216), (12, 2480), (14, OOB)):
        a(f"v_cmp_lt_u32 vcc, {lim}, {v(vC)}")
        a(f"v_mov_b32 {v(T1)}, {hex(add)}")
        a.nop(1)
        a(f"v_cndmask_b32 {v(T0)}, {v(T0)}, {v(T1)}, vcc")
    a(f"v_lshl_add_u32 {v(T0)}, {v(vC)}, 3, {v(T0)}")
    a(f"s_lshl_b32 {s(sM)}, {s(sW)}, 2")
    a(f"v_add_u32 {v(T1)}, {s(sM)}, {v(vG)}")
    a(f"v_mul_u32_u24 {v(T1)}, 3840, {v(T1)}")
    a(f"s_mul_i32 {s(sM)}, {s(sH)}, 40")
    a(f"v_add3_u32 {v(T0)}, {v(T0)}, {v(T1)}, {s(sM)}")
    for z in range(20):
        a(f"s_mov_b32 {s(sM)}, {z * 32 * 3840}")
        a(f"buffer_load_dwordx2 {v(W0 + 2 * z, 2)}, {v(T0)}, {s(R_0, 4)}, {s(sM)} offen")
    a(f"s_mul_i32 {s(sM)}, {s(sH)}, 800")
    a(f"v_mov_b32 {v(T5)}, {hex(OOB)}")
    a(f"v_lshlrev_b32 {v(T1)}, 1, {v(vC)}")
    a(f"v_lshrrev_b32 {v(T2)}, 1, {v(vC)}")
    a(f"v_add_u32 {v(T2)}, 32, {v(T2)}")
    a(f"v_and_b32 {v(T3)}, 3, v0")
    a(f"v_cmp_eq_u32 vcc, 0, {v(T3)}")
    a(f"v_mul_u32_u24 {v(T4)}, 160, {v(vG)}")
    a.nop(1)
    a(f"v_cndmask_b32 {v(T2)}, {v(T5)}, {v(T2)}, vcc")
    a(f"v_cmp_eq_u32 vcc, 0, {v(vG)}")
    a(f"v_mov_b32 {v(T3)}, 640")
    a.nop(1)
    a(f"v_cndmask_b32 {v(T5)}, {v(T5)}, {v(T3)}, vcc")
    for reg, f in ((WPA, T1), (WPB, T2)):
        for half, d in ((0, T4), (1, T5)):
            a(f"v_add_u32 {v(T3)}, {v(f)}, {v(d)}")
            for i in range(4):
                dst = reg + 2 * half + (i >> 1) + (8 if i & 1 else 0)
                a(f"buffer_load_ushort {v(dst)}, {v(T3)}, {s(R_2, 4)}, {s(sM)} offen offset:{40 * i}")
    a(f"s_lshl_b32 {s(sM)}, {s(sW)}, 9")
    a(f"v_lshl_add_u32 {v(T0)}, v0, 3, {s(sM)}")
    for z in range(20):
        if z == 10:
            a(f"v_add_u32 {v(T0)}, 40960, {v(T0)}")
        a(f"s_waitcnt vmcnt({min(63, 35 - z)})")
        a(f"ds_write_b64 {v(T0)}, {v(W0 + 2 * z, 2)} offset:{(z % 10) * 4096}")
        if z % 8 == 7:
            a("s_waitcnt lgkmcnt(0)")
    for i in range(4):
        a(f"v_mov_b32 {v(F + i)}, 0")
    a(f"s_lshl_b32 {s(sM)}, {s(sW)}, 10")
    a(f"s_add_u32 {s(sM)}, {s(sM)}, {L_IMG}")
    a(f"v_lshl_add_u32 {v(T0)}, v0, 4, {s(sM)}")
    a(f"ds_write_b128 {v(T0)}, {v(F, 4)}")
    a(f"ds_write_b128 {v(T0)}, {v(F, 4)} offset:8192")
    a("s_waitcnt vmcnt(0) lgkmcnt(0)")
    a("s_barrier")
    for i in range(8):
        a(f"v_lshl_or_b32 {v(WPA + i)}, {v(WPA + 8 + i)}, 16, {v(WPA + i)}")
    a(f"v_mul_u32_u24 {v(T0)}, {RS}, v0")
    a(f"v_add_u32 {v(T0)}, {L_IMG}, {v(T0)}")
    a(f"v_mov_b32 {v(T1)}, 0x3f80")
    a(f"ds_write_b32 {v(T0)}, {v(T1)} offset:{17 * 8}")
    a(f"v_bfe_u32 {v(T4)}, v0, 2, 2")
    a(f"v_and_b32 {v(T5)}, 3, v0")
    a(f"v_lshlrev_b32 {v(T0)}, 10, {v(vG)}")
    a(f"v_lshl_add_u32 {v(T0)}, {v(T4)}, 7, {v(T0)}")
    a(f"v_lshl_add_u32 {v(T0)}, {v(T5)}, 3, {v(T0)}")
    a(f"s_and_b32 {s(sM)}, {s(sW)}, 1")
    a(f"s_lshl_b32 {s(sM)}, {s(sM)}, 6")
    a(f"v_add_u32 {v(T0)}, {s(sM)}, {v(T0)}")
    for t in range(20):
        if t == 10:
            a(f"v_add_u32 {v(T0)}, 40960, {v(T0)}")
        for ti, reg in enumerate((W0, W1)):
            for u in range(2):
                a(f"ds_read_b64_tr_b16 {v(reg + 4 * t + 2 * u, 2)}, {v(T0)} offset:{(t % 10) * 4096 + u * 512 + 32 * ti}")
        if t % 2 == 1:
            a("s_waitcnt lgkmcnt(4)")
    a(f"v_lshrrev_b32 {v(T0)}, 3, v0")
    a(f"s_lshl_b32 {s(sM)}, {s(sW)}, 3")
    a(f"v_add_u32 {v(T0)}, {s(sM)}, {v(T0)}")
    a(f"v_bfe_u32 {v(T1)}, {v(T0)}, 1, 3")
    a(f"v_and_b32 {v(T2)}, 7, v0")
    a(f"v_xor_b32 {v(T1)}, {v(T1)}, {v(T2)}")
    a(f"v_mul_u32_u24 {v(T0)}, 1280, {v(T0)}")
    a(f"v_lshl_add_u32 {v(vXG)}, {v(T1)}, 4, {v(T0)}")
    a(f"v_lshrrev_b32 {v(T0)}, 1, {v(vC)}")
    a(f"v_xor_b32 {v(T0)}, {v(T0)}, {v(vG)}")
    a(f"v_lshlrev_b32 {v(T0)}, 4, {v(T0)}")
    a(f"v_lshl_add_u32 {v(T0)}, {v(T2)}, 7, {v(T0)}")
    a(f"v_bfe_u32 {v(T1)}, v0, 3, 1")
    a(f"s_and_b32 {s(sM)}, {s(sW)}, 6")
    a(f"v_add_u32 {v(T1)}, {s(sM)}, {v(T1)}")
    a(f"v_mul_u32_u24 {v(T1)}, 5120, {v(T1)}")
    a(f"v_add_u32 {v(vXA0)}, {v(T0)}, {v(T1)}")
    a(f"v_xor_b32 {v(vXA1)}, 64, {v(vXA0)}")
    a(f"s_lshl_b32 {s(sM)}, {s(sM)}, 3")
    a(f"v_add_u32 {v(T0)}, {s(sM)}, {v(vC)}")
    a(f"v_mul_u32_u24 {v(T0)}, {RS}, {v(T0)}")
    a(f"v_add_u32 {v(T0)}, {L_IMG}, {v(T0)}")
    a(f"v_lshl_add_u32 {v(vIW)}, {v(vG)}, 3, {v(T0)}")
    a(f"s_bitcmp1_b32 {s(sW)}, 0")
    a(f"s_cselect_b32 {s(sM)}, {hex(19 | 15 << 8 | 16 << 16 | 19 << 24)}, {hex(0)}")
    a(f"s_cselect_b32 {s(sM)}, {s(sM)}, {hex(18 | 12 << 8 | 13 << 16 | 14 << 24)}")
    a(f"v_lshlrev_b32 {v(T1)}, 3, {v(vG)}")
    a(f"v_bfe_u32 {v(T1)}, {s(sM)}, {v(T1)}, 8")
    a(f"v_lshl_add_u32 {v(vIV)}, {v(T1)}, 3, {v(T0)}")
    a(f"v_lshl_add_u32 {v(T0)}, {v(vG)}, 3, {v(T4)}")
    a(f"v_mul_u32_u24 {v(T0)}, {RS}, {v(T0)}")
    a(f"v_lshl_add_u32 {v(T0)}, {v(T5)}, 3, {v(T0)}")
    a(f"s_cmp_ge_u32 {s(sW)}, 3")
    a(f"s_cselect_b32 {s(sTMP)}, 1, 0")
    a(f"s_mul_i32 {s(sM)}, {s(sTMP)}, 3")
    a(f"s_sub_u32 {s(sM)}, {s(sW)}, {s(sM)}")
    a(f"s_min_u32 {s(sM)}, {s(sM)}, 2")
    a(f"s_lshl_b32 {s(sM)}, {s(sM)}, 5")
    a(f"s_add_u32 {s(sM)}, {s(sM)}, {L_IMG}")
    a(f"v_add_u32 {v(vKA)}, {s(sM)}, {v(T0)}")
    a(f"s_lshl_b32 {s(sTMP)}, {s(sTMP)}, 5")
    a(f"s_add_u32 {s(sTMP)}, {s(sTMP)}, {L_IMG + 96}")
    a(f"v_add_u32 {v(vKB)}, {s(sTMP)}, {v(T0)}")
    a(f"s_mul_i32 {s(sM)}, {s(sH)}, {128 * 1280}")
    a(f"s_add_u32 {s(sM)}, {s(sM)}, {hex(WS_PHI)}")
    a(f"v_lshl_add_u32 {v(vPH4)}, v0, 4, {s(sM)}")
    a(f"v_lshl_add_u32 {v(vPH1)}, v0, 2, {s(sM)}")
    for i in range(4):
        a(f"v_mov_b32 {v(KV + i)}, 0")
    a(f"v_mov_b32 {v(PH + 5)}, 0")
    a(f"s_mov_b32 {s(sLOG)}, {f32(math.log2(math.e))}")
    a(f"s_mul_i32 {s(sL)}, {s(sW)}, 5120")
    a(f"s_mul_i32 {s(sXO)}, {s(sH)}, 81920")
    a(f"s_mov_b32 {s(sBUF)}, 0")
    a(f"s_mov_b32 {s(sS)}, {s(sH)}")
    a(f"s_mov_b32 {s(sN)}, 0")
    a(f"s_mov_b32 {s(sPH)}, 0")
    a("s_waitcnt lgkmcnt(0)")
    a("s_barrier")

    def xdma(half):
        a(f"s_add_u32 m0, {s(sL)}, {s(sBUF)}")
        a(f"s_add_u32 {s(sTMP)}, {s(sXO)}, {640 * half}")
        for k in range(5):
            if k:
                a("s_add_u32 m0, m0, 896")
                a("s_nop 0")
            a(f"buffer_load_dwordx4 {v(vXG)}, {s(R_1, 4)}, {s(sTMP)} offen offset:{128 * k} lds")
        ring_next(a, sBUF, 0, XBUF, 3)
        if half:
            ring_next(a, sXO, 0, 81920, 32)

    def kv_step():
        for ks in range(2):
            for reg, ad in ((F + 8 * ks, vKA), (F + 8 * ks + 4, vKB)):
                for u in range(2):
                    a(f"ds_read_b64_tr_b16 {v(reg + 2 * u, 2)}, {v(ad)} offset:{(32 * ks + 4 * u) * RS}")
        for ks in range(2):
            a(f"s_waitcnt lgkmcnt({4 - 4 * ks})")
            a(f"v_mfma_f32_16x16x32_bf16 {v(KV, 4)}, {v(F + 8 * ks, 4)}, {v(F + 8 * ks + 4, 4)}, {v(KV, 4)}")

    cx.stamp(1)
    xdma(0)
    xdma(1)
    a.label("L_a_loop")
    for half in range(2):
        a("s_waitcnt vmcnt(5) lgkmcnt(0)")
        a("s_barrier")
        xdma(half)
        if half == 0:
            kv_step()
        a(f"v_add_u32 {v(T0)}, {s(sPH)}, {v(vXA0)}")
        a(f"v_add_u32 {v(T1)}, {s(sPH)}, {v(vXA1)}")
        ring_next(a, sPH, 0, XBUF, 3)
        D = 5

        def rd(k):
            a(f"ds_read_b128 {v(F + 4 * (k % 6), 4)}, {v(T0 + (k & 1))} offset:{(k >> 1) * 1024}")
        for k in range(D):
            rd(k)
        for k in range(10):
            t = 10 * half + k
            a(f"s_waitcnt lgkmcnt({min(D - 1, 9 - k)})")
            for ti, reg in enumerate((W0, W1)):
                c = "0" if t == 0 else v(ACC + 4 * ti, 4)
                a(f"v_mfma_f32_16x16x32_bf16 {v(ACC + 4 * ti, 4)}, {v(reg + 4 * t, 4)}, {v(F + 4 * (k % 6), 4)}, {c}")
                if ti == 0 and k + D < 10:
                    rd(k + D)
    a.nop(7)
    for i in range(4):
        a(f"v_cvt_pk_bf16_f32 {v(B + i)}, {v(ACC + 2 * i)}, {v(ACC + 2 * i + 1)}")
    a(f"ds_write_b64 {v(vIV)}, {v(B + 2, 2)}")
    a.nop(1)
    a(f"v_mfma_f32_16x16x32_bf16 {v(PA, 4)}, {v(WPA, 4)}, {v(B, 4)}, 0")
    a(f"v_mfma_f32_16x16x32_bf16 {v(PB, 4)}, {v(WPB, 4)}, {v(B, 4)}, 0")
    a(f"s_lshl_b32 {s(sM)}, {s(sS)}, 2")
    a(f"s_lshr_b32 {s(sTMP)}, {s(sW)}, 1")
    a(f"s_add_u32 {s(sM)}, {s(sM)}, {s(sTMP)}")
    a(f"s_mul_i32 {s(sM)}, {s(sM)}, 1280")
    a(f"s_add_u32 {s(sS)}, {s(sS)}, 1")
    a(f"s_and_b32 {s(sS)}, {s(sS)}, 31")
    a(f"s_add_u32 {s(sN)}, {s(sN)}, 1")
    a(f"v_cvt_pk_bf16_f32 {v(T0)}, {v(PA)}, {v(PA + 1)}")
    a(f"v_cvt_pk_bf16_f32 {v(T1)}, {v(PA + 2)}, {v(PA + 3)}")
    a(f"v_cvt_pk_bf16_f32 {v(PB)}, 0, {v(PB)}")
    for i in range(2):
        a(f"v_lshlrev_b32 {v(PA + 2 * i)}, 16, {v(T0 + i)}")
        a(f"v_and_b32 {v(PA + 2 * i + 1)}, 0xffff0000, {v(T0 + i)}")
    P = [PA + i for i in range(5)]
    X, Y = T0, T1
    a(f"v_max3_f32 {v(X)}, {v(P[0])}, {v(P[1])}, {v(P[2])}")
    a(f"v_max3_f32 {v(X)}, {v(X)}, {v(P[3])}, {v(P[4])}")
    a(f"v_max3_f32 {v(Y)}, -{v(P[0])}, -{v(P[1])}, -{v(P[2])}")
    a(f"v_max3_f32 {v(Y)}, {v(Y)}, -{v(P[3])}, -{v(P[4])}")
    pair_reduce(a, "v_max_f32", X, Y, T2)
    for i in range(5):
        a(f"v_sub_f32 {v(EM + i)}, -{v(P[i])}, {v(Y)}")
        a(f"v_sub_f32 {v(P[i])}, {v(P[i])}, {v(X)}")
    E = P + [EM + i for i in range(5)]
    for r in E:
        a(f"v_mul_f32 {v(r)}, {s(sLOG)}, {v(r)}")
    for r in E:
        a(f"v_exp_f32 {v(r)}, {v(r)}")
    for regs, m in ((E[:5], X), (E[5:], Y)):
        a(f"v_add_f32 {v(m)}, {v(regs[0])}, {v(regs[1])}")
        for r in regs[2:]:
            a(f"v_add_f32 {v(m)}, {v(m)}, {v(r)}")
    pair_reduce(a, "v_add_f32", X, Y, T2)
    a(f"v_rcp_f32 {v(X)}, {v(X)}")
    a(f"v_rcp_f32 {v(Y)}, {v(Y)}")
    for regs, m in ((E[:5], X), (E[5:], Y)):
        for r in regs:
            a(f"v_mul_f32 {v(r)}, {v(r)}, {v(m)}")
    for i in range(2):
        a(f"v_cvt_pk_bf16_f32 {v(PH + i)}, {v(PA + 2 * i)}, {v(PA + 2 * i + 1)}")
        a(f"v_cvt_pk_bf16_f32 {v(PH + 2 + i)}, {v(EM + 2 * i)}, {v(EM + 2 * i + 1)}")
    a(f"v_cvt_pk_bf16_f32 {v(PH + 4)}, {v(PA + 4)}, {v(EM + 4)}")
    a(f"s_bitcmp1_b32 {s(sW)}, 0")
    a("s_cbranch_scc1 L_a_k")
    a(f"buffer_store_dwordx4 {v(PH, 4)}, {v(vPH4)}, {s(R_WS, 4)}, {s(sM)} offen")
    a(f"buffer_store_dword {v(PH + 4)}, {v(vPH1)}, {s(R_WS, 4)}, {s(sM)} offen offset:1024")
    a("s_branch L_a_j")
    a.label("L_a_k")
    for i in range(3):
        a(f"ds_write_b64 {v(vIW)}, {v(PH + 2 * i, 2)} offset:{32 * i}")
    a.label("L_a_j")
    a(f"s_cmp_lt_u32 {s(sN)}, 32")
    a("s_cbranch_scc1 L_a_loop")
    a("s_waitcnt vmcnt(0) lgkmcnt(0)")
    a("s_barrier")
    kv_step()

    cx.stamp(2)
    AM, AD, AE = 20, 26, 32
    BQ = 96
    OM, OD, OE = 128, 144, 160
    PK = 164
    a(f"s_min_u32 {s(sM)}, {s(sW)}, 5")
    a(f"s_lshl_b32 {s(sM)}, {s(sM)}, 9")
    a(f"s_add_u32 {s(sM)}, {s(sM)}, {L_KV}")
    a(f"v_lshl_add_u32 {v(T2)}, v0, 3, {s(sM)}")
    a.nop(4)
    a(f"v_cvt_pk_bf16_f32 {v(T0)}, {v(KV)}, {v(KV + 1)}")
    a(f"v_cvt_pk_bf16_f32 {v(T1)}, {v(KV + 2)}, {v(KV + 3)}")
    a(f"ds_write_b64 {v(T2)}, {v(T0, 2)}")
    a(f"v_lshlrev_b32 {v(T3)}, 3, v0")
    a(f"v_add_u32 {v(T3)}, {L_KV}, {v(T3)}")
    a(f"v_lshlrev_b32 {v(T4)}, 7, {v(vG)}")
    a(f"v_add_u32 {v(T4)}, {L_KV + 1536}, {v(T4)}")
    a(f"v_and_b32 {v(T5)}, 3, v0")
    a(f"v_lshl_add_u32 {v(T5)}, {v(T5)}, 3, {v(T4)}")
    a("s_waitcnt lgkmcnt(0)")
    a("s_barrier")
    for ft in range(3):
        a(f"ds_read_b64 {v(AM + 2 * ft, 2)}, {v(T3)} offset:{512 * ft}")
        a(f"ds_read_b64 {v(AD + 2 * ft, 2)}, {v(T4)} offset:{512 * ft + 32}")
        a(f"ds_read_b64 {v(BQ + 2 * ft, 2)}, {v(T5)} offset:{512 * ft}")
    a(f"v_lshrrev_b32 {v(T0)}, 2, {v(vC)}")
    a("s_waitcnt lgkmcnt(0)")
    for mu in range(4):
        a(f"v_cmp_eq_u32 vcc, {mu}, {v(T0)}")
        a.nop(2)
        for i in range(6):
            a(f"v_cndmask_b32 {v(AE + 6 * mu + i)}, 0, {v(BQ + i)}, vcc")
    for mu in range(4):
        for i in range(5, 8):
            a(f"v_mov_b32 {v(BQ + 8 * mu + i)}, 0")
    for mu in range(1, 4):
        a(f"v_cmp_eq_u32 {s(40 + 2 * mu, 2)}, {mu}, {v(vG)}")
    a(f"v_lshlrev_b32 {v(T3)}, 4, v0")
    a(f"v_lshlrev_b32 {v(T4)}, 3, v0")
    a(f"s_mul_i32 {s(sPH)}, {s(sW)}, 5120")
    a(f"s_lshl_b32 {s(sXO)}, {s(sW)}, 5")
    a(f"s_add_u32 {s(sXO)}, {s(sXO)}, {s(sH)}")
    a(f"s_mul_i32 {s(sXO)}, {s(sXO)}, 2560")
    a(f"s_add_u32 {s(sXO)}, {s(sXO)}, {hex(WS_OA)}")
    a(f"s_mov_b32 {s(sN)}, 0")
    a.label("L_a_p2")
    for mu in range(4):
        if mu % 2 == 0:
            a(f"s_add_u32 {s(sTMP)}, {s(sPH)}, {1280 * mu}")
        o = 1280 * (mu & 1)
        a(f"buffer_load_dwordx4 {v(BQ + 8 * mu, 4)}, {v(vPH4)}, {s(R_WS, 4)}, {s(sTMP)} offen offset:{o} sc1")
        a(f"buffer_load_dword {v(BQ + 8 * mu + 4)}, {v(vPH1)}, {s(R_WS, 4)}, {s(sTMP)} offen offset:{o + 1024} sc1")
    a(f"s_add_u32 {s(sPH)}, {s(sPH)}, {8 * 5120}")
    for mu in range(4):
        a(f"s_waitcnt vmcnt({6 - 2 * mu})")
        b = BQ + 8 * mu
        for acc, A, first in ((OD + 4 * mu, AD, True), (OM + 4 * mu, AM, True), (OE, AE + 6 * mu, mu == 0)):
            a(f"v_mfma_f32_16x16x32_bf16 {v(acc, 4)}, {v(A, 4)}, {v(b, 4)}, {'0' if first else v(acc, 4)}")
            a(f"v_mfma_f32_16x16x32_bf16 {v(acc, 4)}, {v(A + 4, 4)}, {v(b + 4, 4)}, {v(acc, 4)}")
    a.nop(2)
    for mu in range(4):
        a(f"v_add_f32 {v(OD + 4 * mu)}, {f32(1e-6)}, {v(OD + 4 * mu)}")
    for mu in range(4):
        a(f"v_rcp_f32 {v(OD + 4 * mu)}, {v(OD + 4 * mu)}")
    for mu in range(4):
        for i in range(4):
            a(f"v_mul_f32 {v(OM + 4 * mu + i)}, {v(OM + 4 * mu + i)}, {v(OD + 4 * mu)}")
        for i in range(2):
            a(f"v_cvt_pk_bf16_f32 {v(PK + 2 * mu + i)}, {v(OM + 4 * mu + 2 * i)}, {v(OM + 4 * mu + 2 * i + 1)}")
    for mu in range(1, 4):
        a(f"v_cndmask_b32 {v(OD)}, {v(OD)}, {v(OD + 4 * mu)}, {s(40 + 2 * mu, 2)}")
    for i in range(4):
        a(f"v_mul_f32 {v(OE + i)}, {v(OE + i)}, {v(OD)}")
    for i in range(2):
        a(f"v_cvt_pk_bf16_f32 {v(PK + 8 + i)}, {v(OE + 2 * i)}, {v(OE + 2 * i + 1)}")
    a(f"buffer_store_dwordx4 {v(PK, 4)}, {v(T3)}, {s(R_WS, 4)}, {s(sXO)} offen sc1")
    a(f"buffer_store_dwordx4 {v(PK + 4, 4)}, {v(T3)}, {s(R_WS, 4)}, {s(sXO)} offen offset:1024 sc1")
    a(f"buffer_store_dwordx2 {v(PK + 8, 2)}, {v(T4)}, {s(R_WS, 4)}, {s(sXO)} offen offset:2048 sc1")
    a(f"s_add_u32 {s(sXO)}, {s(sXO)}, {8 * 32 * 2560}")
    a(f"s_add_u32 {s(sN)}, {s(sN)}, 1")
    a(f"s_cmp_lt_u32 {s(sN)}, 4")
    a("s_cbranch_scc1 L_a_p2")
    a("s_waitcnt vmcnt(0)")
    a("s_barrier")
    a(f"v_mov_b32 {v(T0)}, 1")
    a(f"buffer_store_dword {v(T0)}, {v(vFL)}, {s(R_WS, 4)}, 0 offen sc1")

    cx.stamp(3)
    vWM, vWE, vOM, vOE, vBM, vBE, vOUT = 1, 2, 3, 4, 5, 6, 7
    vWT = 20
    WF, BF, AC = 28, 48, 64
    srd(a, R_0, P_AWO, 640 * 640 * 2)
    srd(a, R_1, P_OUT, 2048 * 1280 * 2)
    a(f"s_and_b32 {s(sL)}, {s(sW)}, 3")
    a(f"v_bfe_u32 {v(T0)}, v0, 3, 2")
    a(f"v_lshrrev_b32 {v(T1)}, 5, v0")
    a(f"v_mad_u32_u24 {v(T2)}, {v(T1)}, 20, {v(T0)}")
    a(f"v_mul_u32_u24 {v(T2)}, 1280, {v(T2)}")
    a(f"v_and_b32 {v(T0)}, 2, {v(T0)}")
    a(f"s_and_b32 {s(sM)}, {s(sW)}, 1")
    a(f"s_lshl_b32 {s(sM)}, {s(sM)}, 2")
    a(f"v_or_b32 {v(T0)}, {s(sM)}, {v(T0)}")
    a(f"v_and_b32 {v(T3)}, 7, v0")
    a(f"v_xor_b32 {v(T0)}, {v(T0)}, {v(T3)}")
    a(f"v_lshl_add_u32 {v(T2)}, {v(T0)}, 4, {v(T2)}")
    a(f"s_lshr_b32 {s(sN)}, {s(sW)}, 2")
    a(f"s_mul_i32 {s(sM)}, {s(sN)}, 640")
    a(f"s_mul_i32 {s(sTMP)}, {s(sL)}, {4 * 1280}")
    a(f"s_add_u32 {s(sTMP)}, {s(sTMP)}, {s(sM)}")
    a(f"v_add_u32 {v(vWM)}, {s(sTMP)}, {v(T2)}")
    a(f"s_mul_i32 {s(sTMP)}, {s(sL)}, {40 * 1280}")
    a(f"s_add_u32 {s(sTMP)}, {s(sTMP)}, {s(sM)}")
    a(f"s_add_u32 {s(sTMP)}, {s(sTMP)}, {16 * 1280}")
    a(f"v_add_u32 {v(vWE)}, {s(sTMP)}, {v(T2)}")
    a(f"s_mul_i32 {s(sXO)}, {s(sH)}, {32 * 2560}")
    a(f"s_add_u32 {s(sXO)}, {s(sXO)}, {hex(WS_OA)}")
    a(f"s_lshr_b32 {s(sM)}, {s(sL)}, 1")
    a(f"s_mul_i32 {s(sM)}, {s(sM)}, 2560")
    a(f"s_and_b32 {s(sTMP)}, {s(sL)}, 1")
    a(f"s_lshl_b32 {s(sTMP)}, {s(sTMP)}, 10")
    a(f"s_add_u32 {s(sM)}, {s(sM)}, {s(sTMP)}")
    a(f"v_lshl_add_u32 {v(vOM)}, v0, 4, {s(sM)}")
    a(f"v_mul_u32_u24 {v(T2)}, 2560, {v(T1)}")
    a(f"v_and_b32 {v(T3)}, 31, v0")
    a(f"v_lshl_add_u32 {v(T2)}, {v(T3)}, 4, {v(T2)}")
    a(f"s_mul_i32 {s(sM)}, {s(sL)}, 5120")
    a(f"s_add_u32 {s(sM)}, {s(sM)}, 2048")
    a(f"v_add_u32 {v(vOE)}, {s(sM)}, {v(T2)}")
    a(f"v_lshlrev_b32 {v(vBM)}, 4, v0")
    a(f"v_lshlrev_b32 {v(vBE)}, 10, {v(vG)}")
    a(f"v_lshl_add_u32 {v(vBE)}, {v(vC)}, 3, {v(vBE)}")
    a(f"v_bfe_u32 {v(T1)}, v0, 2, 2")
    a(f"v_and_b32 {v(T2)}, 2, {v(T1)}")
    a(f"v_and_b32 {v(T3)}, 1, {v(vG)}")
    a(f"v_lshl_or_b32 {v(T2)}, {v(T3)}, 2, {v(T2)}")
    a(f"v_bfe_u32 {v(T3)}, v0, 1, 1")
    a(f"v_or_b32 {v(T2)}, {v(T2)}, {v(T3)}")
    a(f"v_lshlrev_b32 {v(T2)}, 4, {v(T2)}")
    a(f"v_lshl_add_u32 {v(T2)}, {v(vG)}, 10, {v(T2)}")
    a(f"v_lshl_add_u32 {v(T2)}, {v(T1)}, 7, {v(T2)}")
    a(f"v_and_b32 {v(T3)}, 1, v0")
    a(f"v_lshl_add_u32 {v(T2)}, {v(T3)}, 3, {v(T2)}")
    for i in range(5):
        a(f"s_mul_i32 {s(sM)}, {s(sW)}, 5")
        a(f"s_add_u32 {s(sM)}, {s(sM)}, {i}")
        a(f"s_and_b32 {s(sTMP)}, {s(sM)}, 3")
        a(f"s_lshl_b32 {s(sTMP)}, {s(sTMP)}, 5")
        a(f"s_lshr_b32 {s(sM)}, {s(sM)}, 2")
        a(f"s_lshl_b32 {s(sM)}, {s(sM)}, 12")
        a(f"s_or_b32 {s(sM)}, {s(sM)}, {s(sTMP)}")
        a(f"v_xor_b32 {v(vWT + i)}, {s(sM)}, {v(T2)}")
    a(f"v_and_b32 {v(T2)}, 1, {v(vG)}")
    a(f"v_lshl_add_u32 {v(T2)}, {v(T2)}, 4, {v(vC)}")
    a(f"v_mul_u32_u24 {v(T2)}, 2560, {v(T2)}")
    a(f"v_lshrrev_b32 {v(T3)}, 1, {v(vG)}")
    a(f"v_lshl_add_u32 {v(T2)}, {v(T3)}, 4, {v(T2)}")
    a(f"s_mul_i32 {s(sM)}, {s(sH)}, {64 * 2560}")
    a(f"s_mul_i32 {s(sTMP)}, {s(sW)}, 160")
    a(f"s_add_u32 {s(sM)}, {s(sM)}, {s(sTMP)}")
    a(f"v_add_u32 {v(vOUT)}, {s(sM)}, {v(T2)}")
    a(f"s_lshl_b32 {s(sL)}, {s(sL)}, 10")
    a(f"s_mul_i32 {s(sN)}, {s(sN)}, {5 * 4096}")
    a(f"s_add_u32 {s(sN)}, {s(sN)}, {s(sL)}")
    a(f"s_mov_b32 {s(sM)}, 1")
    flag_wait(cx, vFR, T0, sM, "L_a_w1", 4)

    def gdma(k):
        buf = (k % 3) * GB
        main = k < 16
        a(f"s_add_u32 m0, {s(sN)}, {buf}")
        a(f"s_add_u32 {s(sPH)}, {s(sBUF if main else sC)}, {k}")
        a(f"s_and_b32 {s(sPH)}, {s(sPH)}, {15 if main else 3}")
        a(f"s_mul_i32 {s(sTMP)}, {s(sPH)}, {51200 if main else 204800}")
        for p in range(5):
            if p:
                a(f"s_add_u32 m0, m0, {4096 - 128}")
                a("s_nop 0")
            a(f"buffer_load_dwordx4 {v(vWM if main else vWE)}, {s(R_0, 4)}, {s(sTMP)} offen offset:{128 * p} lds")
        a(f"s_add_u32 m0, {s(sL)}, {buf + 40960}")
        a(f"s_mul_i32 {s(sTMP)}, {s(sPH)}, {5120 if main else 8 * 2560}")
        a(f"s_add_u32 {s(sTMP)}, {s(sTMP)}, {s(sXO)}")
        a(f"buffer_load_dwordx4 {v(vOM if main else vOE)}, {s(R_WS, 4)}, {s(sTMP)} offen sc1 lds")

    cx.stamp(4)
    a(f"s_lshl_b32 {s(sBUF)}, {s(sC)}, 2")
    gdma(0)
    gdma(1)
    for k in range(20):
        a(f"s_waitcnt vmcnt({6 if k < 19 else 0})")
        a("s_barrier")
        for mu in range(4):
            for u in range(2):
                if k < 16:
                    ad, o = vBM, u * 2048 + (mu >> 1) * 1024 + 8 * (mu & 1)
                else:
                    ad, o = vBE, u * 512 + 128 * mu
                a(f"ds_read_b64 {v(BF + 4 * mu + 2 * u, 2)}, {v(ad)} offset:{40960 + o}")

        def wr(i):
            for u in range(2):
                a(f"ds_read_b64_tr_b16 {v(WF + 4 * i + 2 * u, 2)}, {v(vWT + i)} offset:{u * 512}")
        for i in range(3):
            wr(i)
        if k + 2 < 20:
            gdma(k + 2)
        for i in range(5):
            a(f"s_waitcnt lgkmcnt({2 * min(2, 4 - i)})")
            for mu in range(4):
                acc = AC + 16 * i + 4 * mu
                a(f"v_mfma_f32_16x16x32_bf16 {v(acc, 4)}, {v(WF + 4 * i, 4)}, {v(BF + 4 * mu, 4)}, {'0' if k == 0 else v(acc, 4)}")
                if mu == 0 and i + 3 < 5:
                    wr(i + 3)
        if k < 19:
            step = GB if k % 3 < 2 else -2 * GB
            for r in [vBM, vBE] + [vWT + i for i in range(5)]:
                if step > 0:
                    a(f"v_add_u32 {v(r)}, {step}, {v(r)}")
                else:
                    a(f"v_subrev_u32 {v(r)}, {-step}, {v(r)}")
    a(f"s_mov_b32 {s(sM)}, {32 * 2560}")
    for i in range(5):
        for p in range(2):
            acc, c = AC + 16 * i + 8 * p, WF + 4 * ((2 * i + p) % 4)
            for j in range(4):
                a(f"v_cvt_pk_bf16_f32 {v(c + j)}, {v(acc + 2 * j)}, {v(acc + 2 * j + 1)}")
            a.nop(1)
            a(f"v_permlane16_swap_b32 {v(c)}, {v(c + 2)}")
            a(f"v_permlane16_swap_b32 {v(c + 1)}, {v(c + 3)}")
            a(f"buffer_store_dwordx4 {v(c, 4)}, {v(vOUT)}, {s(R_1, 4)}, {s(sM) if p else 0} offen offset:{32 * i}")
    cx.stamp(5)
    if cx.diag and cx.group != 4:
        a(f"s_mov_b32 {s(sS)}, {cx.keep + 1}")
        cx.save_stamps()
    a("s_waitcnt vmcnt(0)")
    a.label("L_a_done")
    if cx.xp & 2:
        a("s_branch L_red_end")
    role_ox.reducer(cx, sC)
```

```python
import math
from common import *
from role_o import f32

sA_, sH, sPH, sRING, sTMP, sM, sBL, sMO, sXO, sT2 = 61, 62, 63, 64, 65, 66, 67, 68, 69, 70
LW = 15360


def pair_reduce(a, op, x, y, t):
    a.nop(2)
    a(f"v_permlane32_swap_b32 {v(x)}, {v(y)}")
    a(f"{op} {v(x)}, {v(x)}, {v(y)}")
    a(f"v_mov_b32 {v(y)}, {v(x)}")
    a.nop(2)
    a(f"v_permlane16_swap_b32 {v(x)}, {v(y)}")
    a(f"{op} {v(x)}, {v(x)}, {v(y)}")
    a(f"v_mov_b32 {v(y)}, {v(x)}")
    a.nop(2)
    a(f"v_permlane32_swap_b32 {v(x)}, {v(y)}")


def flag_wait(cx, vaddr, vt, sreg, label, sleep=2):
    a = cx.a
    l2 = label + "_s"
    a.label(label)
    a(f"buffer_load_dword {v(vt)}, {v(vaddr)}, {s(R_WS, 4)}, 0 offen sc1")
    a("s_waitcnt vmcnt(0)")
    a(f"v_cmp_gt_i32 vcc, {s(sreg)}, {v(vt)}")
    cx.retry(l2)
    cx.tail.label(l2)
    cx.tail(f"s_sleep {sleep}")
    cx.tail(f"s_branch {label}")


def lane0_addr(a, dst, sreg, t0, t1):
    a("v_cmp_eq_u32 vcc, 0, v0")
    a(f"v_mov_b32 {v(t0)}, {hex(OOB)}")
    a(f"v_mov_b32 {v(t1)}, {s(sreg)}")
    a(f"v_cndmask_b32 {v(dst)}, {v(t0)}, {v(t1)}, vcc")


def role_ax(cx, n_init):
    a = cx.a
    vL16, vFP, vFO, vFA, vFB, vKM, vVR, vMR, vST, vPF, vPF2, vCNT = range(1, 13)
    T0, T1, T2, T3 = 14, 15, 16, 17
    DG, MM = 20, 24
    SA0, SAM, SB0, SB1, SBM = 28, 32, 36, 40, 44
    PA, PB = 48, 52
    VF = 60
    OA = 200
    CV = 92
    Q, K = 100, 148
    sSC = 44
    a.label("L_role_ax")
    a(f"s_sub_u32 {s(sA_)}, {s(sT)}, {N_P + N_O}")
    a(f"s_and_b32 {s(sH)}, {s(sW)}, 3")
    a(f"s_lshr_b32 {s(sPH)}, {s(sW)}, 2")
    a(f"s_lshl_b32 {s(sPH)}, {s(sPH)}, 1")
    a(f"s_add_u32 {s(sPH)}, {s(sPH)}, {s(sA_)}")
    a(f"s_lshl_b32 {s(sRING)}, {s(sX)}, {RING_SH}")
    a(f"s_add_u32 {s(sRING)}, {s(sRING)}, {hex(WS_RING)}")
    srd(a, R_0, P_BX, 2048 * 640 * 2)
    a(f"v_lshlrev_b32 {v(vL16)}, 4, v0")
    a(f"v_lshrrev_b32 {v(T0)}, 4, v0")
    a(f"v_and_b32 {v(T1)}, 15, v0")
    a(f"s_mul_i32 {s(sM)}, {s(sH)}, 48")
    a(f"s_add_u32 {s(sM)}, {s(sM)}, {s(sRING)}")
    a(f"s_add_u32 {s(sM)}, {s(sM)}, {RING_FQ}")
    a(f"v_min_u32 {v(T2)}, 11, v0")
    a(f"v_lshl_add_u32 {v(vFP)}, {v(T2)}, 2, {s(sM)}")
    a(f"s_add_u32 {s(sM)}, {s(sRING)}, {RING_FO}")
    a(f"v_and_b32 {v(T2)}, 3, v0")
    a(f"v_lshl_add_u32 {v(vFO)}, {v(T2)}, 2, {s(sM)}")
    a(f"s_lshl_b32 {s(sM)}, {s(sPH)}, 2")
    a(f"s_add_u32 {s(sM)}, {s(sM)}, {s(sH)}")
    a(f"s_lshl_b32 {s(sM)}, {s(sM)}, 2")
    a(f"s_add_u32 {s(sM)}, {s(sM)}, {s(sRING)}")
    a(f"s_add_u32 {s(sM)}, {s(sM)}, {RING_FA}")
    lane0_addr(a, vFA, sM, T2, T3)
    a(f"v_add_u32 {v(vFB)}, {RING_FB - RING_FA}, {v(vFA)}")
    a(f"s_sub_u32 {s(sM)}, {s(sPH)}, 3")
    a(f"v_mov_b32 {v(vCNT)}, {s(sM)}")
    a(f"buffer_store_dword {v(vCNT)}, {v(vFA)}, {s(R_WS, 4)}, 0 offen")
    a(f"buffer_store_dword {v(vCNT)}, {v(vFB)}, {s(R_WS, 4)}, 0 offen")
    a(f"v_and_b32 {v(T2)}, 7, v0")
    a(f"v_lshlrev_b32 {v(T2)}, 4, {v(T2)}")
    a(f"v_lshl_add_u32 {v(vKM)}, {v(T0)}, 7, {v(T2)}")
    a(f"s_mul_i32 {s(sT2)}, {s(sW)}, {LW}")
    a(f"v_bfe_u32 {v(T2)}, v0, 1, 1")
    a(f"v_lshlrev_b32 {v(T2)}, 8, {v(T2)}")
    a(f"v_lshrrev_b32 {v(T3)}, 2, v0")
    a(f"v_lshl_add_u32 {v(T2)}, {v(T3)}, 4, {v(T2)}")
    a(f"v_and_b32 {v(T3)}, 1, v0")
    a(f"v_lshl_add_u32 {v(T2)}, {v(T3)}, 3, {v(T2)}")
    a(f"v_add_u32 {v(vVR)}, {s(sT2)}, {v(T2)}")
    a(f"v_bfe_u32 {v(T2)}, v0, 2, 3")
    a(f"v_mul_u32_u24 {v(T2)}, 384, {v(T2)}")
    a(f"v_and_b32 {v(T3)}, 3, v0")
    a(f"v_lshl_add_u32 {v(T2)}, {v(T3)}, 3, {v(T2)}")
    a(f"v_add_u32 {v(T2)}, 12288, {v(T2)}")
    a(f"v_add_u32 {v(vMR)}, {s(sT2)}, {v(T2)}")
    a(f"v_and_b32 {v(T2)}, 1, {v(T0)}")
    a(f"v_lshlrev_b32 {v(T2)}, 10, {v(T2)}")
    a(f"v_lshrrev_b32 {v(T3)}, 1, {v(T0)}")
    a(f"v_lshl_add_u32 {v(T2)}, {v(T3)}, 8, {v(T2)}")
    a(f"v_lshl_add_u32 {v(vST)}, {v(T1)}, 4, {v(T2)}")
    a(f"s_mul_i32 {s(sM)}, {s(sH)}, 10240")
    a(f"v_lshl_add_u32 {v(vPF)}, v0, 7, {s(sM)}")
    a(f"s_add_u32 {s(sM)}, {s(sM)}, 8192")
    a(f"v_lshl_add_u32 {v(vPF2)}, {v(T1)}, 7, {s(sM)}")
    for r in (PB + 6, PB + 7, VF + 6, VF + 7, VF + 12, VF + 13, VF + 18, VF + 19):
        a(f"v_mov_b32 {v(r)}, 0")
    a(f"v_mov_b32 {v(T3)}, 0xff800000")
    for i in range(4):
        a(f"v_lshl_add_u32 {v(T2)}, {v(T0)}, 2, {i}")
        a(f"v_cmp_gt_u32 vcc, {v(T2)}, {v(T1)}")
        a.nop(2)
        a(f"v_cndmask_b32 {v(DG + i)}, 0, {v(T3)}, vcc")
    a(f"v_cmp_lt_u32 vcc, 1, {v(T0)}")
    a.nop(2)
    for i in range(4):
        a(f"v_cndmask_b32 {v(MM + i)}, 0, {v(T3)}, vcc")
    a(f"s_mov_b32 {s(sSC)}, {f32(192 ** -0.5 * math.log2(math.e))}")
    a(f"s_lshl_b32 {s(sM)}, {s(sX)}, 2")
    a(f"s_add_u32 {s(sM)}, {s(sM)}, {s(sH)}")
    a(f"s_lshl_b32 {s(sTMP)}, {s(sPH)}, 5")
    a(f"s_add_u32 {s(sM)}, {s(sM)}, {s(sTMP)}")
    a(f"s_mul_i32 {s(sBL)}, {s(sM)}, {BLK}")
    a(f"s_mul_i32 {s(sMO)}, {s(sM)}, 3072")
    a(f"s_mul_i32 {s(sXO)}, {s(sPH)}, 40960")
    a(f"s_mov_b32 {s(sS)}, {s(sPH)}")
    a("s_waitcnt vmcnt(0)")
    signal_ready(cx, T2)
    a(f"buffer_load_dword {v(T2)}, {v(vPF)}, {s(R_0, 4)}, {s(sXO)} offen")
    a(f"buffer_load_dword {v(T2)}, {v(vPF2)}, {s(R_0, 4)}, {s(sXO)} offen")
    def touch():
        a(f"v_lshlrev_b32 {v(T3)}, 7, v0")
        a(f"v_and_b32 {v(T1)}, 0xfff, {v(T3)}")
        for base in (WS_V, WS_K, WS_Q, WS_O)[:cx.touch]:
            a(f"s_add_u32 {s(sTMP)}, {s(sBL)}, {hex(base)}")
            a(f"buffer_load_dword {v(T2)}, {v(T3)}, {s(R_WS, 4)}, {s(sTMP)} offen sc1{cx.tnt}")
            a(f"s_add_u32 {s(sTMP)}, {s(sTMP)}, 8192")
            a(f"buffer_load_dword {v(T2)}, {v(T1)}, {s(R_WS, 4)}, {s(sTMP)} offen sc1{cx.tnt}")
        a(f"v_min_u32 {v(T1)}, {23 * 128}, {v(T3)}")
        for base in (WS_KM, WS_VM)[:2 * (cx.touch // 4)]:
            a(f"s_add_u32 {s(sTMP)}, {s(sMO)}, {hex(base)}")
            a(f"buffer_load_dword {v(T2)}, {v(T1)}, {s(R_WS, 4)}, {s(sTMP)} offen sc1{cx.tnt}")
    if not cx.tlate:
        touch()
    wait_ready(cx, 18, n_init, 0, False, True)
    a("s_barrier")
    if cx.tlate:
        touch()
    if cx.pf8:
        a(f"s_add_u32 {s(sXO)}, {s(sXO)}, {4 * 40960}")
        a(f"buffer_load_dword {v(T2)}, {v(vPF)}, {s(R_0, 4)}, {s(sXO)} offen")
        a(f"buffer_load_dword {v(T2)}, {v(vPF2)}, {s(R_0, 4)}, {s(sXO)} offen")

    def three(base, fn):
        for part in range(3):
            a(f"s_add_u32 {s(sTMP)}, {s(sBL)}, {hex(base + part * 4096)}")
            for o in range(4):
                fn(4 * part + o, o * 1024, part)

    a.label("L_ax_loop")
    a(f"s_add_u32 {s(sM)}, {s(sS)}, 1")
    a(f"s_add_u32 {s(sXO)}, {s(sXO)}, {4 * 40960}")
    a(f"v_mov_b32 {v(vCNT)}, {s(sM)}")
    flag_wait(cx, vFP, T2, sS, "L_ax_w1", 8)
    cx.stamp(0)
    three(WS_Q, lambda k, o, p: a(f"buffer_load_dwordx4 {v(Q + 4 * k, 4)}, {v(vL16)}, {s(R_WS, 4)}, {s(sTMP)} offen offset:{o} sc1"))
    three(WS_K, lambda k, o, p: a(f"buffer_load_dwordx4 {v(K + 4 * k, 4)}, {v(vL16)}, {s(R_WS, 4)}, {s(sTMP)} offen offset:{o} sc1"))

    def vdma(k, o, p):
        if o == 0:
            a(f"s_add_u32 m0, {s(sT2)}, {p * 4096}")
            a("s_nop 0")
        a(f"buffer_load_dwordx4 {v(vL16)}, {s(R_WS, 4)}, {s(sTMP)} offen offset:{o} sc1 lds")
    three(WS_V, vdma)
    a(f"buffer_load_dword {v(T2)}, {v(vPF)}, {s(R_0, 4)}, {s(sXO)} offen")
    a(f"buffer_load_dword {v(T2)}, {v(vPF2)}, {s(R_0, 4)}, {s(sXO)} offen")
    a("s_waitcnt vmcnt(14)")
    cx.stamp(1)
    for t in range(6):
        for acc, kt, qt, c0 in ((SA0, 0, 0, v(DG, 4)), (SB0, 0, 1, "0"), (SB1, 1, 1, v(DG, 4))):
            c = c0 if t == 0 else v(acc, 4)
            a(f"v_mfma_f32_16x16x32_bf16 {v(acc, 4)}, {v(K + 8 * t + 4 * kt, 4)}, {v(Q + 8 * t + 4 * qt, 4)}, {c}")
    flag_wait(cx, vFP, T2, sM, "L_ax_w2", 1)
    cx.stamp(2)
    a(f"s_add_u32 {s(sTMP)}, {s(sMO)}, {hex(WS_KM)}")
    for t in range(6):
        a(f"buffer_load_dwordx4 {v(K + 4 * t, 4)}, {v(vKM)}, {s(R_WS, 4)}, {s(sTMP)} offen offset:{t * 512} sc1")
    a(f"s_add_u32 m0, {s(sT2)}, 12288")
    a(f"s_add_u32 {s(sTMP)}, {s(sMO)}, {hex(WS_VM)}")
    for o in range(3):
        a(f"buffer_load_dwordx4 {v(vL16)}, {s(R_WS, 4)}, {s(sTMP)} offen offset:{o * 1024} sc1 lds")
    a(f"buffer_load_dword {v(T3)}, {v(vFO)}, {s(R_WS, 4)}, 0 offen sc1")
    for t in range(6):
        a(f"s_waitcnt vmcnt({9 - t})")
        for acc, qt in ((SAM, 0), (SBM, 1)):
            c = v(MM, 4) if t == 0 else v(acc, 4)
            a(f"v_mfma_f32_16x16x32_bf16 {v(acc, 4)}, {v(K + 4 * t, 4)}, {v(Q + 8 * t + 4 * qt, 4)}, {c}")
    a("s_waitcnt vmcnt(0)")
    a(f"buffer_store_dword {v(vCNT)}, {v(vFA)}, {s(R_WS, 4)}, 0 offen")
    cx.stamp(3)

    def vread(tau):
        b = VF + 6 * (tau % 3)
        a(f"ds_read_b64_tr_b16 {v(b, 2)}, {v(vMR)} offset:{tau * 32}")
        for u in range(2):
            a(f"ds_read_b64_tr_b16 {v(b + 2 + 2 * u, 2)}, {v(vVR)} offset:{(tau >> 1) * 2048 + (tau & 1) * 512 + u * 1024}")
    vread(0)
    A = [SA0 + i for i in range(4)] + [SAM + i for i in range(4)]
    B = [SB0 + i for i in range(8)] + [SBM + i for i in range(4)]
    X, Y = T0, T1

    def tree(op3, op2, dst, regs):
        a(f"{op3} {v(dst)}, {v(regs[0])}, {v(regs[1])}, {v(regs[2])}")
        k = 3
        while k + 1 < len(regs):
            a(f"{op3} {v(dst)}, {v(dst)}, {v(regs[k])}, {v(regs[k + 1])}")
            k += 2
        if k < len(regs):
            a(f"{op2} {v(dst)}, {v(dst)}, {v(regs[k])}")
    tree("v_max3_f32", "v_max_f32", Y, B)
    tree("v_max3_f32", "v_max_f32", X, A)
    pair_reduce(a, "v_max_f32", X, Y, T2)
    a(f"v_mul_f32 {v(X)}, {s(sSC)}, {v(X)}")
    a(f"v_mul_f32 {v(Y)}, {s(sSC)}, {v(Y)}")
    for regs, m in ((A, X), (B, Y)):
        for r in regs:
            a(f"v_fma_f32 {v(r)}, {v(r)}, {s(sSC)}, -{v(m)}")
    for r in A + B:
        a(f"v_exp_f32 {v(r)}, {v(r)}")
    for regs, m in ((A, X), (B, Y)):
        a(f"v_add_f32 {v(m)}, {v(regs[0])}, {v(regs[1])}")
        for r in regs[2:]:
            a(f"v_add_f32 {v(m)}, {v(m)}, {v(r)}")
    pair_reduce(a, "v_add_f32", X, Y, T2)
    a(f"v_rcp_f32 {v(X)}, {v(X)}")
    a(f"v_rcp_f32 {v(Y)}, {v(Y)}")
    for regs, m in ((A, X), (B, Y)):
        for r in regs:
            a(f"v_mul_f32 {v(r)}, {v(r)}, {v(m)}")
    for dst, src in ((PA, SAM), (PA + 2, SA0), (PB, SBM), (PB + 2, SB0), (PB + 4, SB1)):
        for i in range(2):
            a(f"v_cvt_pk_bf16_f32 {v(dst + i)}, {v(src + 2 * i)}, {v(src + 2 * i + 1)}")
    a(f"s_sub_u32 {s(sM)}, {s(sS)}, {cx.rq - 1}")
    a(f"v_cmp_gt_i32 vcc, {s(sM)}, {v(T3)}")
    a("s_cbranch_vccz L_ax_free")
    flag_wait(cx, vFO, T3, sM, "L_ax_w3", 2)
    a.label("L_ax_free")
    cx.stamp(4)

    def out(tau):
        o, c = OA + 8 * (tau % 3), CV + 4 * (tau & 1)
        L = [f"v_cvt_pk_bf16_f32 {v(c + i)}, {v(o + 2 * i)}, {v(o + 2 * i + 1)}" for i in (0, 2, 1, 3)]
        L.append(f"s_add_u32 {s(sTMP)}, {s(sBL)}, {hex(WS_O + (tau >> 2) * 4096)}")
        L.append(f"v_permlane16_swap_b32 {v(c)}, {v(c + 2)}")
        L.append(f"v_permlane16_swap_b32 {v(c + 1)}, {v(c + 3)}")
        L.append(f"buffer_store_dwordx4 {v(c, 4)}, {v(vST)}, {s(R_WS, 4)}, {s(sTMP)} offen offset:{((tau >> 1) & 1) * 2048 + (tau & 1) * 512}")
        return L
    vread(1)
    for tau in range(12):
        b, o = VF + 6 * (tau % 3), OA + 8 * (tau % 3)
        L = out(tau - 2) if tau >= 2 else []
        if tau < 10:
            vread(tau + 2)
        a(f"s_waitcnt lgkmcnt({3 * min(2, 11 - tau)})")
        a(f"v_mfma_f32_16x16x32_bf16 {v(o + 4, 4)}, {v(b, 4)}, {v(PB, 4)}, 0")
        for x in L[:2]:
            a(x)
        a(f"v_mfma_f32_16x16x32_bf16 {v(o, 4)}, {v(b, 4)}, {v(PA, 4)}, 0")
        for x in L[2:5]:
            a(x)
        a(f"v_mfma_f32_16x16x32_bf16 {v(o + 4, 4)}, {v(b + 4, 4)}, {v(PB + 4, 4)}, {v(o + 4, 4)}")
        for x in L[5:]:
            a(x)
    for x in out(10) + out(11):
        a(x)
    a(f"s_add_u32 {s(sS)}, {s(sS)}, 4")
    if cx.rq != 4:
        ring_next(a, sBL, 0, 4 * SEGSTR, cx.rq // 4)
        ring_next(a, sMO, 0, 4 * MSEG, cx.rq // 4)
    a("s_waitcnt vmcnt(0)")
    a(f"buffer_store_dword {v(vCNT)}, {v(vFB)}, {s(R_WS, 4)}, 0 offen")
    cx.stamp(5)
    cx.save_stamps(3)
    a(f"s_cmp_lt_u32 {s(sS)}, 64")
    a("s_cbranch_scc1 L_ax_loop")
    cx.dump_stamps(8, 14)
    a("s_endpgm")
```

```python
import math
import struct
from common import *

L_VX = 0
L_UM = 98304
L_P = 110592
L_OWN = 114688
L_NEAR = 115712

sI, sRING, sTMP, sM = 62, 63, 64, 65
sA, sB2, sC, sD, sE, sF = 66, 67, 68, 69, 70, 71
R_CUR, R_OTH, R_C = R_1, R_2, R_3
T0, T1, T2, T3, T4, T5 = 20, 21, 22, 23, 24, 25


def f32(x):
    return hex(struct.unpack("<I", struct.pack("<f", x))[0])


def role_o(cx, n_init):
    a = cx.a
    a.label("L_role_o")
    cx.stamp(0, 4)
    a(f"s_sub_u32 {s(sI)}, {s(sT)}, {N_P}")
    a(f"s_lshl_b32 {s(sRING)}, {s(sX)}, {RING_SH}")
    a(f"s_add_u32 {s(sRING)}, {s(sRING)}, {hex(WS_RING)}")
    srd(a, R_0, P_WO, 6144 * 640 * 2)
    srd(a, R_1, P_MEM0, 8 * 640 * 2)
    vSTG = 26
    a(f"v_lshrrev_b32 {v(T0)}, 3, v0")
    a(f"v_and_b32 {v(T1)}, 2, {v(T0)}")
    a(f"s_and_b32 {s(sTMP)}, {s(sW)}, 1")
    a(f"s_lshl_b32 {s(sTMP)}, {s(sTMP)}, 2")
    a(f"v_or_b32 {v(T1)}, {s(sTMP)}, {v(T1)}")
    a(f"v_and_b32 {v(T2)}, 7, v0")
    a(f"v_xor_b32 {v(T1)}, {v(T1)}, {v(T2)}")
    a(f"v_lshlrev_b32 {v(T1)}, 4, {v(T1)}")
    a(f"s_mul_i32 {s(sM)}, {s(sX)}, 768")
    a(f"s_lshl_b32 {s(sTMP)}, {s(sW)}, 3")
    a(f"s_add_u32 {s(sTMP)}, {s(sTMP)}, {s(sM)}")
    a(f"v_add_u32 {v(T0)}, {s(sTMP)}, {v(T0)}")
    a(f"v_mul_u32_u24 {v(T0)}, 1280, {v(T0)}")
    a(f"s_lshl_b32 {s(sTMP)}, {s(sI)}, 7")
    a(f"v_add3_u32 {v(vSTG)}, {v(T0)}, {v(T1)}, {s(sTMP)}")
    a(f"s_lshl_b32 {s(sTMP)}, {s(sW)}, 10")
    for z in range(12 if not cx.ptest & 4 else 0):
        a(f"s_add_u32 m0, {s(sTMP)}, {z * 8192}")
        a(f"s_mov_b32 {s(sM)}, {z * 64 * 1280}")
        a(f"buffer_load_dwordx4 {v(vSTG)}, {s(R_0, 4)}, {s(sM)} offen nt lds")
    a(f"v_lshrrev_b32 {v(T0)}, 4, v0")
    a(f"v_and_b32 {v(T1)}, 15, v0")
    a(f"v_lshrrev_b32 {v(T2)}, 2, {v(T1)}")
    a(f"v_and_b32 {v(T3)}, 1, {v(T1)}")
    a(f"v_lshl_add_u32 {v(T4)}, {v(T2)}, 1, {v(T3)}")
    a(f"v_bfe_u32 {v(T5)}, v0, 1, 1")
    a(f"s_mov_b32 {s(sS)}, 0")
    a(f"s_cmp_ge_u32 {s(sW)}, 4")
    a("s_cbranch_scc1 L_o_u")
    s_wave(cx, n_init)
    a.label("L_o_u")
    u_wave(cx, n_init)


def vx_dma(cx, vL16, sLDS, sSRC, between=None, lo=0, hi=12):
    a = cx.a
    for k in range(lo, hi):
        if (k - lo) % 4 == 0:
            a(f"s_add_u32 m0, {s(sLDS)}, {L_VX + k * 1024}")
            a(f"s_add_u32 {s(sTMP)}, {s(sSRC)}, {k * 1024}")
        a(f"buffer_load_dwordx4 {v(vL16)}, {s(R_WS, 4)}, {s(sTMP)} offen offset:{(k - lo) % 4 * 1024} sc1 lds")
        if between:
            between(k)
    if hi == 12:
        ring_next(a, sSRC, WS_V, SEGSTR, cx.rq)


def vx_setup(a, sLDS, sSRC):
    a(f"s_mul_i32 {s(sSRC)}, {s(sX)}, {4 * BLK}")
    a(f"s_and_b32 {s(sLDS)}, {s(sW)}, 3")
    a(f"s_mul_i32 {s(sLDS)}, {s(sLDS)}, {BLK}")
    a(f"s_add_u32 {s(sSRC)}, {s(sSRC)}, {s(sLDS)}")
    a(f"s_add_u32 {s(sSRC)}, {s(sSRC)}, {hex(WS_V)}")


def tr_addr(a, dst):
    a(f"v_bfe_u32 v27, v0, 2, 2")
    a(f"v_and_b32 {v(T2)}, 2, v27")
    a(f"v_and_b32 {v(T3)}, 1, {v(T0)}")
    a(f"v_lshl_or_b32 {v(T2)}, {v(T3)}, 2, {v(T2)}")
    a(f"v_or_b32 {v(T2)}, {v(T2)}, {v(T5)}")
    a(f"v_lshlrev_b32 {v(T2)}, 4, {v(T2)}")
    a(f"v_lshl_add_u32 {v(T2)}, {v(T0)}, 10, {v(T2)}")
    a(f"v_lshl_add_u32 {v(T2)}, v27, 7, {v(T2)}")
    a(f"v_and_b32 {v(T3)}, 1, v0")
    a(f"v_lshl_add_u32 {v(dst)}, {v(T3)}, 3, {v(T2)}")


def s_wave(cx, n_init):
    a = cx.a
    vNEG, vL16, vHU, vSX, vMSK, vPW, vPM, vOW, vDW, vDR, vVG, vUW, vIDX, vTR = range(1, 15)
    HT = 16
    vFD, vCN = 30, 31
    VM = 112
    ACC = 124
    UC = 140
    WO = 160
    CA = 32
    E2 = 40
    SC = 44
    E = 54
    PK = 60
    CR = 64
    TT = 28
    sVXO, sPH, sPS, sNO, sCS = sA, sB2, sC, sD, sF
    sLO, sHI, sSC = 40, 41, 42
    a(f"v_mov_b32 {v(vNEG)}, -1")
    a(f"v_lshlrev_b32 {v(vL16)}, 4, v0")
    hint_addr(a, vHU)
    a(f"v_and_b32 {v(T2)}, 60, v0")
    a(f"v_and_b32 {v(T3)}, 1, v0")
    a(f"v_lshl_or_b32 {v(T2)}, {v(T3)}, 1, {v(T2)}")
    a(f"v_or_b32 {v(T2)}, {v(T2)}, {v(T5)}")
    a(f"s_mul_i32 {s(sM)}, {s(sW)}, 3072")
    a(f"s_add_u32 {s(sM)}, {s(sM)}, {RING_VM}")
    a(f"v_lshl_add_u32 {v(vVG)}, {v(T2)}, 4, {s(sM)}")
    a(f"s_lshl_b32 {s(sM)}, {s(sW)}, 9")
    a(f"s_add_u32 {s(sM)}, {s(sM)}, {L_UM}")
    a(f"v_lshl_add_u32 {v(vUW)}, v0, 3, {s(sM)}")
    a(f"v_mul_u32_u24 {v(vIDX)}, 0xaaaa, {v(T5)}")
    a(f"v_add_u32 {v(vIDX)}, 0x4444, {v(vIDX)}")
    tr_addr(a, vTR)
    a(f"s_mul_i32 {s(sM)}, {s(sW)}, {6 * 4096}")
    a(f"v_add_u32 {v(vTR)}, {s(sM)}, {v(vTR)}")
    a(f"s_mul_i32 {s(sM)}, {s(sW)}, {3 * 768}")
    a(f"s_add_u32 {s(sM)}, {s(sM)}, {RING_SC}")
    a(f"v_lshl_add_u32 {v(vSX)}, v0, 2, {s(sM)}")
    a(f"v_or_b32 {v(vMSK)}, 8, {v(vSX)}")
    a(f"s_lshl_b32 {s(sTMP)}, {s(sW)}, 10")
    a(f"s_add_u32 {s(sTMP)}, {s(sTMP)}, {L_P}")
    a(f"v_bfe_u32 {v(T2)}, v0, 2, 1")
    a(f"v_bfe_u32 {v(T3)}, v0, 3, 1")
    a(f"v_and_b32 {v(TT)}, 1, v0")
    a(f"v_lshlrev_b32 {v(TT + 1)}, 1, {v(T3)}")
    a(f"v_xor_b32 {v(TT + 1)}, {v(TT + 1)}, {v(T0)}")
    a(f"v_lshlrev_b32 {v(TT + 1)}, 3, {v(TT + 1)}")
    a(f"v_lshl_add_u32 {v(TT + 1)}, {v(T3)}, 7, {v(TT + 1)}")
    a(f"v_lshl_add_u32 {v(TT + 1)}, {v(T2)}, 8, {v(TT + 1)}")
    a(f"v_add_u32 {v(TT + 1)}, {s(sTMP)}, {v(TT + 1)}")
    a(f"v_lshl_add_u32 {v(vPW)}, {v(T2)}, 6, {v(TT + 1)}")
    a(f"v_lshl_add_u32 {v(vPW)}, {v(TT)}, 5, {v(vPW)}")
    a(f"v_lshl_add_u32 {v(vPW)}, {v(T5)}, 2, {v(vPW)}")
    a(f"v_xor_b32 {v(T2)}, 1, {v(T2)}")
    a(f"v_lshl_add_u32 {v(vPM)}, {v(T2)}, 6, {v(TT + 1)}")
    a(f"v_lshl_add_u32 {v(vPM)}, {v(T5)}, 5, {v(vPM)}")
    a(f"v_lshl_add_u32 {v(vPM)}, {v(TT)}, 2, {v(vPM)}")
    for i in range(4):
        a(f"v_mov_b32 {v(PK + i)}, 0")
    a(f"v_add_u32 {v(T2)}, {s(sTMP)}, {v(vL16)}")
    a(f"ds_write_b128 {v(T2)}, {v(PK, 4)}")
    a(f"v_bfe_u32 {v(T2)}, v0, 1, 2")
    a(f"v_lshl_add_u32 {v(T1)}, {v(T2)}, 2, {v(TT)}")
    a(f"v_lshl_add_u32 {v(T1)}, {v(T3)}, 1, {v(T1)}")
    a(f"s_lshl_b32 {s(sM)}, {s(sI)}, 14")
    a(f"s_lshl_b32 {s(sTMP)}, {s(sW)}, 11")
    a(f"s_add_u32 {s(sM)}, {s(sM)}, {s(sTMP)}")
    a(f"s_add_u32 {s(sCS)}, {s(sM)}, {hex(WS_C)}")
    a(f"s_lshl_b32 {s(sTMP)}, {s(sX)}, 8")
    a(f"s_add_u32 {s(sM)}, {s(sM)}, {s(sTMP)}")
    a(f"v_lshl_add_u32 {v(T2)}, v0, 2, {s(sM)}")
    for k in range(7):
        a(f"v_xor_b32 {v(CA + k)}, {(k + 1) * 256}, {v(T2)}")
    a(f"s_lshl_b32 {s(sTMP)}, {s(sW)}, 8")
    a(f"s_add_u32 {s(sTMP)}, {s(sTMP)}, {L_OWN}")
    a(f"v_lshl_add_u32 {v(vOW)}, v0, 2, {s(sTMP)}")
    a(f"s_lshl_b32 {s(sM)}, {s(sI)}, 2")
    a(f"s_add_u32 {s(sM)}, {s(sM)}, {s(sW)}")
    a(f"s_lshl_b32 {s(sTMP)}, {s(sM)}, 5")
    a(f"s_lshl_b32 {s(sM)}, {s(sM)}, 8")
    a(f"v_lshl_add_u32 {v(vDR)}, v0, 2, {s(sM)}")
    a(f"v_and_b32 {v(T2)}, 15, v0")
    a(f"v_lshlrev_b32 {v(T2)}, 1, {v(T2)}")
    a(f"v_lshl_add_u32 {v(T2)}, {v(T0)}, 6, {v(T2)}")
    a(f"v_add_u32 {v(vDW)}, {s(sM)}, {v(T2)}")
    a(f"v_mul_u32_u24 {v(T2)}, 2560, {v(T0)}")
    a(f"v_lshl_add_u32 {v(T2)}, {v(T1)}, 1, {v(T2)}")
    a(f"buffer_load_short_d16 {v(T3)}, {v(T2)}, {s(R_1, 4)}, {s(sTMP)} offen")
    a(f"buffer_load_short_d16 {v(TT)}, {v(T2)}, {s(R_1, 4)}, {s(sTMP)} offen offset:1280")
    a(f"s_add_u32 {s(sPS)}, {s(sRING)}, {SLOT}")
    a(f"buffer_store_dword {v(vNEG)}, {v(vDR)}, {s(R_WS, 4)}, {s(sPS)} offen")
    a(f"s_lshl_b32 {s(sM)}, {s(sI)}, 2")
    a(f"s_add_u32 {s(sM)}, {s(sM)}, {s(sW)}")
    a(f"s_lshl_b32 {s(sM)}, {s(sM)}, 2")
    a(f"s_add_u32 {s(sM)}, {s(sM)}, {s(sRING)}")
    a(f"s_add_u32 {s(sM)}, {s(sM)}, {RING_FD}")
    a("v_cmp_eq_u32 vcc, 0, v0")
    a(f"v_mov_b32 {v(T2)}, {hex(OOB)}")
    a(f"v_mov_b32 {v(T4)}, {s(sM)}")
    a(f"v_cndmask_b32 {v(vFD)}, {v(T2)}, {v(T4)}, vcc")
    a(f"v_mov_b32 {v(vCN)}, 0")
    a(f"buffer_store_dword {v(vCN)}, {v(vFD)}, {s(R_WS, 4)}, 0 offen")
    a("s_waitcnt vmcnt(2)")
    a(f"buffer_store_short {v(T3)}, {v(vDW)}, {s(R_WS, 4)}, {s(sRING)} offen")
    a(f"buffer_store_short {v(TT)}, {v(vDW)}, {s(R_WS, 4)}, {s(sRING)} offen offset:32")
    a("s_waitcnt vmcnt(0) lgkmcnt(0)")
    cx.stamp(1, 4)
    signal_ready(cx, T0)
    for t in range(4):
        a(f"v_xor_b32 {v(T2)}, {32 * t}, {v(vTR)}")
        for k in range(6):
            for u in range(2):
                a(f"ds_read_b64_tr_b16 {v(WO + 24 * t + 4 * k + 2 * u, 2)}, {v(T2)} offset:{k * 4096 + u * 512}")
        a("s_waitcnt lgkmcnt(0)")
    permute_columns(a, WO, 96, T2, T3)
    a(f"s_mov_b32 {s(sLO)}, 0x3f80")
    a(f"s_mov_b32 {s(sHI)}, 0x3f800000")
    a(f"s_mov_b32 {s(sSC)}, {f32(192 ** -0.5 * math.log2(math.e))}")
    a(f"s_mov_b32 {s(sSC + 1)}, {s(sSC)}")
    cx.stamp(2, 4)
    if cx.ptest:
        a("s_sleep 100")
        a(f"s_mov_b32 {s(sS)}, {cx.keep + 1}")
        cx.save_stamps()
        a("s_sleep 100")
        cx.dump_stamps(8)
        a("s_endpgm")
    cx.stamp(3, 4)
    slots_init(a, R_CUR, R_OTH, sPS, sRING)
    a(f"s_mov_b32 {s(sPH)}, 0")
    a("s_barrier")
    cx.stamp(4, 4)
    if cx.rtouch:
        a(f"s_lshl_b32 {s(sTMP)}, {s(sI)}, 2")
        a(f"s_add_u32 {s(sTMP)}, {s(sTMP)}, {s(sW)}")
        a(f"s_lshl_b32 {s(sTMP)}, {s(sTMP)}, 11")
        a(f"s_add_u32 {s(sTMP)}, {s(sTMP)}, {s(sRING)}")
        a(f"v_lshrrev_b32 {v(T3)}, 2, v0")
        a(f"v_lshlrev_b32 {v(T3)}, 7, {v(T3)}")
        a(f"buffer_load_dword {v(T4)}, {v(T3)}, {s(R_WS, 4)}, {s(sTMP)} offen sc1")
    near_pick(cx, sCS)
    own_side(a, sCS)
    a(f"s_and_b32 {s(sTMP)}, {s(sX)}, {cx.nrep - 1}")
    a(f"s_mul_i32 {s(sTMP)}, {s(sTMP)}, {C_REP}")
    a(f"s_add_u32 {s(sCS)}, {s(sCS)}, {s(sTMP)}")
    a(f"s_add_u32 {s(sCS)}, {s(sCS)}, {hex(WS_C)}")
    sub_srd(a, R_C, C_SLOT)
    set_base(a, R_C, sCS)
    a("s_waitcnt vmcnt(0)")
    a("s_barrier")
    for _ in range(cx.crounds):
        a("s_barrier")
    a("s_setprio 3")

    a.label("L_os_loop")
    a("s_barrier")
    cx.stamp(0)
    cx.stamp(0, 3)
    cx.stamp(5, 4)
    cx.stamp(0, 5)
    for i in range(16):
        a(f"v_mov_b32 {v(ACC + i)}, 0")
    a(f"v_add_u32 {v(vCN)}, 1, {v(vCN)}")
    if cx.udelay:
        a(f"s_sleep {cx.udelay}")
    hint_wait(cx, vHU, HT, "L_os_hint", cx.hn)
    cx.stamp(1)
    cx.stamp(1, 3)
    a.label("L_os_pollv")
    for j in range(3):
        a(f"buffer_load_dwordx4 {v(VM + 4 * j, 4)}, {v(vVG)}, {s(R_CUR, 4)}, 0 offen offset:{1024 * j} sc1")
    for j in range(3):
        a(f"s_waitcnt vmcnt({2 - j})")
        if j == 0:
            a(f"v_max3_u32 {v(TT)}, {v(VM)}, {v(VM + 1)}, {v(VM + 2)}")
            a(f"v_max_u32 {v(TT)}, {v(TT)}, {v(VM + 3)}")
        else:
            a(f"v_max3_u32 {v(TT)}, {v(TT)}, {v(VM + 4 * j)}, {v(VM + 4 * j + 1)}")
            a(f"v_max3_u32 {v(TT)}, {v(TT)}, {v(VM + 4 * j + 2)}, {v(VM + 4 * j + 3)}")
    a(f"v_cmp_eq_u32 vcc, -1, {v(TT)}")
    cx.retry("L_os_pollv", 3)
    if cx.b0:
        a("s_barrier")
    cx.stamp(2, 3)

    def score_loads(o):
        for k in range(9):
            o(f"buffer_load_dword {v(SC + k)}, {v(vMSK if k % 3 == 2 else vSX)}, {s(R_CUR, 4)}, 0 offen offset:{256 * k} sc1")

    def post(t):
        for i in range(2):
            a(f"v_cvt_pk_bf16_f32 {v(UC + 2 * t + i)}, {v(ACC + 4 * t + 2 * i)}, {v(ACC + 4 * t + 2 * i + 1)}")
        a(f"ds_write_b64 {v(vUW)}, {v(UC + 2 * t, 2)} offset:{2048 * t}")
    for k in range(12):
        t, j = k // 3, k % 3
        if k == cx.spos:
            score_loads(a)
        a(f"v_smfmac_f32_16x16x64_bf16 {v(ACC + 4 * t, 4)}, {v(VM + 4 * j, 4)}, {v(WO + 24 * t + 8 * j, 8)}, {v(vIDX)}")
    if cx.spos == 12:
        score_loads(a)
    for t in range(4):
        post(t)
    if cx.spos > 12:
        if cx.spos > 13:
            a(f"s_sleep {cx.spos - 13}")
        score_loads(a)
    cx.stamp(3, 3)
    a("s_waitcnt lgkmcnt(0)")
    a("s_barrier")
    cx.stamp(4, 3)
    a.label("L_os_polls")
    for j in range(3):
        a(f"s_waitcnt vmcnt({6 - 3 * j})")
        if j == 0:
            a(f"v_max3_u32 {v(TT)}, {v(SC)}, {v(SC + 1)}, {v(SC + 2)}")
        else:
            a(f"v_max3_u32 {v(TT)}, {v(TT)}, {v(SC + 3 * j)}, {v(SC + 3 * j + 1)}")
            a(f"v_max_u32 {v(TT)}, {v(TT)}, {v(SC + 3 * j + 2)}")
        if j == 2:
            a(f"v_cmp_eq_u32 vcc, -1, {v(TT)}")
        for k in range(6):
            c = v(E + k) if j else "0"
            a(f"v_dot2_f32_bf16 {v(E + k)}, {v(SC + 3 * j + k // 2)}, {s(sLO + k % 2)}, {c}")
    cx.retry("L_os_sre", 1)
    cx.tail.label("L_os_sre")
    score_loads(cx.tail)
    cx.tail("s_branch L_os_polls")
    cx.stamp(2)
    cx.stamp(5, 3)
    a.nop(1)
    a(f"v_max3_f32 {v(TT)}, {v(E)}, {v(E + 2)}, {v(E + 4)}")
    a(f"v_max3_f32 {v(TT + 1)}, {v(E + 1)}, {v(E + 3)}, {v(E + 5)}")
    DPP = ("quad_perm:[1,0,3,2]", "quad_perm:[2,3,0,1]", "row_half_mirror", "row_mirror")

    def across(op):
        for d in DPP:
            a.nop(1)
            for b in range(2):
                a(f"{op} {v(TT + b)}, {v(TT + b)}, {v(TT + b)} {d} row_mask:0xf bank_mask:0xf")
    across("v_max_f32_dpp")
    a(f"v_pk_mul_f32 {v(TT, 2)}, {v(TT, 2)}, {s(sSC, 2)}")
    for k in range(3):
        a(f"v_pk_fma_f32 {v(E + 2 * k, 2)}, {v(E + 2 * k, 2)}, {s(sSC, 2)}, {v(TT, 2)} neg_lo:[0,0,1] neg_hi:[0,0,1]")
    for k in range(6):
        a(f"v_exp_f32 {v(E + k)}, {v(E + k)}")
    a(f"v_pk_add_f32 {v(TT, 2)}, {v(E, 2)}, {v(E + 2, 2)}")
    a(f"v_pk_fma_f32 {v(TT, 2)}, {v(E + 4, 2)}, 0.5, {v(TT, 2)} op_sel_hi:[1,0,1]")
    a.nop(1)
    across("v_add_f32_dpp")
    a(f"v_rcp_f32 {v(TT)}, {v(TT)}")
    a(f"v_rcp_f32 {v(TT + 1)}, {v(TT + 1)}")
    a.nop(1)
    for k in range(3):
        a(f"v_pk_mul_f32 {v(E + 2 * k, 2)}, {v(E + 2 * k, 2)}, {v(TT, 2)}")
    for k in range(3):
        a(f"v_cvt_pk_bf16_f32 {v(PK + k)}, {v(E + 2 * k)}, {v(E + 2 * k + 1)}")
        if k == 1:
            a(f"ds_write2st64_b32 {v(vPW)}, {v(PK)}, {v(PK + 1)} offset1:2")
    a(f"ds_write_b32 {v(vPM)}, {v(PK + 2)}")
    a("s_waitcnt lgkmcnt(0)")
    cx.stamp(3)
    a("s_barrier")
    cx.stamp(4)
    cx.stamp(1, 5)
    a(f"buffer_store_dword {v(vNEG)}, {v(vDR)}, {s(R_CUR, 4)}, 0 offen")

    NR = cx.crounds

    def cloads(o, k):
        for x in range(7):
            o(f"buffer_load_dword {v(CR + 8 * k + x)}, {v(CA + x)}, {s(R_C, 4)}, 0 offen sc1")

    def csum(b, lo, hi):
        for x in range(lo, hi):
            a(f"v_dot2_f32_bf16 {v(E)}, {v(b + x)}, {s(sLO)}, {v(E2) if x == 0 else v(E)}")
            a(f"v_dot2_f32_bf16 {v(E + 1)}, {v(b + x)}, {s(sHI)}, {v(E2 + 1) if x == 0 else v(E + 1)}")

    for k in range(NR):
        a("s_barrier")
        cx.stamp(2 + min(k, 1), 5)
        cloads(a, k)
        if k == 0:
            a(f"ds_read_b32 {v(TT)}, {v(vOW)}")
            a("s_waitcnt lgkmcnt(0)")
            a(f"v_lshlrev_b32 {v(E2)}, 16, {v(TT)}")
            a(f"v_and_b32 {v(E2 + 1)}, 0xffff0000, {v(TT)}")
    tl = cx.tail
    for k in range(NR):
        b = CR + 8 * k
        a.label(f"L_os_c{k}")
        a(f"s_waitcnt vmcnt({7 * (NR - 1)})")
        cx.stamp(4, 5)
        for q in range(4):
            a(f"v_bitop3_b32 {v(PK + q)}, {v(b + 2 * q)}, {v(b + min(2 * q + 1, 6))}, {s(sPH)} bitop3:0x7e")
        a(f"v_or3_b32 {v(PK)}, {v(PK)}, {v(PK + 1)}, {v(PK + 2)}")
        a(f"v_bitop3_b32 {v(PK)}, {v(PK)}, {v(PK + 3)}, 1 bitop3:0xa8")
        a(f"v_cmp_ne_u32 vcc, 0, {v(PK)}")
        csum(b, 0, cx.cspec)
        a(f"s_cbranch_vccnz L_os_r{k}")
        a.label(f"L_os_g{k}")
        csum(b, cx.cspec, 7)
        a(f"s_add_u32 {s(sS)}, {s(sS)}, 1")
        a(f"s_xor_b32 {s(sCS)}, {s(sCS)}, {C_SLOT}")
        a(f"s_bfe_u32 {s(sPH)}, {s(sS)}, 0x10001")
        a(f"v_cvt_pk_bf16_f32 {v(TT)}, {v(E)}, {v(E + 1)}")
        a(f"buffer_store_short {v(TT)}, {v(vDW)}, {s(R_OTH, 4)}, 0 offen")
        a(f"buffer_store_short_d16_hi {v(TT)}, {v(vDW)}, {s(R_OTH, 4)}, 0 offen offset:32")
        if k < NR - 1:
            a("s_branch L_os_csum")
        tl.label(f"L_os_r{k}")
        if cx.diag:
            tl("s_add_u32 s96, s96, 1")
        tl(f"s_sub_u32 {s(sB)}, {s(sB)}, 1")
        tl(f"s_cbranch_scc1 L_os_x{k}")
        cloads(tl, k)
        tl(f"s_branch L_os_c{(k + 1) % NR}")
        tl.label(f"L_os_x{k}")
        tl(f"s_mov_b32 {s(sB)}, 0")
        tl(f"s_branch L_os_g{k}")
    a.label("L_os_csum")
    cx.stamp(5, 5)
    cx.stamp(5)
    slots_flip(a, R_CUR, R_OTH, sPS)
    set_base(a, R_C, sCS)
    if cx.ddma:
        for i in range(cx.fdel):
            a(f"v_mov_b32 {v(ACC + i)}, 0")
        a(f"buffer_store_dword {v(vCN)}, {v(vFD)}, {s(R_WS, 4)}, 0 offen")
    cx.save_stamps()
    cx.trace(150)
    a(f"s_cmp_lt_u32 {s(sS)}, 63")
    a("s_cbranch_scc1 L_os_loop")
    cx.dump_stamps(8, 1, 150)
    if cx.wb:
        a(f"s_or_b32 {s(sTMP)}, {s(sI)}, {s(sW)}")
        a("s_cbranch_scc1 L_os_end")
        if cx.wb > 1:
            a(f"s_sleep {cx.wb}")
        a("buffer_wbl2 sc1")
        a("s_waitcnt vmcnt(0)")
        a.label("L_os_end")
    a("s_endpgm")


def near_pick(cx, reg):
    a = cx.a
    a(f"v_mov_b32 {v(T2)}, {L_NEAR}")
    a(f"ds_read_b32 {v(T0)}, {v(T2)}")
    a("s_waitcnt lgkmcnt(0)")
    a(f"v_readfirstlane_b32 {s(reg)}, {v(T0)}")
    a.nop(2)
    a(f"s_lshl_b32 {s(reg)}, {s(reg)}, 12")
    a(f"s_and_b32 {s(reg)}, {s(reg)}, 8192")


def own_side(a, reg):
    a(f"s_lshl_b32 {s(sTMP)}, {s(sX)}, 11")
    a(f"s_and_b32 {s(sTMP)}, {s(sTMP)}, 8192")
    a(f"s_xor_b32 {s(reg)}, {s(reg)}, {s(sTMP)}")


def hint_addr(a, vHU):
    a(f"s_and_b32 {s(sM)}, {s(sW)}, 3")
    a(f"s_mul_i32 {s(sM)}, {s(sM)}, 12")
    a(f"s_add_u32 {s(sM)}, {s(sM)}, {s(sRING)}")
    a(f"s_lshl_b32 {s(sTMP)}, {s(sI)}, 7")
    a(f"s_add_u32 {s(sM)}, {s(sM)}, {s(sTMP)}")
    a(f"s_add_u32 {s(sM)}, {s(sM)}, {RING_FP + 128}")
    a(f"v_min_u32 {v(T2)}, 2, v0")
    a(f"v_lshl_add_u32 {v(vHU)}, {v(T2)}, 2, {s(sM)}")


def hint_wait(cx, vHU, tt, label, n=3):
    a = cx.a
    for k in range(n - 1):
        a(f"buffer_load_dword {v(tt + k)}, {v(vHU)}, {s(R_WS, 4)}, 0 offen sc1")
    a.label(label)
    for k in range(n):
        a(f"buffer_load_dword {v(tt + (k + n - 1) % n)}, {v(vHU)}, {s(R_WS, 4)}, 0 offen sc1")
        a(f"s_waitcnt vmcnt({n - 1})")
        a(f"v_cmp_ge_u32 vcc, {s(sS)}, {v(tt + k)}")
        if k < n - 1:
            a(f"s_cbranch_vccz {label}_ok")
    cx.retry(label)
    a.label(label + "_ok")


def u_wave(cx, n_init):
    a = cx.a
    vNEG, vL16, vUR, vPR, vIDP, vCW, vFV, vTR, vOW, vPR1, vHD, vHC, vCW2 = range(1, 14)
    TT = 28
    F = 32
    ACC = 80
    PA = 96
    UB = 100
    WO = 132
    sCS, sCS2, sPH, sVXO = sA, sB2, sC, sD
    HT = 228
    CWR = 230
    a(f"v_mov_b32 {v(vNEG)}, -1")
    a(f"v_lshlrev_b32 {v(vL16)}, 4, v0")
    a(f"s_lshl_b32 {s(sM)}, {s(sW)}, 11")
    a(f"s_add_u32 {s(sM)}, {s(sM)}, {L_UM - 4 * 2048}")
    a(f"v_lshl_add_u32 {v(vUR)}, v0, 3, {s(sM)}")
    a(f"s_lshl_b32 {s(sM)}, {s(sI)}, 2")
    a(f"s_add_u32 {s(sM)}, {s(sM)}, {s(sRING)}")
    a(f"s_add_u32 {s(sM)}, {s(sM)}, {RING_HD}")
    a(f"s_and_b32 {s(sTMP)}, {s(sW)}, 3")
    a(f"s_cselect_b32 {s(sM)}, {hex(OOB)}, {s(sM)}")
    a("v_cmp_gt_u32 vcc, 12, v0")
    a(f"v_mov_b32 {v(T2)}, {hex(OOB)}")
    a(f"v_lshl_add_u32 {v(T3)}, v0, 7, {s(sM)}")
    a(f"v_cndmask_b32 {v(vHD)}, {v(T2)}, {v(T3)}, vcc")
    a(f"v_mov_b32 {v(vHC)}, 0")
    a(f"buffer_store_dword {v(vHC)}, {v(vHD)}, {s(R_WS, 4)}, 0 offen")
    a(f"v_and_b32 {v(T2)}, 1, {v(T0)}")
    a(f"v_lshlrev_b32 {v(T3)}, 1, {v(T2)}")
    a(f"v_xor_b32 {v(T3)}, {v(T3)}, {v(T1)}")
    a(f"v_lshlrev_b32 {v(T3)}, 3, {v(T3)}")
    a(f"v_lshl_add_u32 {v(T3)}, {v(T2)}, 7, {v(T3)}")
    a(f"v_lshrrev_b32 {v(T2)}, 1, {v(T0)}")
    a(f"v_lshl_add_u32 {v(T3)}, {v(T2)}, 9, {v(T3)}")
    a(f"v_add_u32 {v(vPR)}, {L_P}, {v(T3)}")
    a(f"v_xor_b32 {v(vPR1)}, {256 + 64}, {v(vPR)}")
    a(f"v_mul_u32_u24 {v(vIDP)}, {hex(0xdede - 0x8484)}, {v(T5)}")
    a(f"v_add_u32 {v(vIDP)}, 0x8484, {v(vIDP)}")
    a(f"s_and_b32 {s(sE)}, {s(sW)}, 3")
    a(f"s_lshl_b32 {s(sM)}, {s(sI)}, 14")
    a(f"s_lshl_b32 {s(sTMP)}, {s(sE)}, 11")
    a(f"s_add_u32 {s(sM)}, {s(sM)}, {s(sTMP)}")
    a(f"s_lshl_b32 {s(sTMP)}, {s(sX)}, 8")
    a(f"s_add_u32 {s(sM)}, {s(sM)}, {s(sTMP)}")
    a(f"v_lshl_add_u32 {v(vCW)}, v0, 2, {s(sM)}")
    a(f"v_min_u32 {v(T2)}, 47, v0")
    a(f"s_add_u32 {s(sM)}, {s(sRING)}, {RING_FV}")
    a(f"v_lshl_add_u32 {v(vFV)}, {v(T2)}, 2, {s(sM)}")
    a(f"s_lshl_b32 {s(sTMP)}, {s(sE)}, 8")
    a(f"s_add_u32 {s(sTMP)}, {s(sTMP)}, {L_OWN}")
    a(f"v_lshl_add_u32 {v(vOW)}, v0, 2, {s(sTMP)}")
    for k in range(4 * cx.nrep):
        a(f"s_mov_b32 {s(sM)}, {hex(WS_C + (k >> 1 & 1) * C_SLOT + (k & 1) * 8192 + (k >> 2) * C_REP)}")
        a(f"buffer_store_dword {v(vNEG)}, {v(vCW)}, {s(R_WS, 4)}, {s(sM)} offen sc1")
    tr_addr(a, vTR)
    a(f"s_lshl_b32 {s(sTMP)}, {s(sE)}, 5")
    a(f"v_xor_b32 {v(vTR)}, {s(sTMP)}, {v(vTR)}")
    for h in range(4):
        a(f"v_mov_b32 {v(UB + 8 * h + 6)}, 0")
        a(f"v_mov_b32 {v(UB + 8 * h + 7)}, 0")
    a("s_waitcnt vmcnt(0)")
    signal_ready(cx, T0)
    for t in range(24):
        if t == 12:
            a(f"v_add_u32 {v(vTR)}, {12 * 4096}, {v(vTR)}")
        for u in range(2):
            a(f"ds_read_b64_tr_b16 {v(WO + 4 * t + 2 * u, 2)}, {v(vTR)} offset:{(t % 12) * 4096 + u * 512}")
        if t % 4 == 3:
            a("s_waitcnt lgkmcnt(4)")
    a("s_waitcnt lgkmcnt(0)")
    permute_columns(a, WO, 96, T0, T1)
    if cx.ptest:
        a("s_endpgm")
    wait_ready(cx, T0, n_init, 4, 1, keep=L_NEAR)

    a("s_setprio 2")

    def vflags(label, add):
        a(f"s_add_u32 {s(sTMP)}, {s(sS)}, {add}")
        a.label(label)
        a(f"buffer_load_dword {v(TT)}, {v(vFV)}, {s(R_WS, 4)}, 0 offen sc1")
        a("s_waitcnt vmcnt(0)")
        a(f"v_cmp_gt_u32 vcc, {s(sTMP)}, {v(TT)}")
        cx.retry(label)

    vx_setup(a, sM, sVXO)
    a("s_barrier")
    vx_dma(cx, vL16, sM, sVXO)
    near_pick(cx, sCS2)
    own_side(a, sCS2)
    a(f"v_add_u32 {v(vCW2)}, {s(sCS2)}, {v(vCW)}")
    a(f"v_xor_b32 {v(vCW)}, 8192, {v(vCW2)}")
    for r in range(1, cx.nrep):
        a(f"v_add_u32 {v(CWR + 2 * r)}, {r * C_REP}, {v(vCW)}")
        a(f"v_add_u32 {v(CWR + 2 * r + 1)}, {r * C_REP}, {v(vCW2)}")
    a(f"s_mov_b32 {s(sCS)}, {hex(WS_C)}")
    sub_srd(a, R_C, C_SLOT)
    set_base(a, R_C, sCS)
    a("s_waitcnt vmcnt(0)")
    a("s_barrier")

    a.label("L_ou_loop")

    def cvt_head(h):
        b = ACC + 8 * (h & 1)
        return [f"v_cvt_pk_bf16_f32 {v(UB + 8 * h + 4 * m + i)}, {v(b + 4 * m + 2 * i)}, {v(b + 4 * m + 2 * i + 1)}"
                for m in range(2) for i in range(2)]

    D = 10

    def rd(k):
        a(f"ds_read_b128 {v(F + 4 * (k % 12), 4)}, {v(vL16)} offset:{L_VX + k * 1024}")

    def mm(k):
        h, t, m = k // 12, (k % 12) // 2, k % 2
        acc = ACC + 8 * (h & 1) + 4 * m
        c = "0" if t == 0 else v(acc, 4)
        a(f"v_mfma_f32_16x16x32_bf16 {v(acc, 4)}, {v(F + 4 * (k % 12), 4)}, {v(WO + 4 * (6 * h + t), 4)}, {c}")
    for k in range(D):
        rd(k)
    pend = []
    nbar = 0
    for k in range(36):
        if k % 2 == 0:
            a(f"s_waitcnt lgkmcnt({D - 2})")
        mm(k)
        rd(k + D)
        if k % 12 == 4 and k > 12:
            pend = cvt_head(k // 12 - 1)
        if pend and k % 2 == 1:
            a(pend.pop(0))
        if k >= cx.bk and (k - cx.bk) % cx.bgap == 0 and (k - cx.bk) // cx.bgap < cx.crounds:
            a("s_barrier")
            nbar += 1
        if k == cx.hd:
            a(f"buffer_store_dword {v(vHC)}, {v(vHD)}, {s(R_WS, 4)}, 0 offen")
        if k == cx.vfk:
            a(f"buffer_load_dword {v(HT)}, {v(vFV)}, {s(R_WS, 4)}, 0 offen sc1")
    assert nbar == cx.crounds
    rd(46)
    rd(47)
    a.nop(4)
    for x in cvt_head(2):
        a(x)
    if cx.hd >= 36:
        a.nop(4 * (cx.hd - 36))
        a(f"buffer_store_dword {v(vHC)}, {v(vHD)}, {s(R_WS, 4)}, 0 offen")
    cx.stamp(5)
    cx.save_stamps()
    a(f"s_add_u32 {s(sTMP)}, {s(sS)}, 2")
    a(f"s_waitcnt vmcnt({1 if cx.hd > cx.vfk else 0}) lgkmcnt(0)")
    a(f"v_cmp_gt_u32 vcc, {s(sTMP)}, {v(HT)}")
    a("s_cbranch_vccnz L_ou_vwait")
    a.label("L_ou_vok")
    a("s_barrier")
    cx.stamp(0)
    vx_dma(cx, vL16, sM, sVXO, lambda n: [mm(36 + 3 * n + i) for i in range(3)] if n < 4 else None, 0, cx.d1)
    a.nop(2)
    for i in range(4):
        a(f"v_mov_b32 {v(PA + i)}, 0")
    a(f"v_add_u32 {v(vHC)}, 1, {v(vHC)}")
    a(f"s_bfe_u32 {s(sPH)}, {s(sS)}, 0x10001")
    for x in cvt_head(3):
        a(x)
    cx.stamp(1)
    if cx.b0:
        a("s_barrier")
    a("s_barrier")
    for h in range(4):
        a(f"ds_read_b64 {v(UB + 8 * h + 2, 2)}, {v(vUR)} offset:{h * 512}")
    cx.stamp(2)
    if cx.d1 < 12:
        vx_dma(cx, vL16, sM, sVXO, None, max(cx.d1, cx.d2), 12)
    a("s_waitcnt vmcnt(0) lgkmcnt(0)")
    a("s_barrier")
    for h in range(4):
        a(f"ds_read_b64_tr_b16 {v(F + 4 * h, 2)}, {v(vPR)} offset:{h * 1024}")
        a(f"ds_read_b64_tr_b16 {v(F + 4 * h + 2, 2)}, {v(vPR1)} offset:{h * 1024}")
    for h in range(4):
        a(f"s_waitcnt lgkmcnt({6 - 2 * h})")
        a(f"v_smfmac_f32_16x16x64_bf16 {v(PA, 4)}, {v(F + 4 * h, 4)}, {v(UB + 8 * h, 8)}, {v(vIDP)}")
    a(f"s_add_u32 {s(sS)}, {s(sS)}, 1")
    a.nop(7)
    a(f"v_pk_add_f32 {v(PA, 2)}, {v(PA, 2)}, {v(PA + 2, 2)}")
    a(f"v_cvt_pk_bf16_f32 {v(TT + 1)}, {v(PA)}, {v(PA + 1)}")
    a(f"v_and_or_b32 {v(TT)}, {v(TT + 1)}, -2, {s(sPH)}")
    for side, first in enumerate((vCW, vCW2)):
        for r in range(cx.nrep):
            a(f"buffer_store_dword {v(TT)}, {v(CWR + 2 * r + side if r else first)}, {s(R_C, 4)}, 0 offen sc1")
    a(f"ds_write_b32 {v(vOW)}, {v(TT)}")
    cx.stamp(4)
    a(f"s_xor_b32 {s(sCS)}, {s(sCS)}, {C_SLOT}")
    set_base(a, R_C, sCS)
    a(f"s_cmp_lt_u32 {s(sS)}, 63")
    a("s_cbranch_scc1 L_ou_loop")
    a(f"buffer_store_dword {v(vHC)}, {v(vHD)}, {s(R_WS, 4)}, 0 offen")
    a("s_waitcnt lgkmcnt(0)")
    for k in range(cx.crounds):
        a(f"s_sleep {6 if k == 0 else 3}")
        a("s_barrier")
    cx.dump_stamps(8)
    a("s_endpgm")
    a.label("L_ou_vwait")
    if cx.diag:
        a("s_add_u32 s97, s97, 1")
    vflags("L_ou_vf", 2)
    a("s_branch L_ou_vok")
```

```python
from common import *
from role_ax import flag_wait, lane0_addr

sC, sRING, sTMP, sM, sOB, sPO, sRO, sOO, sL = 62, 63, 64, 65, 66, 67, 68, 69, 70
PB = 1280
PSEG = 4 * 8 * 8 * PB


def role_ox(cx, n_init):
    a = cx.a
    vL16, vFB, vFO, vFC, vFCR, vPW, vPW2, vPR, vOUT, vCNT, vSTG, vTR = range(1, 13)
    T0, T1, T2, T3, T4 = 13, 14, 15, 16, 17
    F = 20
    ACC = 52
    W0, W1 = 64, 160
    a.label("L_role_ox")
    a(f"s_sub_u32 {s(sC)}, {s(sT)}, {N_P + N_O + N_AX}")
    a(f"s_lshl_b32 {s(sRING)}, {s(sX)}, {RING_SH}")
    a(f"s_add_u32 {s(sRING)}, {s(sRING)}, {hex(WS_RING)}")
    srd(a, R_0, P_WO, 6144 * 640 * 2)
    a(f"v_lshlrev_b32 {v(vL16)}, 4, v0")
    a(f"s_add_u32 {s(sM)}, {s(sRING)}, {RING_FB}")
    a(f"v_and_b32 {v(T2)}, 3, v0")
    a(f"v_lshl_add_u32 {v(vFB)}, {v(T2)}, 2, {s(sM)}")
    a(f"s_lshl_b32 {s(sM)}, {s(sC)}, 2")
    a(f"s_add_u32 {s(sM)}, {s(sM)}, {s(sRING)}")
    a(f"s_add_u32 {s(sM)}, {s(sM)}, {RING_FO}")
    a(f"s_cmp_eq_u32 {s(sW)}, 4")
    a(f"s_cselect_b32 {s(sM)}, {s(sM)}, {hex(OOB)}")
    lane0_addr(a, vFO, sM, T2, T3)
    a(f"s_lshl_b32 {s(sM)}, {s(sC)}, 10")
    a(f"s_add_u32 {s(sM)}, {s(sM)}, {hex(WS_FC)}")
    a(f"s_lshl_b32 {s(sTMP)}, {s(sX)}, 7")
    a(f"s_add_u32 {s(sM)}, {s(sM)}, {s(sTMP)}")
    a(f"s_cmp_eq_u32 {s(sW)}, 4")
    a(f"s_cselect_b32 {s(sM)}, {s(sM)}, {hex(OOB)}")
    lane0_addr(a, vFC, sM, T2, T3)
    a(f"v_mov_b32 {v(vCNT)}, 0")
    a(f"buffer_store_dword {v(vCNT)}, {v(vFO)}, {s(R_WS, 4)}, 0 offen")
    a(f"buffer_store_dword {v(vCNT)}, {v(vFC)}, {s(R_WS, 4)}, 0 offen sc1")
    a(f"v_lshrrev_b32 {v(T0)}, 4, v0")
    a(f"v_bfe_u32 {v(T2)}, v0, 2, 2")
    a(f"v_mul_u32_u24 {v(T2)}, {8 * PB}, {v(T2)}")
    a(f"v_lshrrev_b32 {v(T3)}, 1, {v(T0)}")
    a(f"v_lshl_add_u32 {v(T2)}, {v(T3)}, 6, {v(T2)}")
    a(f"v_and_b32 {v(T3)}, 3, v0")
    a(f"v_lshl_add_u32 {v(T2)}, {v(T3)}, 4, {v(T2)}")
    a(f"v_and_b32 {v(T3)}, 1, {v(T0)}")
    a(f"v_mul_u32_u24 {v(T1)}, {32 * PB}, {v(T3)}")
    a(f"s_mul_i32 {s(sM)}, {s(sX)}, {PB}")
    a(f"s_lshl_b32 {s(sTMP)}, {s(sW)}, 7")
    a(f"s_add_u32 {s(sTMP)}, {s(sTMP)}, {s(sM)}")
    a(f"v_add3_u32 {v(vPW)}, {s(sTMP)}, {v(T2)}, {v(T1)}")
    a(f"s_lshr_b32 {s(sTMP)}, {s(sW)}, 1")
    a(f"s_lshl_b32 {s(sTMP)}, {s(sTMP)}, 7")
    a(f"s_add_u32 {s(sM)}, {s(sM)}, {s(sTMP)}")
    a(f"s_and_b32 {s(sTMP)}, {s(sW)}, 1")
    a(f"s_mul_i32 {s(sTMP)}, {s(sTMP)}, {32 * PB}")
    a(f"s_add_u32 {s(sM)}, {s(sM)}, {s(sTMP)}")
    a(f"s_add_u32 {s(sM)}, {s(sM)}, 1024")
    a(f"v_lshl_add_u32 {v(T2)}, {v(T3)}, 3, {v(T2)}")
    a(f"v_add_u32 {v(vPW2)}, {s(sM)}, {v(T2)}")
    a(f"s_mul_i32 {s(sTMP)}, {s(sC)}, 320")
    a(f"v_lshrrev_b32 {v(T1)}, 3, v0")
    a(f"v_and_b32 {v(T2)}, 2, {v(T1)}")
    a(f"s_and_b32 {s(sM)}, {s(sW)}, 1")
    a(f"s_lshl_b32 {s(sM)}, {s(sM)}, 2")
    a(f"v_or_b32 {v(T2)}, {s(sM)}, {v(T2)}")
    a(f"v_and_b32 {v(T3)}, 7, v0")
    a(f"v_xor_b32 {v(T2)}, {v(T2)}, {v(T3)}")
    a(f"v_lshlrev_b32 {v(T2)}, 4, {v(T2)}")
    a(f"s_mul_i32 {s(sM)}, {s(sX)}, 768")
    a(f"s_lshl_b32 {s(sL)}, {s(sW)}, 3")
    a(f"s_add_u32 {s(sM)}, {s(sM)}, {s(sL)}")
    a(f"v_add_u32 {v(T1)}, {s(sM)}, {v(T1)}")
    a(f"v_mul_u32_u24 {v(T1)}, 1280, {v(T1)}")
    a(f"v_add3_u32 {v(vSTG)}, {v(T1)}, {v(T2)}, {s(sTMP)}")
    a(f"v_bfe_u32 {v(T1)}, v0, 2, 2")
    a(f"v_and_b32 {v(T2)}, 2, {v(T1)}")
    a(f"v_and_b32 {v(T3)}, 1, {v(T0)}")
    a(f"v_lshl_or_b32 {v(T2)}, {v(T3)}, 2, {v(T2)}")
    a(f"v_bfe_u32 {v(T3)}, v0, 1, 1")
    a(f"v_or_b32 {v(T2)}, {v(T2)}, {v(T3)}")
    a(f"v_lshlrev_b32 {v(T2)}, 4, {v(T2)}")
    a(f"v_lshl_add_u32 {v(T2)}, {v(T0)}, 10, {v(T2)}")
    a(f"v_lshl_add_u32 {v(T2)}, {v(T1)}, 7, {v(T2)}")
    a(f"v_and_b32 {v(T3)}, 1, v0")
    a(f"v_lshl_add_u32 {v(vTR)}, {v(T3)}, 3, {v(T2)}")
    a("s_waitcnt vmcnt(0)")
    signal_ready(cx, T0)
    help_fetch(cx, 250)
    wait_ready(cx, T0, n_init, 0, 16 if cx.oxw else False, True)
    a("s_barrier")

    def trread(reg):
        for t in range(24):
            if t == 12:
                a(f"v_add_u32 {v(T0)}, {12 * 4096}, {v(T0)}")
            for u in range(2):
                a(f"ds_read_b64_tr_b16 {v(reg + 4 * t + 2 * u, 2)}, {v(T0)} offset:{(t % 12) * 4096 + u * 512}")
            if t % 4 == 3:
                a("s_waitcnt lgkmcnt(4)")
        a("s_waitcnt lgkmcnt(0)")

    a(f"s_lshl_b32 {s(sL)}, {s(sW)}, 10")
    for p, colb in enumerate((0, 128, 192)):
        for z in range(12):
            a(f"s_add_u32 m0, {s(sL)}, {z * 8192}")
            a(f"s_mov_b32 {s(sM)}, {z * 64 * 1280 + colb}")
            a(f"buffer_load_dwordx4 {v(vSTG)}, {s(R_0, 4)}, {s(sM)} offen{' nt' if cx.oxnt else ''} lds")
        a("s_waitcnt vmcnt(0)")
        a("s_barrier")
        skip = f"L_ox_p{p}"
        a(f"s_cmp_{'lt' if p == 1 else 'ge'}_u32 {s(sW)}, 4")
        a(f"s_cbranch_scc1 {skip}")
        if p < 2:
            a(f"s_and_b32 {s(sM)}, {s(sW)}, 3")
        else:
            a(f"s_lshr_b32 {s(sM)}, {s(sW)}, 1")
            a(f"s_add_u32 {s(sM)}, {s(sM)}, 2")
        a(f"s_lshl_b32 {s(sM)}, {s(sM)}, 5")
        a(f"v_xor_b32 {v(T0)}, {s(sM)}, {v(vTR)}")
        trread(W1 if p == 2 else W0)
        a.label(skip)
        a("s_barrier")
    a(f"s_mul_i32 {s(sL)}, {s(sW)}, 3072")
    a(f"s_mul_i32 {s(sOB)}, {s(sX)}, {4 * BLK}")
    a(f"s_add_u32 {s(sOB)}, {s(sOB)}, {s(sL)}")
    a(f"s_add_u32 {s(sOB)}, {s(sOB)}, {hex(WS_O)}")
    a(f"s_mul_i32 {s(sPO)}, {s(sC)}, {8 * 8 * PB}")
    a(f"s_add_u32 {s(sPO)}, {s(sPO)}, {hex(WS_PART)}")
    a(f"s_mov_b32 {s(sS)}, 0")
    a(f"s_cmp_ge_u32 {s(sW)}, 4")
    a("s_cbranch_scc1 L_ox_b")
    a(f"s_bitcmp1_b32 {s(sW)}, 0")
    a("s_cbranch_scc1 L_ox_a1")

    def body(tag, extra):
        lead = extra is None

        def stores():
            if cx.xp & 4:
                return
            a(f"buffer_store_dwordx4 {v(ACC, 4)}, {v(vPW)}, {s(R_WS, 4)}, {s(sPO)} offen sc1")
            if not lead:
                a(f"buffer_store_dwordx2 {v(ACC + 4, 2)}, {v(vPW2)}, {s(R_WS, 4)}, {s(sPO)} offen sc1")
            a(f"s_add_u32 {s(sPO)}, {s(sPO)}, {PSEG}")

        def fb_addr(add):
            a(f"s_add_u32 {s(sTMP)}, {s(sS)}, {add}")
            a(f"s_and_b32 {s(sTMP)}, {s(sTMP)}, 3")
            a(f"s_lshl_b32 {s(sTMP)}, {s(sTMP)}, 4")
            a(f"v_add_u32 {v(T3)}, {s(sTMP)}, {v(vFB)}")
        if lead:
            fb_addr(0)
            a(f"v_mov_b32 {v(T4)}, 0")
        a.label(f"L_ox_loop{tag}")
        cx.stamp(0)
        if lead:
            a(f"s_cmp_lg_u32 {s(sW)}, 4")
            a("s_cbranch_scc1 L_ox_bok")
            a(f"s_add_u32 {s(sM)}, {s(sS)}, 1")
            a(f"v_cmp_gt_i32 vcc, {s(sM)}, {v(T4)}")
            a("s_cbranch_vccz L_ox_bok")
            flag_wait(cx, T3, T4, sM, "L_ox_wb", 1)
            a.label("L_ox_bok")
        a("s_barrier")
        cx.stamp(1)
        for half in range(2):
            a(f"s_add_u32 m0, {s(sL)}, {half * 24576}")
            a(f"s_add_u32 {s(sTMP)}, {s(sOB)}, {half * 24576}")
            for o in range(3):
                a(f"buffer_load_dwordx4 {v(vL16)}, {s(R_WS, 4)}, {s(sTMP)} offen offset:{o * 1024} sc1 lds")
        ring_next(a, sOB, WS_O, SEGSTR, cx.rq)
        for half in range(2):
            a(f"s_waitcnt vmcnt({3 if half == 0 else 0})")
            a("s_barrier")
            cx.stamp(2 + half)
            D = 6

            def rd(k):
                a(f"ds_read_b128 {v(F + 4 * (k % 8), 4)}, {v(vL16)} offset:{half * 24576 + k * 1024}")
            for k in range(D):
                rd(k)
            if half == 0:
                a(f"s_cmp_eq_u32 {s(sS)}, 0")
                a(f"s_cbranch_scc1 L_ox_ns{tag}")
                stores()
                a.label(f"L_ox_ns{tag}")
            elif lead:
                a(f"buffer_store_dword {v(vCNT)}, {v(vFC)}, {s(R_WS, 4)}, 0 offen sc1")
                a(f"v_add_u32 {v(vCNT)}, 1, {v(vCNT)}")
                a(f"buffer_store_dword {v(vCNT)}, {v(vFO)}, {s(R_WS, 4)}, 0 offen")
                fb_addr(1)
            for k in range(24):
                t, m = 12 * half + k // 2, k % 2
                if m == 0:
                    a(f"s_waitcnt lgkmcnt({min(D - 2, 22 - k)})")
                c = "0" if t == 0 else v(ACC + 4 * m, 4)
                if cx.xp & 8:
                    continue
                a(f"v_mfma_f32_16x16x32_bf16 {v(ACC + 4 * m, 4)}, {v(W0 + 4 * t, 4)}, {v(F + 4 * (k % 8), 4)}, {c}")
                if m == extra:
                    c = "0" if t == 0 else v(ACC + 8, 4)
                    a(f"v_mfma_f32_16x16x32_bf16 {v(ACC + 8, 4)}, {v(W1 + 4 * t, 4)}, {v(F + 4 * (k % 8), 4)}, {c}")
                if k + D < 24:
                    rd(k + D)
                if lead and half == 1 and k == 10:
                    a(f"buffer_load_dword {v(T4)}, {v(T3)}, {s(R_WS, 4)}, 0 offen sc1")
        cx.stamp(4)
        a.nop(8)
        for i in range(4 if lead else 6):
            a(f"v_cvt_pk_bf16_f32 {v(ACC + i)}, {v(ACC + 2 * i)}, {v(ACC + 2 * i + 1)}")
        a.nop(1)
        a(f"v_permlane16_swap_b32 {v(ACC)}, {v(ACC + 2)}")
        a(f"v_permlane16_swap_b32 {v(ACC + 1)}, {v(ACC + 3)}")
        if lead:
            a("s_waitcnt vmcnt(0)")
        cx.stamp(5)
        a(f"s_add_u32 {s(sS)}, {s(sS)}, 1")
        cx.save_stamps()
        a(f"s_cmp_lt_u32 {s(sS)}, 64")
        a(f"s_cbranch_scc1 L_ox_loop{tag}")
        stores()
        cx.dump_stamps(8, 14)
        a("s_endpgm")

    body("a0", 0)
    a.label("L_ox_a1")
    body("a1", 1)
    a.label("L_ox_b")
    body("b", None)


def reducer_init(cx, sC, vt):
    a = cx.a
    a(f"s_lshl_b32 {s(sM)}, {s(sC)}, 3")
    a(f"s_add_u32 {s(sM)}, {s(sM)}, {s(sX)}")
    a(f"s_lshl_b32 {s(sM)}, {s(sM)}, 3")
    a(f"s_add_u32 {s(sM)}, {s(sM)}, {s(sW)}")
    a(f"s_mul_i32 {s(sM)}, {s(sM)}, {PB}")
    a(f"s_add_u32 {s(sM)}, {s(sM)}, {hex(WS_PART + 63 * PSEG)}")
    a(f"v_lshlrev_b32 {v(vt)}, 2, v0")
    a(f"v_mov_b32 {v(vt + 1)}, -1")
    for k in range(5):
        a(f"buffer_store_dword {v(vt + 1)}, {v(vt)}, {s(R_WS, 4)}, {s(sM)} offen offset:{256 * k} sc1")


def reducer(cx, sC):
    a = cx.a
    vPR, vOUT, vFCR, vFP, vLD = 1, 2, 3, 4, 9
    T0, T1, T2, T3 = 5, 6, 7, 8
    RD, SM = 12, 44
    sLAST = sL
    srd(a, R_1, P_OUT, 2048 * 1280 * 2)
    a(f"s_lshl_b32 {s(sM)}, {s(sC)}, 10")
    a(f"s_add_u32 {s(sM)}, {s(sM)}, {hex(WS_FC)}")
    a(f"v_and_b32 {v(T2)}, 7, v0")
    a(f"v_lshl_add_u32 {v(vFCR)}, {v(T2)}, 7, {s(sM)}")
    a(f"s_lshl_b32 {s(sM)}, {s(sX)}, {RING_SH}")
    a(f"s_add_u32 {s(sM)}, {s(sM)}, {hex(WS_RING + RING_FP)}")
    a(f"v_mov_b32 {v(vFP)}, {s(sM)}")
    a(f"s_and_b32 {s(sTMP)}, {s(sW)}, 1")
    a(f"s_mul_i32 {s(sTMP)}, {s(sTMP)}, 40")
    a(f"v_add_u32 {v(T1)}, {s(sTMP)}, v0")
    a("v_cmp_gt_u32 vcc, 40, v0")
    a(f"s_mul_i32 {s(sM)}, {s(sX)}, {8 * PB}")
    a(f"v_lshl_add_u32 {v(T2)}, {v(T1)}, 4, {s(sM)}")
    a(f"v_mov_b32 {v(vOUT)}, {hex(OOB)}")
    a(f"v_cndmask_b32 {v(vPR)}, {v(vOUT)}, {v(T2)}, vcc")
    a(f"v_and_b32 {v(T3)}, 3, v0")
    a(f"v_mul_u32_u24 {v(T3)}, 2560, {v(T3)}")
    a(f"v_lshrrev_b32 {v(T1)}, 2, {v(T1)}")
    a(f"v_lshl_add_u32 {v(T3)}, {v(T1)}, 4, {v(T3)}")
    a(f"s_mul_i32 {s(sM)}, {s(sX)}, {4 * 2560}")
    a(f"s_mul_i32 {s(sTMP)}, {s(sC)}, 320")
    a(f"s_add_u32 {s(sM)}, {s(sM)}, {s(sTMP)}")
    a(f"s_add_u32 {s(sM)}, {s(sM)}, 1280")
    a(f"v_add_u32 {v(T3)}, {s(sM)}, {v(T3)}")
    a(f"v_cndmask_b32 {v(vOUT)}, {v(vOUT)}, {v(T3)}, vcc")
    a(f"s_lshr_b32 {s(sS)}, {s(sW)}, 1")
    a(f"s_mul_i32 {s(sRO)}, {s(sC)}, {8 * 8 * PB}")
    a(f"s_mul_i32 {s(sTMP)}, {s(sS)}, {PSEG}")
    a(f"s_add_u32 {s(sRO)}, {s(sRO)}, {s(sTMP)}")
    a(f"s_add_u32 {s(sRO)}, {s(sRO)}, {hex(WS_PART)}")
    a("s_mov_b32 s40, 0x3f80")
    a("s_mov_b32 s41, 0x3f800000")
    sDONE, sRDY = sOB, sPO
    a(f"v_and_b32 {v(vLD)}, 7, v0")
    a(f"v_lshlrev_b32 {v(vLD)}, 2, {v(vLD)}")
    a(f"s_mov_b32 {s(sLAST)}, 0")
    a(f"s_mov_b32 {s(sDONE)}, 0")
    a(f"s_mov_b32 {s(sRDY)}, 0")
    a.label("L_red_loop")
    a("s_barrier")
    a(f"s_cmp_lg_u32 {s(sW)}, 0")
    a("s_cbranch_scc1 L_red_nw")
    a("s_mov_b64 exec, 0xff")
    a.label("L_red_tick")
    a(f"s_add_u32 {s(sM)}, {s(sLAST)}, 1")
    a(f"s_min_u32 {s(sM)}, {s(sM)}, 64")
    flag_wait(cx, vFP, T3, sM, "L_red_t", cx.rsleep)
    a(f"v_readfirstlane_b32 {s(sLAST)}, {v(T3)}")
    a(f"s_add_u32 {s(sM)}, {s(sDONE)}, 4")
    a(f"s_cmp_ge_u32 {s(sRDY)}, {s(sM)}")
    a("s_cbranch_scc1 L_red_have")
    a(f"buffer_load_dword {v(T0)}, {v(vFCR)}, {s(R_WS, 4)}, 0 offen sc1")
    a("s_waitcnt vmcnt(0)")
    a(f"v_cmp_ge_u32 vcc, {s(sDONE)}, {v(T0)}")
    cx.retry("L_red_tick")
    a(f"s_cmp_eq_u32 {s(sB)}, 0")
    a(f"s_cselect_b32 {s(sM)}, 63, 0")
    a(f"v_max_u32 {v(T0)}, {s(sM)}, {v(T0)}")
    a(f"ds_write_b32 {v(vLD)}, {v(T0)}")
    a("s_waitcnt lgkmcnt(0)")
    a.label("L_red_have")
    a("s_mov_b64 exec, -1")
    a.label("L_red_nw")
    a("s_barrier")
    a(f"ds_read_b32 {v(T1)}, {v(vLD)}")
    a("s_waitcnt lgkmcnt(0)")
    for d in ("quad_perm:[1,0,3,2]", "quad_perm:[2,3,0,1]", "row_half_mirror"):
        a(f"v_min_u32_dpp {v(T1)}, {v(T1)}, {v(T1)} {d} row_mask:0xf bank_mask:0xf")
        a.nop(2)
    a(f"v_readfirstlane_b32 {s(sRDY)}, {v(T1)}")
    a(f"s_add_u32 {s(sDONE)}, {s(sDONE)}, 4")
    a.nop(2)
    a(f"s_min_u32 {s(sDONE)}, {s(sDONE)}, {s(sRDY)}")
    a(f"s_cmp_ge_u32 {s(sS)}, {s(sDONE)}")
    a("s_cbranch_scc1 L_red_next")

    def loads():
        for x in range(8):
            if x % 4 == 0:
                a(f"s_add_u32 {s(sTMP)}, {s(sRO)}, {x * PB}")
            a(f"buffer_load_dwordx4 {v(RD + 4 * x, 4)}, {v(vPR)}, {s(R_WS, 4)}, {s(sTMP)} offen offset:{(x & 3) * PB} sc1")

    def finish(check):
        a(f"s_mul_i32 {s(sOO)}, {s(sS)}, {32 * 2560}")
        for x in range(8):
            a(f"s_waitcnt vmcnt({7 - x})")
            if check:
                for i in range(2):
                    r = RD + 4 * x + 2 * i
                    a(f"v_max3_u32 {v(T1)}, {v(r)}, {v(r + 1)}, {v(T1) if x + i else 0}")
            for i in range(8):
                a(f"v_dot2_f32_bf16 {v(SM + i)}, {v(RD + 4 * x + i // 2)}, s{40 + i % 2}, {v(SM + i) if x else 0}")
        if check:
            a(f"v_cmp_eq_u32 vcc, -1, {v(T1)}")
            cx.retry(check)
        else:
            a(f"s_add_u32 {s(sS)}, {s(sS)}, 4")
        for i in range(4):
            a(f"v_cvt_pk_bf16_f32 {v(SM + 8 + i)}, {v(SM + 2 * i)}, {v(SM + 2 * i + 1)}")
        a(f"buffer_store_dwordx4 {v(SM + 8, 4)}, {v(vOUT)}, {s(R_1, 4)}, {s(sOO)} offen")
    loads()
    a(f"s_add_u32 {s(sRO)}, {s(sRO)}, {4 * PSEG}")
    finish(None)
    a.label("L_red_next")
    a(f"s_cmp_lt_u32 {s(sDONE)}, 63")
    a("s_cbranch_scc1 L_red_loop")
    a(f"s_cmp_lg_u32 {s(sS)}, 63")
    a("s_cbranch_scc1 L_red_end")
    a.label("L_red_last")
    loads()
    finish("L_red_last")
    a.label("L_red_end")
    cx.dump_stamps(8, 14)
    a("s_endpgm")
```

```python
from common import *
import role_ax

STG = 49152
XB0, XB1 = 98304, 0
L_MEM = 147456
L_QKX = 157696
L_KX = 49152

sH, sJ, sHH, sRING = 61, 62, 63, 64
sQ, sK, sPAR, sPARO, sXO, sM = 65, 66, 67, 68, 69, 70
sTMP = 71
sRE = sPARO
R_CUR, R_OTH = R_0, R_1

vXA0, vXA1, vMEM, vIDX, vNEG, vGST = 1, 2, 3, 4, 5, 6
vKXW, vKXR, vQKW, vQKR, vSC, vKM, vFQ = 7, 8, 9, 10, 11, 12, 13
vXG, vDG4, vDG1, vDL4, vDL1, vVR, vVP, vFL, vRS = 7, 8, 9, 10, 11, 12, 13, 14, 15
F = 16
ACC = 56
KXO = 72
XO = 80
CV = 88
W0 = 96
W1 = 176
T0, T1, T2, T3, T4, T5 = 56, 57, 58, 59, 60, 61
vSTV = 64
vSTG, vTR = 62, 63


def stage_chunk(a, cc):
    buf = (cc % 3) * STG
    for hi in range(2):
        for M in (0, 2, 1):
            a(f"s_add_u32 m0, {s(sTMP)}, {buf + M * 16384 + hi * 8192}")
            a(f"s_mov_b32 {s(sM)}, {(128 * cc + 64 * hi) * 12288}")
            a(f"buffer_load_dwordx4 {v(vSTV if M == 2 else vSTG)}, {s(R_0 + 4 * M, 4)}, {s(sM)} offen nt lds")


def read_chunk(a, cc, tiles):
    buf = (cc % 3) * STG
    a(f"v_add_u32 {v(T0)}, {buf}, {v(vTR)}")
    n = 0
    for M, reg in tiles:
        for tl in range(4):
            for u in range(2):
                r = reg + (4 * cc + tl) * 4 + 2 * u
                a(f"ds_read_b64_tr_b16 {v(r, 2)}, {v(T0)} offset:{M * 16384 + tl * 4096 + u * 512}")
                n += 1
                if n % 12 == 0:
                    a("s_waitcnt lgkmcnt(4)")
    a("s_waitcnt lgkmcnt(0)")


def x_dma(a, k):
    if k:
        a("s_add_u32 m0, m0, 896")
        a("s_nop 0")
    a(f"buffer_load_dwordx4 {v(vXG)}, {s(R_3, 4)}, {s(sXO)} offen offset:{128 * k} lds")


def xread(a, t, m):
    slot = (2 * t + m) % 10
    a(f"ds_read_b128 {v(F + 4 * slot, 4)}, {v(vXA0 + (t & 1))} offset:{m * 20480 + (t >> 1) * 1024}")


NOBG = 0


def background(a, tiles, hook=None):
    D = 4
    for t in range(D):
        xread(a, t, 0)
        xread(a, t, 1)
    for t in range(20):
        ahead = min(D - 1, 19 - t)
        a(f"s_waitcnt lgkmcnt({2 * ahead})")
        first = True
        for m in range(2):
            for ti, reg in enumerate(tiles):
                acc = ACC + 8 * ti + 4 * m
                slot = (2 * t + m) % 10
                c = "0" if t == 0 else v(acc, 4)
                if not NOBG or t == 0:
                    a(f"v_mfma_f32_16x16x32_bf16 {v(acc, 4)}, {v(reg + 4 * t, 4)}, {v(F + 4 * slot, 4)}, {c}")
                if first and t + D < 20:
                    xread(a, t + D, 0)
                    xread(a, t + D, 1)
                first = False
        if hook:
            hook(t)


def common_addr(cx):
    a = cx.a
    a(f"s_mul_i32 {s(sH)}, {s(sT)}, 11")
    a(f"s_lshr_b32 {s(sH)}, {s(sH)}, 5")
    a(f"s_mul_i32 {s(sJ)}, {s(sH)}, 3")
    a(f"s_sub_u32 {s(sJ)}, {s(sT)}, {s(sJ)}")
    a(f"s_lshl_b32 {s(sHH)}, {s(sX)}, 2")
    a(f"s_add_u32 {s(sHH)}, {s(sHH)}, {s(sH)}")
    a(f"s_lshl_b32 {s(sRING)}, {s(sX)}, {RING_SH}")
    a(f"s_add_u32 {s(sRING)}, {s(sRING)}, {hex(WS_RING)}")
    srd(a, R_0, P_WQ, 640 * 6144 * 2)
    srd(a, R_1, P_WK, 640 * 6144 * 2)
    srd(a, R_2, P_WV, 640 * 6144 * 2)
    srd(a, R_3, P_BX, 2048 * 640 * 2)
    a(f"v_lshrrev_b32 {v(T0)}, 3, v0")
    a(f"v_and_b32 {v(T1)}, 2, {v(T0)}")
    a(f"s_and_b32 {s(sTMP)}, {s(sW)}, 1")
    a(f"s_lshl_b32 {s(sTMP)}, {s(sTMP)}, 2")
    a(f"v_or_b32 {v(T1)}, {s(sTMP)}, {v(T1)}")
    a(f"v_and_b32 {v(T2)}, 7, v0")
    a(f"v_xor_b32 {v(T1)}, {v(T1)}, {v(T2)}")
    a(f"v_lshlrev_b32 {v(T1)}, 4, {v(T1)}")
    a(f"s_lshl_b32 {s(sTMP)}, {s(sW)}, 3")
    a(f"v_add_u32 {v(T0)}, {s(sTMP)}, {v(T0)}")
    a(f"v_mul_u32_u24 {v(T0)}, 12288, {v(T0)}")
    a(f"s_mul_i32 {s(sTMP)}, {s(sHH)}, 384")
    a(f"s_lshl_b32 {s(sM)}, {s(sJ)}, 7")
    a(f"s_add_u32 {s(sTMP)}, {s(sTMP)}, {s(sM)}")
    a(f"v_add3_u32 {v(vSTG)}, {v(T0)}, {v(T1)}, {s(sTMP)}")
    a(f"s_cmp_eq_u32 {s(sJ)}, 2")
    a(f"s_cselect_b32 {s(sM)}, -2, 1")
    a(f"s_lshl_b32 {s(sTMP)}, {s(sM)}, 7")
    a(f"v_add_u32 {v(vSTV)}, {s(sTMP)}, {v(vSTG)}")
    a(f"s_cmp_ge_u32 {s(sW)}, 4")
    a(f"s_cselect_b32 {s(sM)}, {s(sM)}, 0")
    a(f"s_add_u32 {s(sJ)}, {s(sJ)}, {s(sM)}")
    a(f"v_lshrrev_b32 {v(T0)}, 4, v0")
    a(f"v_bfe_u32 {v(T1)}, v0, 2, 2")
    a(f"v_and_b32 {v(T2)}, 2, {v(T1)}")
    a(f"v_and_b32 {v(T3)}, 1, {v(T0)}")
    a(f"v_lshl_or_b32 {v(T2)}, {v(T3)}, 2, {v(T2)}")
    a(f"v_bfe_u32 {v(T3)}, v0, 1, 1")
    a(f"s_and_b32 {s(sTMP)}, {s(sW)}, 3")
    a(f"s_lshl_b32 {s(sTMP)}, {s(sTMP)}, 1")
    a(f"v_or_b32 {v(T3)}, {s(sTMP)}, {v(T3)}")
    a(f"v_xor_b32 {v(T2)}, {v(T2)}, {v(T3)}")
    a(f"v_lshlrev_b32 {v(T2)}, 4, {v(T2)}")
    a(f"v_lshl_add_u32 {v(T2)}, {v(T0)}, 10, {v(T2)}")
    a(f"v_lshl_add_u32 {v(T2)}, {v(T1)}, 7, {v(T2)}")
    a(f"v_and_b32 {v(T3)}, 1, v0")
    a(f"v_lshl_add_u32 {v(vTR)}, {v(T3)}, 3, {v(T2)}")
    a(f"v_and_b32 {v(T1)}, 15, v0")
    a(f"v_lshrrev_b32 {v(T2)}, 1, {v(T1)}")
    a(f"v_xor_b32 {v(T2)}, {v(T2)}, {v(T0)}")
    a(f"v_lshlrev_b32 {v(T2)}, 4, {v(T2)}")
    a(f"v_and_b32 {v(T3)}, 7, v0")
    a(f"v_lshl_add_u32 {v(T2)}, {v(T3)}, 7, {v(T2)}")
    a(f"v_bfe_u32 {v(T3)}, v0, 3, 1")
    a(f"v_mul_u32_u24 {v(T3)}, 10240, {v(T3)}")
    a(f"v_add_u32 {v(T2)}, {v(T2)}, {v(T3)}")
    a(f"v_add_u32 {v(vXA0)}, {XB0}, {v(T2)}")
    a(f"v_xor_b32 {v(vXA1)}, 64, {v(vXA0)}")
    a(f"v_and_b32 {v(T2)}, 60, v0")
    a(f"v_and_b32 {v(T3)}, 1, v0")
    a(f"v_lshl_or_b32 {v(T2)}, {v(T3)}, 1, {v(T2)}")
    a(f"v_bfe_u32 {v(T3)}, v0, 1, 1")
    a(f"v_or_b32 {v(T2)}, {v(T2)}, {v(T3)}")
    a(f"v_lshlrev_b32 {v(vMEM)}, 4, {v(T2)}")
    a(f"v_add_u32 {v(vMEM)}, {L_MEM}, {v(vMEM)}")
    a(f"v_bfe_u32 {v(T3)}, v0, 1, 1")
    a(f"v_mul_u32_u24 {v(vIDX)}, 0xaaaa, {v(T3)}")
    a(f"v_add_u32 {v(vIDX)}, 0x4444, {v(vIDX)}")
    a(f"v_mov_b32 {v(vNEG)}, -1")
    a(f"s_and_b32 {s(sTMP)}, {s(sW)}, 3")
    a(f"s_lshr_b32 {s(sM)}, {s(sTMP)}, 1")
    a(f"s_lshl_b32 {s(sM)}, {s(sM)}, 11")
    a(f"s_and_b32 {s(sTMP)}, {s(sTMP)}, 1")
    a(f"s_lshl_b32 {s(sTMP)}, {s(sTMP)}, 9")
    a(f"s_add_u32 {s(sM)}, {s(sM)}, {s(sTMP)}")
    a(f"s_lshl_b32 {s(sTMP)}, {s(sJ)}, 12")
    a(f"s_add_u32 {s(sM)}, {s(sM)}, {s(sTMP)}")
    a(f"s_mul_i32 {s(sTMP)}, {s(sHH)}, {BLK}")
    a(f"s_add_u32 {s(sM)}, {s(sM)}, {s(sTMP)}")
    a(f"v_and_b32 {v(T2)}, 1, {v(T0)}")
    a(f"v_lshlrev_b32 {v(T2)}, 10, {v(T2)}")
    a(f"v_lshrrev_b32 {v(T3)}, 1, {v(T0)}")
    a(f"v_lshl_add_u32 {v(T2)}, {v(T3)}, 8, {v(T2)}")
    a(f"v_lshl_add_u32 {v(T2)}, {v(T1)}, 4, {v(T2)}")
    a(f"v_add_u32 {v(vGST)}, {s(sM)}, {v(T2)}")
    a(f"v_lshrrev_b32 {v(T2)}, 2, {v(T1)}")
    a(f"v_and_b32 {v(T3)}, 1, {v(T1)}")
    a(f"v_lshl_add_u32 {v(T4)}, {v(T2)}, 1, {v(T3)}")
    a(f"v_bfe_u32 {v(T5)}, v0, 1, 1")
    a(f"s_mov_b32 {s(sS)}, 0")
    a(f"s_mov_b32 {s(sRE)}, 1000")


def weights(cx, tiles, is_v, n_init):
    a = cx.a
    a(f"s_lshl_b32 {s(sTMP)}, {s(sW)}, 10")
    stage_chunk(a, 0)
    a("s_barrier")
    stage_chunk(a, 1)
    if is_v:
        permute_addr(a, T2, T3)
    for cc in range(5):
        a(f"s_waitcnt vmcnt({6 if cc < 4 else (10 if is_v else 0)})")
        if cc in (0, 2, 4):
            cx.stamp(1 + cc // 2, 4)
        if cc == 0:
            signal_ready(cx, T0)
        else:
            a("s_barrier")
        read_chunk(a, cc, tiles)
        if cc < 3:
            stage_chunk(a, cc + 2)
        if cc == 3 and is_v:
            a(f"s_mul_i32 {s(sM)}, {s(sW)}, 10240")
            a(f"s_add_u32 m0, {s(sM)}, {XB0 - 4 * 10240}")
            a(f"s_mov_b32 {s(sXO)}, 0")
            for k in range(10):
                x_dma(a, k)
        if is_v:
            permute_columns(a, W0 + 16 * cc, 16, T2)
        if cc == 3 and not is_v and not cx.ptest:
            wait_ready(cx, T0, n_init, 3)
    a("s_waitcnt vmcnt(0)")
    a("s_barrier")
    cx.stamp(4, 4)
    if cx.ptest:
        a(f"s_mov_b32 {s(sS)}, {cx.keep + 1}")
        cx.save_stamps()
        cx.dump_stamps(8)
        a("s_endpgm")


def missing_check(cx, label, back, redo, vt):
    t = cx.tail
    t.label(label)
    t(f"v_max3_u32 {v(vt)}, {v(F)}, {v(F + 1)}, {v(F + 2)}")
    for i in range(3, 39, 2):
        t(f"v_max3_u32 {v(vt)}, {v(vt)}, {v(F + i)}, {v(F + i + 1)}")
    t(f"v_max_u32 {v(vt)}, {v(vt)}, {v(F + 39)}")
    t(f"v_cmp_eq_u32 vcc, -1, {v(vt)}")
    t(f"s_cbranch_vccz {back}")
    if cx.diag:
        t("s_add_u32 s99, s99, 1")
    t(f"s_sub_u32 {s(sRE)}, {s(sRE)}, 1")
    t(f"s_cbranch_scc0 {redo}")
    t(f"s_mov_b32 {s(sRE)}, 0")
    t(f"s_branch {back}")


def role_p(cx, n_init):
    a = cx.a
    global NOBG
    NOBG = cx.nobg
    a.label("L_role_p")
    cx.stamp(0, 4)
    common_addr(cx)
    a(f"s_cmp_ge_u32 {s(sW)}, 4")
    a("s_cbranch_scc1 L_p_v")
    qk_wave(cx, n_init)
    a.label("L_p_v")
    v_wave(cx, n_init)


def qk_wave(cx, n_init):
    a = cx.a
    a(f"s_lshl_b32 {s(sTMP)}, {s(sW)}, 10")
    a(f"s_add_u32 {s(sTMP)}, {s(sTMP)}, {L_KX}")
    a(f"v_lshl_add_u32 {v(vKXW)}, v0, 3, {s(sTMP)}")
    a(f"s_and_b32 {s(sTMP)}, {s(sW)}, 1")
    a(f"s_lshl_b32 {s(sTMP)}, {s(sTMP)}, 9")
    a(f"s_add_u32 {s(sTMP)}, {s(sTMP)}, {L_KX}")
    a(f"v_lshl_add_u32 {v(vKXR)}, v0, 3, {s(sTMP)}")
    a(f"v_lshrrev_b32 {v(T2)}, 1, {v(T0)}")
    a(f"v_lshlrev_b32 {v(T2)}, 3, {v(T2)}")
    a(f"v_xor_b32 {v(T2)}, {v(T2)}, {v(T1)}")
    a(f"v_lshlrev_b32 {v(T2)}, 3, {v(T2)}")
    a(f"v_lshl_add_u32 {v(T2)}, {v(T0)}, 7, {v(T2)}")
    a(f"s_lshl_b32 {s(sTMP)}, {s(sW)}, 9")
    a(f"s_add_u32 {s(sTMP)}, {s(sTMP)}, {L_QKX}")
    a(f"v_add_u32 {v(vQKW)}, {s(sTMP)}, {v(T2)}")
    a(f"v_lshrrev_b32 {v(T2)}, 2, v0")
    a(f"v_mov_b32 {v(vQKR)}, {L_QKX}")
    l3 = a.newlabel("p_w3")
    a(f"s_cmp_lg_u32 {s(sW)}, 3")
    a(f"s_cbranch_scc1 {l3}")
    a(f"v_and_b32 {v(T2)}, 3, {v(T2)}")
    a(f"v_and_b32 {v(T3)}, 1, {v(T0)}")
    a(f"v_lshl_add_u32 {v(T2)}, {v(T3)}, 3, {v(T2)}")
    a(f"v_lshrrev_b32 {v(T3)}, 1, {v(T0)}")
    a(f"v_lshl_add_u32 {v(vQKR)}, {v(T3)}, 9, {v(vQKR)}")
    a.label(l3)
    a(f"v_lshlrev_b32 {v(T3)}, 3, {v(T5)}")
    a(f"v_xor_b32 {v(T2)}, {v(T2)}, {v(T3)}")
    a(f"v_lshl_add_u32 {v(vQKR)}, {v(T2)}, 3, {v(vQKR)}")
    a(f"v_and_b32 {v(T3)}, 3, v0")
    a(f"v_lshl_add_u32 {v(vQKR)}, {v(T3)}, 7, {v(vQKR)}")
    a(f"s_mul_i32 {s(sM)}, {s(sT)}, 768")
    a(f"s_add_u32 {s(sM)}, {s(sM)}, {RING_SC}")
    a(f"s_lshl_b32 {s(sTMP)}, {s(sW)}, 8")
    a(f"s_cmp_eq_u32 {s(sW)}, 3")
    a(f"s_cselect_b32 {s(sTMP)}, {hex(OOB)}, {s(sTMP)}")
    a(f"s_add_u32 {s(sM)}, {s(sM)}, {s(sTMP)}")
    a(f"v_lshl_add_u32 {v(vSC)}, v0, 2, {s(sM)}")
    a(f"s_mul_i32 {s(sM)}, {s(sHH)}, 3072")
    a(f"s_lshl_b32 {s(sTMP)}, {s(sJ)}, 10")
    a(f"s_add_u32 {s(sM)}, {s(sM)}, {s(sTMP)}")
    a(f"v_lshlrev_b32 {v(T2)}, 7, {v(T0)}")
    a(f"v_lshl_add_u32 {v(T2)}, {v(T4)}, 4, {v(T2)}")
    a(f"v_xor_b32 {v(T3)}, 1, {v(T5)}")
    a(f"v_lshl_add_u32 {v(T2)}, {v(T3)}, 30, {v(T2)}")
    a(f"v_add_u32 {v(vKM)}, {s(sM)}, {v(T2)}")
    a(f"s_add_u32 {s(sPAR)}, {s(sRING)}, {SLOT}")
    for so in (sRING, sPAR):
        a(f"buffer_store_dword {v(vNEG)}, {v(vSC)}, {s(R_WS, 4)}, {s(so)} offen")
    a(f"s_lshl_b32 {s(sM)}, {s(sT)}, 2")
    a(f"s_add_u32 {s(sM)}, {s(sM)}, {s(sW)}")
    a(f"s_lshl_b32 {s(sM)}, {s(sM)}, 2")
    a(f"s_add_u32 {s(sM)}, {s(sM)}, {s(sRING)}")
    a(f"s_add_u32 {s(sM)}, {s(sM)}, {RING_FQ}")
    role_ax.lane0_addr(a, vFQ, sM, T2, T3)
    a(f"buffer_store_dword {v(vNEG)}, {v(vFQ)}, {s(R_WS, 4)}, 0 offen")

    def done_flag(val):
        a(f"v_mov_b32 v14, {val}")
        a("s_waitcnt vmcnt(0)")
        a(f"buffer_store_dword v14, {v(vFQ)}, {s(R_WS, 4)}, 0 offen")
    weights(cx, [(0, W0), (1, W1)], False, n_init)
    slots_init(a, R_CUR, R_OTH, sPAR, sRING)
    a(f"s_mov_b32 {s(sQ)}, {hex(WS_Q)}")
    a(f"s_mov_b32 {s(sK)}, {hex(WS_K)}")
    a(f"s_mov_b32 {s(sM)}, {hex(WS_KM)}")
    a(f"s_mov_b32 {s(sS)}, -1")

    a.label("L_pqk_loop")
    a("s_setprio 0")
    cx.stamp(5)
    cx.stamp(0, 1)
    background(a, [W0, W1], hook=lambda t: done_flag(s(sS)) if t == 2 else None)
    cx.stamp(2, 1)
    a(f"s_cmp_eq_u32 {s(sS)}, -1")
    a("s_cbranch_scc1 L_pqk_first")
    a.label("L_pqk_crit")
    a("s_setprio 2")
    cx.stamp(3, 1)
    a("s_waitcnt vmcnt(0)")
    cx.stamp(4, 1)
    cx.stamp(0)
    a.label("L_pqk_a")
    a("s_barrier")
    cx.stamp(5, 4)
    cx.stamp(0, 2)
    if cx.qdelay:
        a(f"s_sleep {cx.qdelay}")
    for t in range(10):
        a(f"ds_read_b128 {v(F + 4 * t, 4)}, {v(vMEM)} offset:{t * 1024}")
    for w in range(4):
        a(f"ds_read_b64 {v(KXO + 2 * w, 2)}, {v(vKXR)} offset:{w * 1024}")
    for t in range(10):
        a(f"s_waitcnt lgkmcnt({13 - t})")
        a(f"v_smfmac_f32_16x16x64_bf16 {v(CV, 4)}, {v(F + 4 * t, 4)}, {v(W0 + 8 * t, 8)}, {v(vIDX)}")
        if t == 0:
            cx.stamp(1, 2)
        if t == 9:
            cx.stamp(2, 2)
        a(f"v_smfmac_f32_16x16x64_bf16 {v(CV + 4, 4)}, {v(F + 4 * t, 4)}, {v(W1 + 8 * t, 8)}, {v(vIDX)}")
    a.nop(7)
    a(f"v_pk_add_f32 {v(CV, 2)}, {v(CV, 2)}, {v(CV + 2, 2)}")
    a(f"v_pk_add_f32 {v(CV + 4, 2)}, {v(CV + 4, 2)}, {v(CV + 6, 2)}")
    a(f"v_cvt_pk_bf16_f32 v14, {v(CV)}, {v(CV + 1)}")
    a(f"v_cvt_pk_bf16_f32 v15, {v(CV + 4)}, {v(CV + 5)}")
    a(f"ds_write_b64 {v(vQKW)}, v[14:15]")
    if cx.ddma:
        a(f"v_cmp_u_f32 vcc, {v(CV)}, {v(CV + 1)}")
        a("s_cbranch_vccnz L_pqk_nan")
        a.label("L_pqk_ok")
        missing_check(cx, "L_pqk_nan", "L_pqk_ok", "L_pqk_redo", CV + 2)
        tl = cx.tail
        tl.label("L_pqk_redo")
        for i in range(8):
            tl(f"v_mov_b32 {v(CV + i)}, 0")
        tl("s_waitcnt lgkmcnt(0)")
        tl("s_barrier")
        tl("s_branch L_pqk_a")
    a(f"s_cmp_ge_u32 {s(sW)}, 2")
    a("s_cbranch_scc1 L_pqk_23")

    def exchange(offs):
        a("s_waitcnt lgkmcnt(0)")
        cx.stamp(1)
        cx.stamp(3, 2)
        a("s_barrier")
        cx.stamp(4, 2)
        for i, o in enumerate(offs):
            a(f"ds_read_b64_tr_b16 {v(XO + 2 * i, 2)}, {v(vQKR)} offset:{o}")

    def scores(B):
        exchange([0, 512, 1024, 1536])
        a("s_waitcnt lgkmcnt(2)")
        a(f"v_mfma_f32_16x16x32_bf16 {v(CV, 4)}, {v(XO, 4)}, {v(B, 4)}, 0")
        a("s_waitcnt lgkmcnt(0)")
        a(f"v_mfma_f32_16x16x32_bf16 {v(CV, 4)}, {v(XO + 4, 4)}, {v(B + 4, 4)}, {v(CV, 4)}")
        a.nop(8)
        a(f"v_cvt_pk_bf16_f32 v14, {v(CV)}, {v(CV + 1)}")
        a(f"buffer_store_dword v14, {v(vSC)}, {s(R_CUR, 4)}, 0 offen")
        cx.stamp(2)
        cx.stamp(5, 2)
        a("s_barrier")
        a("s_branch L_pqk_join")

    scores(KXO)
    a.label("L_pqk_23")
    a(f"s_cmp_eq_u32 {s(sW)}, 3")
    a("s_cbranch_scc1 L_pqk_3")
    scores(XO)
    a.label("L_pqk_3")
    exchange([0, 32, 1024, 1056])
    a("s_waitcnt lgkmcnt(0)")
    a("s_barrier")
    a(f"buffer_store_dwordx4 {v(XO, 4)}, {v(vKM)}, {s(R_WS, 4)}, {s(sM)} offen")
    a(f"buffer_store_dwordx4 {v(XO + 4, 4)}, {v(vKM)}, {s(R_WS, 4)}, {s(sM)} offen offset:512")
    a.label("L_pqk_join")
    a(f"buffer_store_dword {v(vNEG)}, {v(vSC)}, {s(R_OTH, 4)}, 0 offen")
    ring_next(a, sM, WS_KM, MSEG, cx.rq)
    slots_flip(a, R_CUR, R_OTH, sPAR)
    a(f"s_cmp_eq_u32 {s(sS)}, 63")
    a("s_cbranch_scc1 L_pqk_end")
    a.label("L_pqk_out")
    a("s_setprio 0")
    for i in range(8):
        a(f"v_cvt_pk_bf16_f32 {v(F + i)}, {v(ACC + 2 * i)}, {v(ACC + 2 * i + 1)}")
    a(f"ds_write_b64 {v(vKXW)}, {v(F + 4, 2)}")
    a(f"ds_write_b64 {v(vKXW)}, {v(F + 6, 2)} offset:512")
    a(f"v_permlane16_swap_b32 {v(F)}, {v(F + 2)}")
    a(f"v_permlane16_swap_b32 {v(F + 1)}, {v(F + 3)}")
    a(f"buffer_store_dwordx4 {v(F, 4)}, {v(vGST)}, {s(R_WS, 4)}, {s(sQ)} offen")
    for i in range(8):
        a(f"v_mov_b32 {v(CV + i)}, 0")
    a("s_waitcnt lgkmcnt(0)")
    a(f"v_permlane16_swap_b32 {v(F + 4)}, {v(F + 6)}")
    a(f"v_permlane16_swap_b32 {v(F + 5)}, {v(F + 7)}")
    a(f"buffer_store_dwordx4 {v(F + 4, 4)}, {v(vGST)}, {s(R_WS, 4)}, {s(sK)} offen")
    a(f"v_xor_b32 {v(vXA0)}, {XB0 ^ XB1}, {v(vXA0)}")
    a(f"v_xor_b32 {v(vXA1)}, {XB0 ^ XB1}, {v(vXA1)}")
    ring_next(a, sQ, WS_Q, SEGSTR, cx.rq)
    a(f"s_add_u32 {s(sK)}, {s(sQ)}, {hex(WS_K - WS_Q)}")
    a(f"s_add_u32 {s(sS)}, {s(sS)}, 1")
    cx.save_stamps(cx.keepp)
    a(f"s_cmp_lt_u32 {s(sS)}, 63")
    a("s_cbranch_scc1 L_pqk_loop")
    done_flag(63)
    a("s_branch L_pqk_crit")
    a.label("L_pqk_end")
    done_flag(64)
    cx.dump_stamps(8)
    a("s_endpgm")
    a.label("L_pqk_first")
    a("s_barrier")
    a.nop(4)
    a("s_branch L_pqk_out")


def v_wave(cx, n_init):
    a = cx.a
    DR, DR2 = 64, 176
    vZ, vST, vFA, vFAD, vFD = 76, 77, 78, 79, 80
    sDL = sQ
    sHD = sJ
    sVX = sK
    a(f"s_and_b32 {s(sTMP)}, {s(sW)}, 3")
    a(f"v_lshrrev_b32 {v(T2)}, 3, v0")
    a(f"s_lshl_b32 {s(sM)}, {s(sTMP)}, 3")
    a(f"v_add_u32 {v(T2)}, {s(sM)}, {v(T2)}")
    a(f"v_bfe_u32 {v(T3)}, {v(T2)}, 1, 3")
    a(f"v_and_b32 {v(vXG)}, 7, v0")
    a(f"v_xor_b32 {v(T3)}, {v(T3)}, {v(vXG)}")
    a(f"v_mul_u32_u24 {v(T2)}, 1280, {v(T2)}")
    a(f"v_lshl_add_u32 {v(vXG)}, {v(T3)}, 4, {v(T2)}")
    a(f"s_mul_i32 {s(sM)}, {s(sTMP)}, 2560")
    a(f"v_lshl_add_u32 {v(vDG4)}, v0, 4, {s(sM)}")
    a(f"v_lshl_add_u32 {v(vDG1)}, v0, 2, {s(sM)}")
    a(f"s_add_u32 {s(sDL)}, {s(sM)}, {L_MEM}")
    a(f"s_mul_i32 {s(sM)}, {s(sTMP)}, 40")
    a(f"s_add_u32 {s(sM)}, {s(sM)}, {s(sRING)}")
    a(f"s_add_u32 {s(sM)}, {s(sM)}, {RING_FD}")
    a(f"v_min_u32 {v(T2)}, 9, v0")
    a(f"v_lshl_add_u32 {v(vFD)}, {v(T2)}, 2, {s(sM)}")
    a(f"v_add_u32 {v(vDL4)}, {L_MEM}, {v(vDG4)}")
    a(f"v_add_u32 {v(vDL1)}, {L_MEM + 2048}, {v(vDG1)}")
    a(f"s_mul_i32 {s(sM)}, {s(sH)}, 3")
    a(f"s_add_u32 {s(sM)}, {s(sM)}, {s(sJ)}")
    a(f"s_lshl_b32 {s(sM)}, {s(sM)}, 2")
    a(f"s_add_u32 {s(sM)}, {s(sM)}, {s(sTMP)}")
    a(f"s_lshl_b32 {s(sXO)}, {s(sM)}, 2")
    a(f"s_add_u32 {s(sXO)}, {s(sXO)}, {s(sRING)}")
    a(f"s_add_u32 {s(sXO)}, {s(sXO)}, {RING_FV}")
    a(f"v_cmp_eq_u32 vcc, 0, v0")
    a(f"v_mov_b32 {v(T2)}, {hex(OOB)}")
    a(f"v_mov_b32 {v(T3)}, {s(sXO)}")
    a(f"v_cndmask_b32 {v(vFL)}, {v(T2)}, {v(T3)}, vcc")
    a(f"s_lshl_b32 {s(sM)}, {s(sM)}, 8")
    a(f"s_add_u32 {s(sM)}, {s(sM)}, {RING_VM}")
    a(f"v_lshl_add_u32 {v(vRS)}, v0, 2, {s(sM)}")
    a(f"v_lshlrev_b32 {v(T2)}, 6, {v(T0)}")
    a(f"v_lshl_add_u32 {v(T2)}, {v(T1)}, 1, {v(T2)}")
    a(f"v_add_u32 {v(vVR)}, {s(sM)}, {v(T2)}")
    a(f"s_mul_i32 {s(sM)}, {s(sHH)}, 3072")
    a(f"s_lshl_b32 {s(sXO)}, {s(sJ)}, 7")
    a(f"s_add_u32 {s(sM)}, {s(sM)}, {s(sXO)}")
    a(f"s_lshl_b32 {s(sXO)}, {s(sTMP)}, 5")
    a(f"s_add_u32 {s(sM)}, {s(sM)}, {s(sXO)}")
    a(f"v_mul_u32_u24 {v(T2)}, 768, {v(T0)}")
    a(f"v_bfe_u32 {v(T3)}, v0, 1, 2")
    a(f"v_lshl_add_u32 {v(T2)}, {v(T3)}, 3, {v(T2)}")
    a(f"v_bfe_u32 {v(T3)}, v0, 3, 1")
    a(f"v_lshl_add_u32 {v(T2)}, {v(T3)}, 2, {v(T2)}")
    a(f"v_and_b32 {v(T3)}, 1, v0")
    a(f"v_lshl_add_u32 {v(T2)}, {v(T3)}, 1, {v(T2)}")
    a(f"v_add_u32 {v(vVP)}, {s(sM)}, {v(T2)}")
    a(f"v_and_b32 {v(T2)}, 1, {v(T0)}")
    a(f"v_lshrrev_b32 {v(T3)}, 1, {v(T0)}")
    a(f"v_sub_u32 {v(T2)}, {v(T3)}, {v(T2)}")
    a(f"v_mul_i32_i24 {v(T2)}, 768, {v(T2)}")
    a(f"v_add_u32 {v(vGST)}, {v(vGST)}, {v(T2)}")
    a(f"s_lshl_b32 {s(sM)}, {s(sH)}, 2")
    a(f"s_add_u32 {s(sM)}, {s(sM)}, {s(sRING)}")
    a(f"s_add_u32 {s(sM)}, {s(sM)}, {RING_FA}")
    a(f"v_bfe_u32 {v(T2)}, v0, 2, 2")
    a(f"v_lshl_add_u32 {v(vFA)}, {v(T2)}, 4, {s(sM)}")
    vPF, vCNT = 74, 75
    a(f"s_lshl_b32 {s(sM)}, {s(sT)}, 2")
    a(f"s_add_u32 {s(sM)}, {s(sM)}, {s(sRING)}")
    a(f"s_add_u32 {s(sM)}, {s(sM)}, {RING_FP}")
    a(f"s_cmp_eq_u32 {s(sW)}, 4")
    a(f"s_cselect_b32 {s(sM)}, {s(sM)}, {hex(OOB)}")
    a("v_cmp_gt_u32 vcc, 11, v0")
    a(f"v_mov_b32 {v(T2)}, {hex(OOB)}")
    a(f"v_lshl_add_u32 {v(T3)}, v0, 7, {s(sM)}")
    a(f"v_cndmask_b32 {v(vPF)}, {v(T2)}, {v(T3)}, vcc")
    a(f"v_mov_b32 {v(vCNT)}, 0")
    a(f"s_add_u32 {s(sPAR)}, {s(sRING)}, {SLOT}")
    a(f"buffer_store_dword {v(vNEG)}, {v(vRS)}, {s(R_WS, 4)}, {s(sRING)} offen")
    a(f"buffer_store_dword {v(vNEG)}, {v(vRS)}, {s(R_WS, 4)}, {s(sPAR)} offen")
    a(f"buffer_store_dword {v(vCNT)}, {v(vFL)}, {s(R_WS, 4)}, 0 offen")
    a(f"buffer_store_dword {v(vCNT)}, {v(vPF)}, {s(R_WS, 4)}, 0 offen")
    weights(cx, [(2, W0)], True, n_init)
    slots_init(a, R_CUR, R_OTH, sPAR, sRING)
    a(f"s_mov_b32 {s(sVX)}, {hex(WS_V)}")
    a(f"s_mov_b32 {s(sM)}, {hex(WS_VM)}")
    sXL = sH
    a(f"s_mul_i32 {s(sXL)}, {s(sW)}, 10240")
    a(f"s_add_u32 {s(sXL)}, {s(sXL)}, {XB1 - 4 * 10240 & 0xffffffff}")

    a(f"s_mov_b32 {s(sS)}, -1")
    a(f"s_lshl_b32 {s(sHD)}, {s(sT)}, 7")
    a(f"s_add_u32 {s(sHD)}, {s(sHD)}, {s(sRING)}")
    a(f"s_add_u32 {s(sHD)}, {s(sHD)}, {RING_HD}")
    a(f"v_min_u32 {v(vZ)}, 9, v0")
    a(f"v_lshl_add_u32 {v(vZ)}, {v(vZ)}, 2, {s(sHD)}")
    a(f"v_mov_b32 {v(vST)}, 0")

    a.label("L_pv_loop")
    a("s_setprio 2")
    cx.stamp(5)
    a(f"s_add_u32 {s(sXO)}, {s(sXO)}, {32 * 1280}")
    a(f"s_mov_b32 m0, {s(sXL)}")
    a(f"s_xor_b32 {s(sXL)}, {s(sXL)}, {XB0 ^ XB1}")
    cx.stamp(0, 1)
    if cx.ax:
        a(f"buffer_load_dword {v(vFAD)}, {v(vFA)}, {s(R_WS, 4)}, 0 offen sc1")
    background(a, [W0], hook=lambda t: x_dma(a, t // 2) if t % 2 == 1 else None)
    cx.stamp(2, 1)
    a(f"v_add_u32 {v(vCNT)}, 1, {v(vCNT)}")
    a.nop(3)
    for i in range(4):
        a(f"v_cvt_pk_bf16_f32 {v(CV + 2 * (i & 1) + (i >> 1))}, {v(ACC + 2 * i)}, {v(ACC + 2 * i + 1)}")
    a(f"v_xor_b32 {v(vXA0)}, {XB0 ^ XB1}, {v(vXA0)}")
    a(f"v_xor_b32 {v(vXA1)}, {XB0 ^ XB1}, {v(vXA1)}")
    a(f"v_permlane32_swap_b32 {v(CV)}, {v(CV + 1)}")
    a(f"v_permlane32_swap_b32 {v(CV + 2)}, {v(CV + 3)}")
    if cx.ax:
        a(f"s_sub_u32 {s(sTMP)}, {s(sS)}, {cx.rq + 1}")
        a("s_waitcnt vmcnt(10)")
        a(f"v_cmp_gt_i32 vcc, {s(sTMP)}, {v(vFAD)}")
        a("s_cbranch_vccz L_pv_free")
        role_ax.flag_wait(cx, vFA, vFAD, sTMP, "L_pv_wfree", 1)
        a.label("L_pv_free")
    a(f"buffer_store_dwordx4 {v(CV, 4)}, {v(vGST)}, {s(R_WS, 4)}, {s(sVX)} offen")
    ring_next(a, sVX, WS_V, SEGSTR, cx.rq)
    cx.stamp(3, 1)
    a("s_waitcnt vmcnt(0)")
    cx.stamp(5, 1)
    a(f"buffer_store_dword {v(vCNT)}, {v(vFL)}, {s(R_WS, 4)}, 0 offen")
    a(f"s_cmp_eq_u32 {s(sS)}, -1")
    a("s_cbranch_scc1 L_pv_first")
    a.label("L_pv_crit")
    for i in range(4):
        a(f"v_mov_b32 {v(ACC + i)}, 0")
    a(f"v_add_u32 {v(vST)}, 1, {v(vST)}")
    a("s_setprio 3")
    cx.stamp(3)
    n = cx.hn
    a(f"s_mov_b32 m0, {s(sDL)}")
    if cx.vsleep:
        a(f"s_sleep {cx.vsleep}")
    for k in range(n - 1):
        a(f"buffer_load_dword {v(CV + 4 + k)}, {v(vZ)}, {s(R_WS, 4)}, 0 offen sc1")
    a.label("L_pv_hint")
    for k in range(n):
        a(f"buffer_load_dword {v(CV + 4 + (k + n - 1) % n)}, {v(vZ)}, {s(R_WS, 4)}, 0 offen sc1")
        a(f"s_waitcnt vmcnt({n - 1})")
        a(f"v_cmp_gt_u32 vcc, {s(sS)}, {v(CV + 4 + k)}")
        if k < n - 1:
            a("s_cbranch_vccz L_pv_hok")
    cx.retry("L_pv_hint", 1)
    a.label("L_pv_hok")
    cx.stamp(4)

    def dloads(b):
        a(f"buffer_load_dwordx4 {v(b, 4)}, {v(vDG4)}, {s(R_CUR, 4)}, 0 offen sc1")
        a(f"buffer_load_dwordx4 {v(b + 4, 4)}, {v(vDG4)}, {s(R_CUR, 4)}, 0 offen offset:1024 sc1")
        a(f"buffer_load_dword {v(b + 8)}, {v(vDG1)}, {s(R_CUR, 4)}, 0 offen offset:2048 sc1")
        a(f"buffer_load_dword {v(b + 9)}, {v(vDG1)}, {s(R_CUR, 4)}, 0 offen offset:2304 sc1")

    def dcheck(b, n):
        a(f"s_waitcnt vmcnt({n + 3})")
        a(f"ds_write_b128 {v(vDL4)}, {v(b, 4)}")
        a(f"v_max3_u32 {v(CV)}, {v(b)}, {v(b + 1)}, {v(b + 2)}")
        a(f"s_waitcnt vmcnt({n + 2})")
        a(f"ds_write_b128 {v(vDL4)}, {v(b + 4, 4)} offset:1024")
        a(f"v_max3_u32 {v(CV)}, {v(CV)}, {v(b + 3)}, {v(b + 4)}")
        a(f"v_max3_u32 {v(CV)}, {v(CV)}, {v(b + 5)}, {v(b + 6)}")
        a(f"s_waitcnt vmcnt({n})")
        a(f"ds_write2st64_b32 {v(vDL1)}, {v(b + 8)}, {v(b + 9)} offset1:1")
        a(f"v_max3_u32 {v(CV)}, {v(CV)}, {v(b + 7)}, {v(b + 8)}")
        a(f"v_max_u32 {v(CV)}, {v(CV)}, {v(b + 9)}")
        a(f"v_cmp_eq_u32 vcc, -1, {v(CV)}")
        a("s_waitcnt lgkmcnt(0)")

    if cx.ddma:
        a.label("L_pv_shot")
        cx.stamp(0, 6)
        a(f"buffer_load_dword {v(CV)}, {v(vFD)}, {s(R_WS, 4)}, 0 offen sc1")
        a(f"buffer_load_dwordx4 {v(vDG4)}, {s(R_CUR, 4)}, 0 offen sc1 lds")
        a(f"buffer_load_dwordx4 {v(vDG4)}, {s(R_CUR, 4)}, 0 offen offset:1024 sc1 lds")
        a(f"buffer_load_dword {v(vDG1)}, {s(R_CUR, 4)}, 0 offen offset:2048 sc1 lds")
        a(f"buffer_load_dword {v(vDG1)}, {s(R_CUR, 4)}, 0 offen offset:2304 sc1 lds")
        cx.stamp(1, 6)
        a("s_waitcnt vmcnt(4)")
        cx.stamp(2, 6)
        if cx.ddma == 1:
            a(f"v_cmp_gt_u32 vcc, {s(sS)}, {v(CV)}")
            cx.retry("L_pv_shot", 0)
        cx.stamp(3, 6)
        a("s_waitcnt vmcnt(0)")
        cx.stamp(4, 6)
        main, cx.a = a, Asm()
        cx.a.uid = 5000
        a = cx.a
        a.label("L_pv_redo")
        for i in range(4):
            a(f"v_mov_b32 {v(ACC + i)}, 0")
        a("s_barrier")
    a.label("L_pv_poll")
    dloads(DR)
    dcheck(DR, 0)
    cx.retry("L_pv_poll", 0)
    if cx.ddma:
        a("s_branch L_pv_a")
        cx.tail.lines += a.lines
        a = cx.a = main
        a.label("L_pv_a")
    cx.stamp(0)
    a("s_barrier")
    cx.stamp(5, 6)
    cx.stamp(0, 2)
    for t in range(10):
        a(f"ds_read_b128 {v(F + 4 * t, 4)}, {v(vMEM)} offset:{t * 1024}")
    for t in range(10):
        a(f"s_waitcnt lgkmcnt({9 - t})")
        a(f"v_smfmac_f32_16x16x64_bf16 {v(ACC, 4)}, {v(F + 4 * t, 4)}, {v(W0 + 8 * t, 8)}, {v(vIDX)}")
        if t == cx.hu:
            a(f"buffer_store_dword {v(vST)}, {v(vPF)}, {s(R_WS, 4)}, 0 offen")
    cx.stamp(1)
    a.nop(8)
    a(f"v_add_f32 {v(ACC)}, {v(ACC)}, {v(ACC + 2)}")
    a(f"v_add_f32 {v(ACC + 1)}, {v(ACC + 1)}, {v(ACC + 3)}")
    if cx.ddma:
        a(f"v_cmp_u_f32 vcc, {v(ACC)}, {v(ACC + 1)}")
    a(f"v_cvt_pk_bf16_f32 {v(CV)}, {v(ACC)}, {v(ACC + 1)}")
    if cx.ddma:
        a("s_cbranch_vccnz L_pv_nan")
        a.label("L_pv_ok")
        missing_check(cx, "L_pv_nan", "L_pv_ok", "L_pv_redo", CV + 1)
    a(f"buffer_store_short {v(CV)}, {v(vVR)}, {s(R_CUR, 4)}, 0 offen")
    a(f"buffer_store_short_d16_hi {v(CV)}, {v(vVR)}, {s(R_CUR, 4)}, 0 offen offset:32")
    cx.stamp(2)
    cx.stamp(5, 2)
    a(f"buffer_store_dword {v(vNEG)}, {v(vRS)}, {s(R_OTH, 4)}, 0 offen")
    if cx.memdbg:
        a("s_waitcnt vmcnt(0)")
        a(f"s_lshl_b32 {s(sTMP)}, {s(sS)}, 3")
        a(f"s_add_u32 {s(sTMP)}, {s(sTMP)}, {s(sX)}")
        a(f"s_lshl_b32 {s(sTMP)}, {s(sTMP)}, 16")
        a(f"s_add_u32 {s(sTMP)}, {s(sTMP)}, {hex(WS_MEMDBG)}")
        a(f"buffer_store_dwordx4 {v(DR, 4)}, {v(vDG4)}, {s(R_WS, 4)}, {s(sTMP)} offen")
        a(f"buffer_store_dwordx4 {v(DR + 4, 4)}, {v(vDG4)}, {s(R_WS, 4)}, {s(sTMP)} offen offset:1024")
        a(f"buffer_store_dword {v(DR + 8)}, {v(vDG1)}, {s(R_WS, 4)}, {s(sTMP)} offen offset:2048")
        a(f"buffer_store_dword {v(DR + 9)}, {v(vDG1)}, {s(R_WS, 4)}, {s(sTMP)} offen offset:2304")
    slots_flip(a, R_CUR, R_OTH, sPAR)
    a(f"s_add_u32 {s(sS)}, {s(sS)}, 1")
    a(f"buffer_store_short {v(CV)}, {v(vVP)}, {s(R_WS, 4)}, {s(sM)} offen")
    a(f"buffer_store_short_d16_hi {v(CV)}, {v(vVP)}, {s(R_WS, 4)}, {s(sM)} offen offset:384")
    ring_next(a, sM, WS_VM, MSEG, cx.rq)
    a("s_setprio 0")
    cx.trace(200)
    a("s_barrier")
    a("s_waitcnt vmcnt(0)")
    a("s_barrier")
    cx.save_stamps(cx.keepp)
    a(f"s_cmp_lt_u32 {s(sS)}, 63")
    a("s_cbranch_scc1 L_pv_loop")
    a(f"s_cmp_eq_u32 {s(sS)}, 63")
    a("s_cbranch_scc1 L_pv_crit")
    cx.dump_stamps(8, 1, 200)
    a("s_endpgm")
    a.label("L_pv_first")
    a(f"s_mov_b32 {s(sS)}, 0")
    a("s_barrier")
    a("s_branch L_pv_loop")
```

```python
import sys, argparse
from common import *
from asmlib import check_hazards
import role_p, role_o, role_ax, role_ox, role_a

HEADER = open("cdna_kernels/" + NAME + ".s.ref").read().split("; Override launch")[0]


DEFAULTS = dict(diag=0, memdbg=0, copysel="auto", crounds=2, group=0, keep=40, keepp=0, rq=RQ, ax=1, oa=0, ob=1, oc=3, vd=6, qd=3, hb=24, b1=0, sdel=0, osleep=0, fdel=8, ddma=0, wb=1, nrep=1, b0=0, tnt="", tlate=0, vsleep=8, oxw=0, oxnt=1, aw=1, rtouch=1, d1=9, d2=1, pf8=1, cal=0, trc=0, bk=12, bgap=10, rsleep=2, ofl="", xp=0, hrow=640, hnt=0, ptest=0, ipf=2, adelay=1, touch=4, nobg=0, hu=6, spos=13, vfk=34, hn=4, cspec=3, dgap=1, qdelay=0, nprobe=3, dsets=1,
                sdelay=0, udelay=6, cdelay=0, cgap=2, hd=34)


def build(**kw):
    o = dict(DEFAULTS)
    o.update(kw)
    cx = Ctx(o["diag"], o["memdbg"])
    for k_, v_ in o.items():
        setattr(cx, k_, v_)
    cx.tnt = cx.tnt.replace("_", " ")
    diag = cx.diag
    a = cx.a
    n_init = 32
    a("s_cmp_ge_u32 s2, 256")
    a("s_cbranch_scc1 L_end")
    a("s_load_dwordx16 s[4:19], s[0:1], 0")
    a("s_load_dwordx8 s[20:27], s[0:1], 64")
    a("s_load_dwordx4 s[28:31], s[0:1], 96")
    a(f"s_getreg_b32 {s(sX)}, hwreg(HW_REG_XCC_ID, 0, 3)")
    if cx.ipf == 1:
        a("s_getpc_b64 s[62:63]")
        a.label("L_pc")
        a("v_lshlrev_b32 v4, 7, v0")
        a("v_min_u32 v4, L_code_end-L_pc-4, v4")
        a("global_load_dword v5, v4, s[62:63]")
    a("v_lshrrev_b32 v1, 6, v0")
    a("v_and_b32 v0, 63, v0")
    a(f"v_readfirstlane_b32 {s(sW)}, v1")
    if cx.ipf == 2:
        a("s_getpc_b64 s[62:63]")
        a.label("L_pc")
        a("s_and_b32 s64, s2, 0xf8")
        a(f"s_add_u32 s64, s64, {s(sW)}")
        a("s_lshl_b32 s64, s64, 7")
        a("s_add_u32 s65, s64, 0x8000")
        a("s_min_u32 s65, s65, L_code_end-L_pc-4")
        a("s_load_dword s66, s[62:63], s64")
        a("s_load_dword s67, s[62:63], s65")
    a(f"s_mov_b32 {s(sB)}, {SPIN}")
    if diag:
        a("s_memrealtime s[100:101]")
        for k in range(4):
            a(f"s_mov_b32 s{96 + k}, 0")
    a(f"v_mov_b32 v2, {role_p.L_QKX}")
    a("s_waitcnt lgkmcnt(0)")
    if diag and cx.cal:
        a("s_mov_b32 s3, 40")
        a.label("L_cal")
        a("s_memrealtime s[72:73]")
        a("s_memtime s[74:75]")
        a("s_waitcnt lgkmcnt(0)")
        a("s_mul_i32 s72, s72, 24")
        a("s_sub_u32 s72, s74, s72")
        a("s_cmp_eq_u32 s3, 40")
        a("s_cselect_b32 s101, s72, s101")
        a("s_sub_u32 s73, s72, s101")
        a("s_cmp_lt_i32 s73, 0")
        a("s_cselect_b32 s101, s72, s101")
        a("s_sub_u32 s3, s3, 1")
        a("s_cbranch_scc0 L_cal")
    srd(a, R_WS, P_WS, WS_SIZE)
    srd(a, R_DBG, P_DBG, 256)
    a(f"s_cmp_lg_u32 {s(sW)}, 0")
    a("s_cbranch_scc1 L_ticket")
    a(f"s_lshl_b32 {s(sT0)}, {s(sX)}, 5")
    a("v_mov_b32 v1, 1")
    a("v_mov_b32 v3, 0")
    a("s_mov_b64 exec, 1")
    a(f"buffer_atomic_add v1, v3, {s(R_DBG, 4)}, {s(sT0)} offen sc0")
    a("s_waitcnt vmcnt(0)")
    a("ds_write_b32 v2, v1")
    a("s_mov_b64 exec, -1")
    a("s_waitcnt lgkmcnt(0)")
    a.label("L_ticket")
    if cx.ipf == 1:
        a("s_waitcnt vmcnt(0)")
    a("s_barrier")
    a("ds_read_b32 v1, v2")
    a("s_waitcnt lgkmcnt(0)")
    a(f"v_readfirstlane_b32 {s(sT)}, v1")
    a("s_nop 1")
    a(f"s_cmp_lt_u32 {s(sT)}, {N_P}")
    a("s_cbranch_scc1 L_role_p")
    a(f"s_cmp_lt_u32 {s(sT)}, {N_P + N_O}")
    a("s_cbranch_scc1 L_role_o")
    if cx.ptest:
        a("s_waitcnt vmcnt(0)")
        a("s_endpgm")
    a(f"s_cmp_lt_u32 {s(sT)}, {N_P + N_O + N_AX}")
    a("s_cbranch_scc1 L_role_ax")
    a(f"s_cmp_lt_u32 {s(sT)}, {N_P + N_O + N_AX + N_OX}")
    a("s_cbranch_scc1 L_role_ox")
    a(f"s_cmp_lt_u32 {s(sT)}, 32")
    a("s_cbranch_scc1 L_role_a")
    a.label("L_end")
    a("s_endpgm")
    role_p.role_p(cx, n_init)
    role_o.role_o(cx, n_init)
    role_ax.role_ax(cx, n_init)
    role_ox.role_ox(cx, n_init)
    role_a.role_a(cx, n_init)
    a.lines += cx.tail.lines
    a.label("L_code_end")
    probs = check_hazards(a.lines)
    for p in probs:
        print("HAZARD", p, file=sys.stderr)
    k = NAME + "_kernel"
    out = HEADER
    out += "; @launch grid=(256,1,1) block=(512,1,1) lds=163840\n"
    if diag:
        out += f"; keep={cx.keep}\n; opts " + " ".join(f"{k_}={v_}" for k_, v_ in kw.items() if k_ not in ("diag", "group", "keep")) + "\n"
    out += f""".amdgcn_target "amdgcn-amd-amdhsa--gfx950"
.text
.globl {k}
.p2align 8
.type {k},@function
{k}:
"""
    out += a.text()
    out += f""".section .rodata,"a"
.p2align 6
.amdhsa_kernel {k}
  .amdhsa_next_free_vgpr 256
  .amdhsa_next_free_sgpr 102
  .amdhsa_accum_offset 256
  .amdhsa_group_segment_fixed_size 0
  .amdhsa_kernarg_size 112
  .amdhsa_user_sgpr_count 2
  .amdhsa_user_sgpr_kernarg_segment_ptr 1
  .amdhsa_system_sgpr_workgroup_id_x 1
  .amdhsa_float_denorm_mode_32 3
.end_amdhsa_kernel
"""
    return out, len(probs)


if __name__ == "__main__":
    out = sys.argv[1]
    kw = {}
    for x in sys.argv[2:]:
        k_, v_ = x.split("=")
        assert k_ in DEFAULTS, k_
        kw[k_] = v_ if isinstance(DEFAULTS[k_], str) else int(v_)
    if out == "final":
        out = "cdna_kernels/" + NAME + ".s"
    text, n = build(**kw)
    open(out, "w").write(text)
    print("wrote", out, len(text), "bytes; hazards:", n)
```

```python
import math
import struct
from common import *

L_VX = 0
L_UM = 98304
L_P = 110592
L_OWN = 114688
L_NEAR = 115712

sI, sRING, sTMP, sM = 62, 63, 64, 65
sA, sB2, sC, sD, sE, sF = 66, 67, 68, 69, 70, 71
R_CUR, R_OTH, R_C = R_1, R_2, R_3
T0, T1, T2, T3, T4, T5 = 20, 21, 22, 23, 24, 25


def f32(x):
    return hex(struct.unpack("<I", struct.pack("<f", x))[0])


def role_o(cx, n_init):
    a = cx.a
    a.label("L_role_o")
    cx.stamp(0, 4)
    a(f"s_sub_u32 {s(sI)}, {s(sT)}, {N_P}")
    a(f"s_lshl_b32 {s(sRING)}, {s(sX)}, {RING_SH}")
    a(f"s_add_u32 {s(sRING)}, {s(sRING)}, {hex(WS_RING)}")
    srd(a, R_0, P_WO, 6144 * 640 * 2)
    srd(a, R_1, P_MEM0, 8 * 640 * 2)
    vSTG = 26
    a(f"v_lshrrev_b32 {v(T0)}, 3, v0")
    a(f"v_and_b32 {v(T1)}, 2, {v(T0)}")
    a(f"s_and_b32 {s(sTMP)}, {s(sW)}, 1")
    a(f"s_lshl_b32 {s(sTMP)}, {s(sTMP)}, 2")
    a(f"v_or_b32 {v(T1)}, {s(sTMP)}, {v(T1)}")
    a(f"v_and_b32 {v(T2)}, 7, v0")
    a(f"v_xor_b32 {v(T1)}, {v(T1)}, {v(T2)}")
    a(f"v_lshlrev_b32 {v(T1)}, 4, {v(T1)}")
    a(f"s_mul_i32 {s(sM)}, {s(sX)}, 768")
    a(f"s_lshl_b32 {s(sTMP)}, {s(sW)}, 3")
    a(f"s_add_u32 {s(sTMP)}, {s(sTMP)}, {s(sM)}")
    a(f"v_add_u32 {v(T0)}, {s(sTMP)}, {v(T0)}")
    a(f"v_mul_u32_u24 {v(T0)}, 1280, {v(T0)}")
    a(f"s_lshl_b32 {s(sTMP)}, {s(sI)}, 7")
    a(f"v_add3_u32 {v(vSTG)}, {v(T0)}, {v(T1)}, {s(sTMP)}")
    a(f"s_lshl_b32 {s(sTMP)}, {s(sW)}, 10")
    for z in range(12 if not cx.ptest & 4 else 0):
        a(f"s_add_u32 m0, {s(sTMP)}, {z * 8192}")
        a(f"s_mov_b32 {s(sM)}, {z * 64 * 1280}")
        a(f"buffer_load_dwordx4 {v(vSTG)}, {s(R_0, 4)}, {s(sM)} offen nt lds")
    a(f"v_lshrrev_b32 {v(T0)}, 4, v0")
    a(f"v_and_b32 {v(T1)}, 15, v0")
    a(f"v_lshrrev_b32 {v(T2)}, 2, {v(T1)}")
    a(f"v_and_b32 {v(T3)}, 1, {v(T1)}")
    a(f"v_lshl_add_u32 {v(T4)}, {v(T2)}, 1, {v(T3)}")
    a(f"v_bfe_u32 {v(T5)}, v0, 1, 1")
    a(f"s_mov_b32 {s(sS)}, 0")
    a(f"s_cmp_ge_u32 {s(sW)}, 4")
    a("s_cbranch_scc1 L_o_u")
    s_wave(cx, n_init)
    a.label("L_o_u")
    u_wave(cx, n_init)


def vx_dma(cx, vL16, sLDS, sSRC, between=None, lo=0, hi=12):
    a = cx.a
    for k in range(lo, hi):
        if (k - lo) % 4 == 0:
            a(f"s_add_u32 m0, {s(sLDS)}, {L_VX + k * 1024}")
            a(f"s_add_u32 {s(sTMP)}, {s(sSRC)}, {k * 1024}")
        a(f"buffer_load_dwordx4 {v(vL16)}, {s(R_WS, 4)}, {s(sTMP)} offen offset:{(k - lo) % 4 * 1024} sc1 lds")
        if between:
            between(k)
    if hi == 12:
        ring_next(a, sSRC, WS_V, SEGSTR, cx.rq)


def vx_setup(a, sLDS, sSRC):
    a(f"s_mul_i32 {s(sSRC)}, {s(sX)}, {4 * BLK}")
    a(f"s_and_b32 {s(sLDS)}, {s(sW)}, 3")
    a(f"s_mul_i32 {s(sLDS)}, {s(sLDS)}, {BLK}")
    a(f"s_add_u32 {s(sSRC)}, {s(sSRC)}, {s(sLDS)}")
    a(f"s_add_u32 {s(sSRC)}, {s(sSRC)}, {hex(WS_V)}")


def tr_addr(a, dst):
    a(f"v_bfe_u32 v27, v0, 2, 2")
    a(f"v_and_b32 {v(T2)}, 2, v27")
    a(f"v_and_b32 {v(T3)}, 1, {v(T0)}")
    a(f"v_lshl_or_b32 {v(T2)}, {v(T3)}, 2, {v(T2)}")
    a(f"v_or_b32 {v(T2)}, {v(T2)}, {v(T5)}")
    a(f"v_lshlrev_b32 {v(T2)}, 4, {v(T2)}")
    a(f"v_lshl_add_u32 {v(T2)}, {v(T0)}, 10, {v(T2)}")
    a(f"v_lshl_add_u32 {v(T2)}, v27, 7, {v(T2)}")
    a(f"v_and_b32 {v(T3)}, 1, v0")
    a(f"v_lshl_add_u32 {v(dst)}, {v(T3)}, 3, {v(T2)}")


def s_wave(cx, n_init):
    a = cx.a
    vNEG, vL16, vHU, vSX, vMSK, vPW, vPM, vOW, vDW, vDR, vVG, vUW, vIDX, vTR = range(1, 15)
    HT = 16
    vFD, vCN = 30, 31
    VM = 112
    ACC = 124
    UC = 140
    WO = 160
    CA = 32
    E2 = 40
    SC = 44
    E = 54
    PK = 60
    CR = 64
    TT = 28
    sVXO, sPH, sPS, sNO, sCS = sA, sB2, sC, sD, sF
    sLO, sHI, sSC = 40, 41, 42
    a(f"v_mov_b32 {v(vNEG)}, -1")
    a(f"v_lshlrev_b32 {v(vL16)}, 4, v0")
    hint_addr(a, vHU)
    a(f"v_and_b32 {v(T2)}, 60, v0")
    a(f"v_and_b32 {v(T3)}, 1, v0")
    a(f"v_lshl_or_b32 {v(T2)}, {v(T3)}, 1, {v(T2)}")
    a(f"v_or_b32 {v(T2)}, {v(T2)}, {v(T5)}")
    a(f"s_mul_i32 {s(sM)}, {s(sW)}, 3072")
    a(f"s_add_u32 {s(sM)}, {s(sM)}, {RING_VM}")
    a(f"v_lshl_add_u32 {v(vVG)}, {v(T2)}, 4, {s(sM)}")
    a(f"s_lshl_b32 {s(sM)}, {s(sW)}, 9")
    a(f"s_add_u32 {s(sM)}, {s(sM)}, {L_UM}")
    a(f"v_lshl_add_u32 {v(vUW)}, v0, 3, {s(sM)}")
    a(f"v_mul_u32_u24 {v(vIDX)}, 0xaaaa, {v(T5)}")
    a(f"v_add_u32 {v(vIDX)}, 0x4444, {v(vIDX)}")
    tr_addr(a, vTR)
    a(f"s_mul_i32 {s(sM)}, {s(sW)}, {6 * 4096}")
    a(f"v_add_u32 {v(vTR)}, {s(sM)}, {v(vTR)}")
    a(f"s_mul_i32 {s(sM)}, {s(sW)}, {3 * 768}")
    a(f"s_add_u32 {s(sM)}, {s(sM)}, {RING_SC}")
    a(f"v_lshl_add_u32 {v(vSX)}, v0, 2, {s(sM)}")
    a(f"v_or_b32 {v(vMSK)}, 8, {v(vSX)}")
    a(f"s_lshl_b32 {s(sTMP)}, {s(sW)}, 10")
    a(f"s_add_u32 {s(sTMP)}, {s(sTMP)}, {L_P}")
    a(f"v_bfe_u32 {v(T2)}, v0, 2, 1")
    a(f"v_bfe_u32 {v(T3)}, v0, 3, 1")
    a(f"v_and_b32 {v(TT)}, 1, v0")
    a(f"v_lshlrev_b32 {v(TT + 1)}, 1, {v(T3)}")
    a(f"v_xor_b32 {v(TT + 1)}, {v(TT + 1)}, {v(T0)}")
    a(f"v_lshlrev_b32 {v(TT + 1)}, 3, {v(TT + 1)}")
    a(f"v_lshl_add_u32 {v(TT + 1)}, {v(T3)}, 7, {v(TT + 1)}")
    a(f"v_lshl_add_u32 {v(TT + 1)}, {v(T2)}, 8, {v(TT + 1)}")
    a(f"v_add_u32 {v(TT + 1)}, {s(sTMP)}, {v(TT + 1)}")
    a(f"v_lshl_add_u32 {v(vPW)}, {v(T2)}, 6, {v(TT + 1)}")
    a(f"v_lshl_add_u32 {v(vPW)}, {v(TT)}, 5, {v(vPW)}")
    a(f"v_lshl_add_u32 {v(vPW)}, {v(T5)}, 2, {v(vPW)}")
    a(f"v_xor_b32 {v(T2)}, 1, {v(T2)}")
    a(f"v_lshl_add_u32 {v(vPM)}, {v(T2)}, 6, {v(TT + 1)}")
    a(f"v_lshl_add_u32 {v(vPM)}, {v(T5)}, 5, {v(vPM)}")
    a(f"v_lshl_add_u32 {v(vPM)}, {v(TT)}, 2, {v(vPM)}")
    for i in range(4):
        a(f"v_mov_b32 {v(PK + i)}, 0")
    a(f"v_add_u32 {v(T2)}, {s(sTMP)}, {v(vL16)}")
    a(f"ds_write_b128 {v(T2)}, {v(PK, 4)}")
    a(f"v_bfe_u32 {v(T2)}, v0, 1, 2")
    a(f"v_lshl_add_u32 {v(T1)}, {v(T2)}, 2, {v(TT)}")
    a(f"v_lshl_add_u32 {v(T1)}, {v(T3)}, 1, {v(T1)}")
    a(f"s_lshl_b32 {s(sM)}, {s(sI)}, 14")
    a(f"s_lshl_b32 {s(sTMP)}, {s(sW)}, 11")
    a(f"s_add_u32 {s(sM)}, {s(sM)}, {s(sTMP)}")
    a(f"s_add_u32 {s(sCS)}, {s(sM)}, {hex(WS_C)}")
    a(f"s_lshl_b32 {s(sTMP)}, {s(sX)}, 8")
    a(f"s_add_u32 {s(sM)}, {s(sM)}, {s(sTMP)}")
    a(f"v_lshl_add_u32 {v(T2)}, v0, 2, {s(sM)}")
    for k in range(7):
        a(f"v_xor_b32 {v(CA + k)}, {(k + 1) * 256}, {v(T2)}")
    a(f"s_lshl_b32 {s(sTMP)}, {s(sW)}, 8")
    a(f"s_add_u32 {s(sTMP)}, {s(sTMP)}, {L_OWN}")
    a(f"v_lshl_add_u32 {v(vOW)}, v0, 2, {s(sTMP)}")
    a(f"s_lshl_b32 {s(sM)}, {s(sI)}, 2")
    a(f"s_add_u32 {s(sM)}, {s(sM)}, {s(sW)}")
    a(f"s_lshl_b32 {s(sTMP)}, {s(sM)}, 5")
    a(f"s_lshl_b32 {s(sM)}, {s(sM)}, 8")
    a(f"v_lshl_add_u32 {v(vDR)}, v0, 2, {s(sM)}")
    a(f"v_and_b32 {v(T2)}, 15, v0")
    a(f"v_lshlrev_b32 {v(T2)}, 1, {v(T2)}")
    a(f"v_lshl_add_u32 {v(T2)}, {v(T0)}, 6, {v(T2)}")
    a(f"v_add_u32 {v(vDW)}, {s(sM)}, {v(T2)}")
    a(f"v_mul_u32_u24 {v(T2)}, 2560, {v(T0)}")
    a(f"v_lshl_add_u32 {v(T2)}, {v(T1)}, 1, {v(T2)}")
    a(f"buffer_load_short_d16 {v(T3)}, {v(T2)}, {s(R_1, 4)}, {s(sTMP)} offen")
    a(f"buffer_load_short_d16 {v(TT)}, {v(T2)}, {s(R_1, 4)}, {s(sTMP)} offen offset:1280")
    a(f"s_add_u32 {s(sPS)}, {s(sRING)}, {SLOT}")
    a(f"buffer_store_dword {v(vNEG)}, {v(vDR)}, {s(R_WS, 4)}, {s(sPS)} offen")
    a(f"s_lshl_b32 {s(sM)}, {s(sI)}, 2")
    a(f"s_add_u32 {s(sM)}, {s(sM)}, {s(sW)}")
    a(f"s_lshl_b32 {s(sM)}, {s(sM)}, 2")
    a(f"s_add_u32 {s(sM)}, {s(sM)}, {s(sRING)}")
    a(f"s_add_u32 {s(sM)}, {s(sM)}, {RING_FD}")
    a("v_cmp_eq_u32 vcc, 0, v0")
    a(f"v_mov_b32 {v(T2)}, {hex(OOB)}")
    a(f"v_mov_b32 {v(T4)}, {s(sM)}")
    a(f"v_cndmask_b32 {v(vFD)}, {v(T2)}, {v(T4)}, vcc")
    a(f"v_mov_b32 {v(vCN)}, 0")
    a(f"buffer_store_dword {v(vCN)}, {v(vFD)}, {s(R_WS, 4)}, 0 offen")
    a("s_waitcnt vmcnt(2)")
    a(f"buffer_store_short {v(T3)}, {v(vDW)}, {s(R_WS, 4)}, {s(sRING)} offen")
    a(f"buffer_store_short {v(TT)}, {v(vDW)}, {s(R_WS, 4)}, {s(sRING)} offen offset:32")
    a("s_waitcnt vmcnt(0) lgkmcnt(0)")
    cx.stamp(1, 4)
    signal_ready(cx, T0)
    for t in range(4):
        a(f"v_xor_b32 {v(T2)}, {32 * t}, {v(vTR)}")
        for k in range(6):
            for u in range(2):
                a(f"ds_read_b64_tr_b16 {v(WO + 24 * t + 4 * k + 2 * u, 2)}, {v(T2)} offset:{k * 4096 + u * 512}")
        a("s_waitcnt lgkmcnt(0)")
    permute_columns(a, WO, 96, T2, T3)
    a(f"s_mov_b32 {s(sLO)}, 0x3f80")
    a(f"s_mov_b32 {s(sHI)}, 0x3f800000")
    a(f"s_mov_b32 {s(sSC)}, {f32(192 ** -0.5 * math.log2(math.e))}")
    a(f"s_mov_b32 {s(sSC + 1)}, {s(sSC)}")
    cx.stamp(2, 4)
    if cx.ptest:
        a("s_sleep 100")
        a(f"s_mov_b32 {s(sS)}, {cx.keep + 1}")
        cx.save_stamps()
        a("s_sleep 100")
        cx.dump_stamps(8)
        a("s_endpgm")
    cx.stamp(3, 4)
    slots_init(a, R_CUR, R_OTH, sPS, sRING)
    a(f"s_mov_b32 {s(sPH)}, 0")
    a("s_barrier")
    cx.stamp(4, 4)
    if cx.rtouch:
        a(f"s_lshl_b32 {s(sTMP)}, {s(sI)}, 2")
        a(f"s_add_u32 {s(sTMP)}, {s(sTMP)}, {s(sW)}")
        a(f"s_lshl_b32 {s(sTMP)}, {s(sTMP)}, 11")
        a(f"s_add_u32 {s(sTMP)}, {s(sTMP)}, {s(sRING)}")
        a(f"v_lshrrev_b32 {v(T3)}, 2, v0")
        a(f"v_lshlrev_b32 {v(T3)}, 7, {v(T3)}")
        a(f"buffer_load_dword {v(T4)}, {v(T3)}, {s(R_WS, 4)}, {s(sTMP)} offen sc1")
    near_pick(cx, sCS)
    own_side(a, sCS)
    a(f"s_and_b32 {s(sTMP)}, {s(sX)}, {cx.nrep - 1}")
    a(f"s_mul_i32 {s(sTMP)}, {s(sTMP)}, {C_REP}")
    a(f"s_add_u32 {s(sCS)}, {s(sCS)}, {s(sTMP)}")
    a(f"s_add_u32 {s(sCS)}, {s(sCS)}, {hex(WS_C)}")
    sub_srd(a, R_C, C_SLOT)
    set_base(a, R_C, sCS)
    a("s_waitcnt vmcnt(0)")
    a("s_barrier")
    for _ in range(cx.crounds):
        a("s_barrier")
    a("s_setprio 3")

    a.label("L_os_loop")
    a("s_barrier")
    cx.stamp(0)
    cx.stamp(0, 3)
    cx.stamp(5, 4)
    cx.stamp(0, 5)
    for i in range(16):
        a(f"v_mov_b32 {v(ACC + i)}, 0")
    a(f"v_add_u32 {v(vCN)}, 1, {v(vCN)}")
    if cx.udelay:
        a(f"s_sleep {cx.udelay}")
    hint_wait(cx, vHU, HT, "L_os_hint", cx.hn)
    cx.stamp(1)
    cx.stamp(1, 3)
    a.label("L_os_pollv")
    for j in range(3):
        a(f"buffer_load_dwordx4 {v(VM + 4 * j, 4)}, {v(vVG)}, {s(R_CUR, 4)}, 0 offen offset:{1024 * j} sc1")
    for j in range(3):
        a(f"s_waitcnt vmcnt({2 - j})")
        if j == 0:
            a(f"v_max3_u32 {v(TT)}, {v(VM)}, {v(VM + 1)}, {v(VM + 2)}")
            a(f"v_max_u32 {v(TT)}, {v(TT)}, {v(VM + 3)}")
        else:
            a(f"v_max3_u32 {v(TT)}, {v(TT)}, {v(VM + 4 * j)}, {v(VM + 4 * j + 1)}")
            a(f"v_max3_u32 {v(TT)}, {v(TT)}, {v(VM + 4 * j + 2)}, {v(VM + 4 * j + 3)}")
    a(f"v_cmp_eq_u32 vcc, -1, {v(TT)}")
    cx.retry("L_os_pollv", 3)
    if cx.b0:
        a("s_barrier")
    cx.stamp(2, 3)

    def score_loads(o):
        for k in range(9):
            o(f"buffer_load_dword {v(SC + k)}, {v(vMSK if k % 3 == 2 else vSX)}, {s(R_CUR, 4)}, 0 offen offset:{256 * k} sc1")

    def post(t):
        for i in range(2):
            a(f"v_cvt_pk_bf16_f32 {v(UC + 2 * t + i)}, {v(ACC + 4 * t + 2 * i)}, {v(ACC + 4 * t + 2 * i + 1)}")
        a(f"ds_write_b64 {v(vUW)}, {v(UC + 2 * t, 2)} offset:{2048 * t}")
    for k in range(12):
        t, j = k // 3, k % 3
        if k == cx.spos:
            score_loads(a)
        a(f"v_smfmac_f32_16x16x64_bf16 {v(ACC + 4 * t, 4)}, {v(VM + 4 * j, 4)}, {v(WO + 24 * t + 8 * j, 8)}, {v(vIDX)}")
    if cx.spos == 12:
        score_loads(a)
    for t in range(4):
        post(t)
    if cx.spos > 12:
        if cx.spos > 13:
            a(f"s_sleep {cx.spos - 13}")
        score_loads(a)
    cx.stamp(3, 3)
    a("s_waitcnt lgkmcnt(0)")
    a("s_barrier")
    cx.stamp(4, 3)
    a.label("L_os_polls")
    for j in range(3):
        a(f"s_waitcnt vmcnt({6 - 3 * j})")
        if j == 0:
            a(f"v_max3_u32 {v(TT)}, {v(SC)}, {v(SC + 1)}, {v(SC + 2)}")
        else:
            a(f"v_max3_u32 {v(TT)}, {v(TT)}, {v(SC + 3 * j)}, {v(SC + 3 * j + 1)}")
            a(f"v_max_u32 {v(TT)}, {v(TT)}, {v(SC + 3 * j + 2)}")
        if j == 2:
            a(f"v_cmp_eq_u32 vcc, -1, {v(TT)}")
        for k in range(6):
            c = v(E + k) if j else "0"
            a(f"v_dot2_f32_bf16 {v(E + k)}, {v(SC + 3 * j + k // 2)}, {s(sLO + k % 2)}, {c}")
    cx.retry("L_os_sre", 1)
    cx.tail.label("L_os_sre")
    score_loads(cx.tail)
    cx.tail("s_branch L_os_polls")
    cx.stamp(2)
    cx.stamp(5, 3)
    a.nop(1)
    a(f"v_max3_f32 {v(TT)}, {v(E)}, {v(E + 2)}, {v(E + 4)}")
    a(f"v_max3_f32 {v(TT + 1)}, {v(E + 1)}, {v(E + 3)}, {v(E + 5)}")
    DPP = ("quad_perm:[1,0,3,2]", "quad_perm:[2,3,0,1]", "row_half_mirror", "row_mirror")

    def across(op):
        for d in DPP:
            a.nop(1)
            for b in range(2):
                a(f"{op} {v(TT + b)}, {v(TT + b)}, {v(TT + b)} {d} row_mask:0xf bank_mask:0xf")
    across("v_max_f32_dpp")
    a(f"v_pk_mul_f32 {v(TT, 2)}, {v(TT, 2)}, {s(sSC, 2)}")
    for k in range(3):
        a(f"v_pk_fma_f32 {v(E + 2 * k, 2)}, {v(E + 2 * k, 2)}, {s(sSC, 2)}, {v(TT, 2)} neg_lo:[0,0,1] neg_hi:[0,0,1]")
    for k in range(6):
        a(f"v_exp_f32 {v(E + k)}, {v(E + k)}")
    a(f"v_pk_add_f32 {v(TT, 2)}, {v(E, 2)}, {v(E + 2, 2)}")
    a(f"v_pk_fma_f32 {v(TT, 2)}, {v(E + 4, 2)}, 0.5, {v(TT, 2)} op_sel_hi:[1,0,1]")
    a.nop(1)
    across("v_add_f32_dpp")
    a(f"v_rcp_f32 {v(TT)}, {v(TT)}")
    a(f"v_rcp_f32 {v(TT + 1)}, {v(TT + 1)}")
    a.nop(1)
    for k in range(3):
        a(f"v_pk_mul_f32 {v(E + 2 * k, 2)}, {v(E + 2 * k, 2)}, {v(TT, 2)}")
    for k in range(3):
        a(f"v_cvt_pk_bf16_f32 {v(PK + k)}, {v(E + 2 * k)}, {v(E + 2 * k + 1)}")
        if k == 1:
            a(f"ds_write2st64_b32 {v(vPW)}, {v(PK)}, {v(PK + 1)} offset1:2")
    a(f"ds_write_b32 {v(vPM)}, {v(PK + 2)}")
    a("s_waitcnt lgkmcnt(0)")
    cx.stamp(3)
    a("s_barrier")
    cx.stamp(4)
    cx.stamp(1, 5)
    a(f"buffer_store_dword {v(vNEG)}, {v(vDR)}, {s(R_CUR, 4)}, 0 offen")

    NR = cx.crounds

    def cloads(o, k):
        for x in range(7):
            o(f"buffer_load_dword {v(CR + 8 * k + x)}, {v(CA + x)}, {s(R_C, 4)}, 0 offen sc1")

    def csum(b, lo, hi):
        for x in range(lo, hi):
            a(f"v_dot2_f32_bf16 {v(E)}, {v(b + x)}, {s(sLO)}, {v(E2) if x == 0 else v(E)}")
            a(f"v_dot2_f32_bf16 {v(E + 1)}, {v(b + x)}, {s(sHI)}, {v(E2 + 1) if x == 0 else v(E + 1)}")

    for k in range(NR):
        a("s_barrier")
        cx.stamp(2 + min(k, 1), 5)
        cloads(a, k)
        if k == 0:
            a(f"ds_read_b32 {v(TT)}, {v(vOW)}")
            a("s_waitcnt lgkmcnt(0)")
            a(f"v_lshlrev_b32 {v(E2)}, 16, {v(TT)}")
            a(f"v_and_b32 {v(E2 + 1)}, 0xffff0000, {v(TT)}")
    tl = cx.tail
    for k in range(NR):
        b = CR + 8 * k
        a.label(f"L_os_c{k}")
        a(f"s_waitcnt vmcnt({7 * (NR - 1)})")
        cx.stamp(4, 5)
        for q in range(4):
            a(f"v_bitop3_b32 {v(PK + q)}, {v(b + 2 * q)}, {v(b + min(2 * q + 1, 6))}, {s(sPH)} bitop3:0x7e")
        a(f"v_or3_b32 {v(PK)}, {v(PK)}, {v(PK + 1)}, {v(PK + 2)}")
        a(f"v_bitop3_b32 {v(PK)}, {v(PK)}, {v(PK + 3)}, 1 bitop3:0xa8")
        a(f"v_cmp_ne_u32 vcc, 0, {v(PK)}")
        csum(b, 0, cx.cspec)
        a(f"s_cbranch_vccnz L_os_r{k}")
        a.label(f"L_os_g{k}")
        csum(b, cx.cspec, 7)
        a(f"s_add_u32 {s(sS)}, {s(sS)}, 1")
        a(f"s_xor_b32 {s(sCS)}, {s(sCS)}, {C_SLOT}")
        a(f"s_bfe_u32 {s(sPH)}, {s(sS)}, 0x10001")
        a(f"v_cvt_pk_bf16_f32 {v(TT)}, {v(E)}, {v(E + 1)}")
        a(f"buffer_store_short {v(TT)}, {v(vDW)}, {s(R_OTH, 4)}, 0 offen")
        a(f"buffer_store_short_d16_hi {v(TT)}, {v(vDW)}, {s(R_OTH, 4)}, 0 offen offset:32")
        if k < NR - 1:
            a("s_branch L_os_csum")
        tl.label(f"L_os_r{k}")
        if cx.diag:
            tl("s_add_u32 s96, s96, 1")
        tl(f"s_sub_u32 {s(sB)}, {s(sB)}, 1")
        tl(f"s_cbranch_scc1 L_os_x{k}")
        cloads(tl, k)
        tl(f"s_branch L_os_c{(k + 1) % NR}")
        tl.label(f"L_os_x{k}")
        tl(f"s_mov_b32 {s(sB)}, 0")
        tl(f"s_branch L_os_g{k}")
    a.label("L_os_csum")
    cx.stamp(5, 5)
    cx.stamp(5)
    slots_flip(a, R_CUR, R_OTH, sPS)
    set_base(a, R_C, sCS)
    for i in range(cx.fdel):
        a(f"v_mov_b32 {v(ACC + i)}, 0")
    a(f"buffer_store_dword {v(vCN)}, {v(vFD)}, {s(R_WS, 4)}, 0 offen")
    cx.save_stamps()
    cx.trace(150)
    a(f"s_cmp_lt_u32 {s(sS)}, 63")
    a("s_cbranch_scc1 L_os_loop")
    cx.dump_stamps(8, 1, 150)
    a("s_endpgm")


def near_pick(cx, reg):
    a = cx.a
    a(f"v_mov_b32 {v(T2)}, {L_NEAR}")
    a(f"ds_read_b32 {v(T0)}, {v(T2)}")
    a("s_waitcnt lgkmcnt(0)")
    a(f"v_readfirstlane_b32 {s(reg)}, {v(T0)}")
    a.nop(2)
    a(f"s_lshl_b32 {s(reg)}, {s(reg)}, 12")
    a(f"s_and_b32 {s(reg)}, {s(reg)}, 8192")


def own_side(a, reg):
    a(f"s_lshl_b32 {s(sTMP)}, {s(sX)}, 11")
    a(f"s_and_b32 {s(sTMP)}, {s(sTMP)}, 8192")
    a(f"s_xor_b32 {s(reg)}, {s(reg)}, {s(sTMP)}")


def hint_addr(a, vHU):
    a(f"s_and_b32 {s(sM)}, {s(sW)}, 3")
    a(f"s_mul_i32 {s(sM)}, {s(sM)}, 12")
    a(f"s_add_u32 {s(sM)}, {s(sM)}, {s(sRING)}")
    a(f"s_lshl_b32 {s(sTMP)}, {s(sI)}, 7")
    a(f"s_add_u32 {s(sM)}, {s(sM)}, {s(sTMP)}")
    a(f"s_add_u32 {s(sM)}, {s(sM)}, {RING_FP + 128}")
    a(f"v_min_u32 {v(T2)}, 2, v0")
    a(f"v_lshl_add_u32 {v(vHU)}, {v(T2)}, 2, {s(sM)}")


def hint_wait(cx, vHU, tt, label, n=3):
    a = cx.a
    for k in range(n - 1):
        a(f"buffer_load_dword {v(tt + k)}, {v(vHU)}, {s(R_WS, 4)}, 0 offen sc1")
    a.label(label)
    for k in range(n):
        a(f"buffer_load_dword {v(tt + (k + n - 1) % n)}, {v(vHU)}, {s(R_WS, 4)}, 0 offen sc1")
        a(f"s_waitcnt vmcnt({n - 1})")
        a(f"v_cmp_ge_u32 vcc, {s(sS)}, {v(tt + k)}")
        if k < n - 1:
            a(f"s_cbranch_vccz {label}_ok")
    cx.retry(label)
    a.label(label + "_ok")


def u_wave(cx, n_init):
    a = cx.a
    vNEG, vL16, vUR, vPR, vIDP, vCW, vFV, vTR, vOW, vPR1, vHD, vHC, vCW2 = range(1, 14)
    TT = 28
    F = 32
    ACC = 80
    PA = 96
    UB = 100
    WO = 132
    sCS, sCS2, sPH, sVXO = sA, sB2, sC, sD
    HT = 228
    CWR = 230
    a(f"v_mov_b32 {v(vNEG)}, -1")
    a(f"v_lshlrev_b32 {v(vL16)}, 4, v0")
    a(f"s_lshl_b32 {s(sM)}, {s(sW)}, 11")
    a(f"s_add_u32 {s(sM)}, {s(sM)}, {L_UM - 4 * 2048}")
    a(f"v_lshl_add_u32 {v(vUR)}, v0, 3, {s(sM)}")
    a(f"s_lshl_b32 {s(sM)}, {s(sI)}, 2")
    a(f"s_add_u32 {s(sM)}, {s(sM)}, {s(sRING)}")
    a(f"s_add_u32 {s(sM)}, {s(sM)}, {RING_HD}")
    a(f"s_and_b32 {s(sTMP)}, {s(sW)}, 3")
    a(f"s_cselect_b32 {s(sM)}, {hex(OOB)}, {s(sM)}")
    a("v_cmp_gt_u32 vcc, 12, v0")
    a(f"v_mov_b32 {v(T2)}, {hex(OOB)}")
    a(f"v_lshl_add_u32 {v(T3)}, v0, 7, {s(sM)}")
    a(f"v_cndmask_b32 {v(vHD)}, {v(T2)}, {v(T3)}, vcc")
    a(f"v_mov_b32 {v(vHC)}, 0")
    a(f"buffer_store_dword {v(vHC)}, {v(vHD)}, {s(R_WS, 4)}, 0 offen")
    a(f"v_and_b32 {v(T2)}, 1, {v(T0)}")
    a(f"v_lshlrev_b32 {v(T3)}, 1, {v(T2)}")
    a(f"v_xor_b32 {v(T3)}, {v(T3)}, {v(T1)}")
    a(f"v_lshlrev_b32 {v(T3)}, 3, {v(T3)}")
    a(f"v_lshl_add_u32 {v(T3)}, {v(T2)}, 7, {v(T3)}")
    a(f"v_lshrrev_b32 {v(T2)}, 1, {v(T0)}")
    a(f"v_lshl_add_u32 {v(T3)}, {v(T2)}, 9, {v(T3)}")
    a(f"v_add_u32 {v(vPR)}, {L_P}, {v(T3)}")
    a(f"v_xor_b32 {v(vPR1)}, {256 + 64}, {v(vPR)}")
    a(f"v_mul_u32_u24 {v(vIDP)}, {hex(0xdede - 0x8484)}, {v(T5)}")
    a(f"v_add_u32 {v(vIDP)}, 0x8484, {v(vIDP)}")
    a(f"s_and_b32 {s(sE)}, {s(sW)}, 3")
    a(f"s_lshl_b32 {s(sM)}, {s(sI)}, 14")
    a(f"s_lshl_b32 {s(sTMP)}, {s(sE)}, 11")
    a(f"s_add_u32 {s(sM)}, {s(sM)}, {s(sTMP)}")
    a(f"s_lshl_b32 {s(sTMP)}, {s(sX)}, 8")
    a(f"s_add_u32 {s(sM)}, {s(sM)}, {s(sTMP)}")
    a(f"v_lshl_add_u32 {v(vCW)}, v0, 2, {s(sM)}")
    a(f"v_min_u32 {v(T2)}, 47, v0")
    a(f"s_add_u32 {s(sM)}, {s(sRING)}, {RING_FV}")
    a(f"v_lshl_add_u32 {v(vFV)}, {v(T2)}, 2, {s(sM)}")
    a(f"s_lshl_b32 {s(sTMP)}, {s(sE)}, 8")
    a(f"s_add_u32 {s(sTMP)}, {s(sTMP)}, {L_OWN}")
    a(f"v_lshl_add_u32 {v(vOW)}, v0, 2, {s(sTMP)}")
    for k in range(4 * cx.nrep):
        a(f"s_mov_b32 {s(sM)}, {hex(WS_C + (k >> 1 & 1) * C_SLOT + (k & 1) * 8192 + (k >> 2) * C_REP)}")
        a(f"buffer_store_dword {v(vNEG)}, {v(vCW)}, {s(R_WS, 4)}, {s(sM)} offen sc1")
    tr_addr(a, vTR)
    a(f"s_lshl_b32 {s(sTMP)}, {s(sE)}, 5")
    a(f"v_xor_b32 {v(vTR)}, {s(sTMP)}, {v(vTR)}")
    for h in range(4):
        a(f"v_mov_b32 {v(UB + 8 * h + 6)}, 0")
        a(f"v_mov_b32 {v(UB + 8 * h + 7)}, 0")
    a("s_waitcnt vmcnt(0)")
    signal_ready(cx, T0)
    for t in range(24):
        if t == 12:
            a(f"v_add_u32 {v(vTR)}, {12 * 4096}, {v(vTR)}")
        for u in range(2):
            a(f"ds_read_b64_tr_b16 {v(WO + 4 * t + 2 * u, 2)}, {v(vTR)} offset:{(t % 12) * 4096 + u * 512}")
        if t % 4 == 3:
            a("s_waitcnt lgkmcnt(4)")
    a("s_waitcnt lgkmcnt(0)")
    permute_columns(a, WO, 96, T0, T1)
    if cx.ptest:
        a("s_endpgm")
    wait_ready(cx, T0, n_init, 4, 1, keep=L_NEAR)

    a("s_setprio 2")

    def vflags(label, add):
        a(f"s_add_u32 {s(sTMP)}, {s(sS)}, {add}")
        a.label(label)
        a(f"buffer_load_dword {v(TT)}, {v(vFV)}, {s(R_WS, 4)}, 0 offen sc1")
        a("s_waitcnt vmcnt(0)")
        a(f"v_cmp_gt_u32 vcc, {s(sTMP)}, {v(TT)}")
        cx.retry(label)

    vx_setup(a, sM, sVXO)
    a("s_barrier")
    vx_dma(cx, vL16, sM, sVXO)
    near_pick(cx, sCS2)
    own_side(a, sCS2)
    a(f"v_add_u32 {v(vCW2)}, {s(sCS2)}, {v(vCW)}")
    a(f"v_xor_b32 {v(vCW)}, 8192, {v(vCW2)}")
    for r in range(1, cx.nrep):
        a(f"v_add_u32 {v(CWR + 2 * r)}, {r * C_REP}, {v(vCW)}")
        a(f"v_add_u32 {v(CWR + 2 * r + 1)}, {r * C_REP}, {v(vCW2)}")
    a(f"s_mov_b32 {s(sCS)}, {hex(WS_C)}")
    sub_srd(a, R_C, C_SLOT)
    set_base(a, R_C, sCS)
    a("s_waitcnt vmcnt(0)")
    a("s_barrier")

    a.label("L_ou_loop")

    def cvt_head(h):
        b = ACC + 8 * (h & 1)
        return [f"v_cvt_pk_bf16_f32 {v(UB + 8 * h + 4 * m + i)}, {v(b + 4 * m + 2 * i)}, {v(b + 4 * m + 2 * i + 1)}"
                for m in range(2) for i in range(2)]

    D = 10

    def rd(k):
        a(f"ds_read_b128 {v(F + 4 * (k % 12), 4)}, {v(vL16)} offset:{L_VX + k * 1024}")

    def mm(k):
        h, t, m = k // 12, (k % 12) // 2, k % 2
        acc = ACC + 8 * (h & 1) + 4 * m
        c = "0" if t == 0 else v(acc, 4)
        a(f"v_mfma_f32_16x16x32_bf16 {v(acc, 4)}, {v(F + 4 * (k % 12), 4)}, {v(WO + 4 * (6 * h + t), 4)}, {c}")
    for k in range(D):
        rd(k)
    pend = []
    nbar = 0
    for k in range(36):
        if k % 2 == 0:
            a(f"s_waitcnt lgkmcnt({D - 2})")
        mm(k)
        rd(k + D)
        if k % 12 == 4 and k > 12:
            pend = cvt_head(k // 12 - 1)
        if pend and k % 2 == 1:
            a(pend.pop(0))
        if k >= cx.bk and (k - cx.bk) % cx.bgap == 0 and (k - cx.bk) // cx.bgap < cx.crounds:
            a("s_barrier")
            nbar += 1
        if k == cx.hd:
            a(f"buffer_store_dword {v(vHC)}, {v(vHD)}, {s(R_WS, 4)}, 0 offen")
        if k == cx.vfk:
            a(f"buffer_load_dword {v(HT)}, {v(vFV)}, {s(R_WS, 4)}, 0 offen sc1")
    assert nbar == cx.crounds
    rd(46)
    rd(47)
    a.nop(4)
    for x in cvt_head(2):
        a(x)
    if cx.hd >= 36:
        a.nop(4 * (cx.hd - 36))
        a(f"buffer_store_dword {v(vHC)}, {v(vHD)}, {s(R_WS, 4)}, 0 offen")
    cx.stamp(5)
    cx.save_stamps()
    a(f"s_add_u32 {s(sTMP)}, {s(sS)}, 2")
    a(f"s_waitcnt vmcnt({1 if cx.hd > cx.vfk else 0}) lgkmcnt(0)")
    a(f"v_cmp_gt_u32 vcc, {s(sTMP)}, {v(HT)}")
    a("s_cbranch_vccnz L_ou_vwait")
    a.label("L_ou_vok")
    a("s_barrier")
    cx.stamp(0)
    vx_dma(cx, vL16, sM, sVXO, lambda n: [mm(36 + 3 * n + i) for i in range(3)] if n < 4 else None, 0, cx.d1)
    a.nop(2)
    for i in range(4):
        a(f"v_mov_b32 {v(PA + i)}, 0")
    a(f"v_add_u32 {v(vHC)}, 1, {v(vHC)}")
    a(f"s_bfe_u32 {s(sPH)}, {s(sS)}, 0x10001")
    for x in cvt_head(3):
        a(x)
    cx.stamp(1)
    if cx.b0:
        a("s_barrier")
    a("s_barrier")
    for h in range(4):
        a(f"ds_read_b64 {v(UB + 8 * h + 2, 2)}, {v(vUR)} offset:{h * 512}")
    cx.stamp(2)
    if cx.d1 < 12:
        vx_dma(cx, vL16, sM, sVXO, None, max(cx.d1, cx.d2), 12)
    a("s_waitcnt vmcnt(0) lgkmcnt(0)")
    a("s_barrier")
    for h in range(4):
        a(f"ds_read_b64_tr_b16 {v(F + 4 * h, 2)}, {v(vPR)} offset:{h * 1024}")
        a(f"ds_read_b64_tr_b16 {v(F + 4 * h + 2, 2)}, {v(vPR1)} offset:{h * 1024}")
    for h in range(4):
        a(f"s_waitcnt lgkmcnt({6 - 2 * h})")
        a(f"v_smfmac_f32_16x16x64_bf16 {v(PA, 4)}, {v(F + 4 * h, 4)}, {v(UB + 8 * h, 8)}, {v(vIDP)}")
    a(f"s_add_u32 {s(sS)}, {s(sS)}, 1")
    a.nop(7)
    a(f"v_pk_add_f32 {v(PA, 2)}, {v(PA, 2)}, {v(PA + 2, 2)}")
    a(f"v_cvt_pk_bf16_f32 {v(TT + 1)}, {v(PA)}, {v(PA + 1)}")
    a(f"v_and_or_b32 {v(TT)}, {v(TT + 1)}, -2, {s(sPH)}")
    for side, first in enumerate((vCW, vCW2)):
        for r in range(cx.nrep):
            a(f"buffer_store_dword {v(TT)}, {v(CWR + 2 * r + side if r else first)}, {s(R_C, 4)}, 0 offen sc1")
    a(f"ds_write_b32 {v(vOW)}, {v(TT)}")
    cx.stamp(4)
    a(f"s_xor_b32 {s(sCS)}, {s(sCS)}, {C_SLOT}")
    set_base(a, R_C, sCS)
    a(f"s_cmp_lt_u32 {s(sS)}, 63")
    a("s_cbranch_scc1 L_ou_loop")
    a(f"buffer_store_dword {v(vHC)}, {v(vHD)}, {s(R_WS, 4)}, 0 offen")
    a("s_waitcnt lgkmcnt(0)")
    for k in range(cx.crounds):
        a(f"s_sleep {6 if k == 0 else 3}")
        a("s_barrier")
    cx.dump_stamps(8)
    a("s_endpgm")
    a.label("L_ou_vwait")
    if cx.diag:
        a("s_add_u32 s97, s97, 1")
    vflags("L_ou_vf", 2)
    a("s_branch L_ou_vok")
```

```python
from asmlib import Asm, v, s

NAME = "concat_heads__linear_kernel_hedgehog__memory_aug_recurrent_mem_tr__prompt"

MB = 1 << 20
BLK = 12288
SEGSTR = 32 * BLK
WS_Q = 0
WS_K = 24 * MB
WS_V = 48 * MB
WS_O = 72 * MB
WS_KM = 96 * MB
WS_VM = 102 * MB
MSEG = 32 * 3072
WS_PART = 108 * MB
WS_RING = 160 * MB
RING_SH = 17
SLOT = 32768
RING_D = 0
RING_SC = 10240
RING_VM = 19456
RING_FV = 65536
RING_FP = 67584
RING_HD = 69632
RING_FQ = 65792
RING_FD = 66048
RING_FA = 66304
RING_FB = 66560
RING_FO = 66816
WS_C = 162 * MB
C_SLOT = 1048576
C_REP = 163840
WS_N = WS_C + 163840
WS_FC = 161 * MB
WS_PHI = 164 * MB
WS_OA = 172 * MB
WS_DIAG = 200 * MB
WS_MEMDBG = 204 * MB
WS_SIZE = 268435456
OOB = 0x40000000

P_AX, P_AWQKV, P_AWPHI, P_AWO, P_BX, P_MEM0, P_WQ, P_WK, P_WV, P_WO, P_SEG, P_OUT, P_DBG, P_WS = range(4, 32, 2)
R_WS, R_DBG, R_0, R_1, R_2, R_3 = 32, 36, 40, 44, 48, 52
sX, sW, sT, sS, sB = 56, 57, 58, 59, 60
sT0 = 61
STAMP0 = 72

RQ = 4
N_AX, N_OX, N_A = 2, 4, 4
N_P, N_O = 12, 10
SPIN = 300000


def srd(a, r, ptr, nbytes):
    a(f"s_mov_b32 {s(r)}, {s(ptr)}")
    a(f"s_and_b32 {s(r + 1)}, {s(ptr + 1)}, 0xffff")
    a(f"s_mov_b32 {s(r + 2)}, {hex(nbytes)}")
    a(f"s_mov_b32 {s(r + 3)}, 0x20000")


class Ctx:
    def __init__(self, diag=False, memdbg=False):
        self.a = Asm()
        self.tail = Asm()
        self.diag = diag
        self.memdbg = memdbg
        self.keep = 40
        self.group = 0

    def stamp(self, k, group=0):
        if self.diag and group == self.group:
            self.a(f"s_memtime {s(STAMP0 + 2 * k, 2)}")

    def save_stamps(self, add=0):
        if not self.diag:
            return
        a = self.a
        l = a.newlabel("keep")
        a(f"s_cmp_lg_u32 {s(sS)}, {self.keep + 1 + add}")
        a(f"s_cbranch_scc1 {l}")
        a(f"s_memtime {s(STAMP0 + 12, 2)}")
        a(f"s_memrealtime {s(STAMP0 + 14, 2)}")
        a("s_waitcnt lgkmcnt(0)")
        for k in range(8):
            a(f"s_mov_b32 {s(88 + k)}, {s(STAMP0 + 2 * k)}")
        a.label(l)

    def trace(self, reg):
        if not (self.diag and self.trc):
            return
        a = self.a
        a(f"s_memtime {s(STAMP0 + 12, 2)}")
        a("s_lshl_b32 s98, s97, 10")
        a("s_add_u32 s98, s98, s96")
        a(f"s_lshl_b32 {s(STAMP0 + 14)}, s99, 20")
        a(f"s_add_u32 s98, s98, {s(STAMP0 + 14)}")
        if self.trc == 2:
            a(f"s_memrealtime {s(STAMP0 + 14, 2)}")
        a(f"s_mov_b32 m0, {s(sS)}")
        a("s_waitcnt lgkmcnt(0)")
        if self.trc == 2:
            a(f"s_mov_b32 s98, {s(STAMP0 + 14)}")
        a(f"v_writelane_b32 {v(reg)}, {s(STAMP0 + 12)}, m0")
        a(f"v_writelane_b32 {v(reg + 1)}, s98, m0")

    def retry(self, poll_label, site=None):
        a, t = self.a, self.tail
        lr, lo = a.newlabel("retry"), a.newlabel("ok")
        a(f"s_cbranch_vccnz {lr}")
        a.label(lo)
        t.label(lr)
        if self.diag and site is not None:
            t(f"s_add_u32 {s(96 + site)}, {s(96 + site)}, 1")
        t(f"s_sub_u32 {s(sB)}, {s(sB)}, 1")
        t(f"s_cbranch_scc0 {poll_label}")
        t(f"s_mov_b32 {s(sB)}, 0")
        t(f"s_branch {lo}")

    def dump_stamps(self, n, vt=1, trc=None):
        if not self.diag:
            return
        a = self.a
        a("s_waitcnt vmcnt(0) lgkmcnt(0)")
        a(f"v_mov_b32 {v(vt)}, 0")
        for k in range(n):
            a(f"v_writelane_b32 {v(vt)}, {s(88 + k)}, {k}")
        a(f"v_writelane_b32 {v(vt)}, {s(sB)}, 15")
        for k in range(3):
            a(f"v_writelane_b32 {v(vt)}, {s(96 + k)}, {8 + k}")
        a(f"s_memtime {s(STAMP0, 2)}")
        a(f"s_memrealtime {s(STAMP0 + 2, 2)}")
        a("s_waitcnt lgkmcnt(0)")
        a(f"v_writelane_b32 {v(vt)}, {s(STAMP0)}, 11")
        a(f"v_writelane_b32 {v(vt)}, {s(STAMP0 + 2)}, 12")
        a(f"v_writelane_b32 {v(vt)}, s100, 13")
        a(f"v_writelane_b32 {v(vt)}, s99, 14")
        a(f"v_writelane_b32 {v(vt)}, s101, 16")
        a(f"s_lshl_b32 {s(sT0)}, {s(sX)}, 5")
        a(f"s_add_u32 {s(sT0)}, {s(sT0)}, {s(sT)}")
        a(f"s_lshl_b32 {s(sT0)}, {s(sT0)}, 3")
        a(f"s_add_u32 {s(sT0)}, {s(sT0)}, {s(sW)}")
        a(f"s_lshl_b32 {s(sT0)}, {s(sT0)}, 8")
        a(f"s_add_u32 {s(sT0)}, {s(sT0)}, {hex(WS_DIAG)}")
        a(f"v_mbcnt_lo_u32_b32 {v(vt + 1)}, -1, 0")
        a(f"v_mbcnt_hi_u32_b32 {v(vt + 1)}, -1, {v(vt + 1)}")
        a(f"v_lshlrev_b32 {v(vt + 1)}, 2, {v(vt + 1)}")
        a(f"buffer_store_dword {v(vt)}, {v(vt + 1)}, {s(R_WS, 4)}, {s(sT0)} offen")
        if trc is not None and self.trc:
            for k in range(2):
                a(f"s_add_u32 {s(sT0)}, {s(sT0)}, {MB}")
                a(f"buffer_store_dword {v(trc + k)}, {v(vt + 1)}, {s(R_WS, 4)}, {s(sT0)} offen")
        a("s_waitcnt vmcnt(0)")


def signal_ready(cx, vt):
    a = cx.a
    l = a.newlabel("rdy")
    a("s_barrier")
    a(f"s_cmp_lg_u32 {s(sW)}, 0")
    a(f"s_cbranch_scc1 {l}")
    a(f"s_lshl_b32 {s(sT0)}, {s(sX)}, 4")
    a(f"v_mov_b32 {v(vt)}, 1")
    a(f"v_mov_b32 {v(vt + 1)}, 8")
    a("s_mov_b64 exec, 1")
    a(f"buffer_atomic_add {v(vt)}, {v(vt + 1)}, {s(R_DBG, 4)}, {s(sT0)} offen")
    a("s_mov_b64 exec, -1")
    a.label(l)


DBG_GO = 252


def collect_ready(cx, vt, n_init):
    a = cx.a
    t0, t1, d, best, adr, n = 44, 46, 48, 50, 52, 53
    a(f"s_lshl_b32 {s(sT0)}, {s(sX)}, 8")
    a(f"s_or_b32 {s(sT0)}, {s(sT0)}, {s(sT)}")
    a(f"s_cmp_lg_u32 {s(sT0)}, 31")
    a("s_cbranch_scc1 L_col_skip")
    cx.stamp(0, 4)
    a(f"v_mov_b32 {v(vt)}, 0")
    a(f"v_mov_b32 {v(vt + 1)}, -1")
    a(f"ds_write2_b32 {v(vt)}, {v(vt + 1)}, {v(vt + 1)} offset1:1")
    a(f"s_mul_i32 {s(adr)}, {s(sW)}, {16384 + 768}")
    a(f"s_add_u32 {s(adr)}, {s(adr)}, {hex(WS_C)}")
    a(f"s_mov_b32 {s(best)}, -1")
    a(f"s_mov_b32 {s(best + 1)}, -1")
    a(f"s_mov_b32 {s(n)}, {cx.nprobe - 1}")
    a.label("L_near")
    for c in range(2):
        a(f"s_memtime {s(t0, 2)}")
        a("s_waitcnt lgkmcnt(0)")
        a(f"s_load_dword {s(d)}, {s(P_WS, 2)}, {s(adr)} glc")
        a("s_waitcnt lgkmcnt(0)")
        a(f"s_memtime {s(t1, 2)}")
        a("s_waitcnt lgkmcnt(0)")
        a(f"s_sub_u32 {s(d)}, {s(t1)}, {s(t0)}")
        a(f"s_min_u32 {s(best + c)}, {s(best + c)}, {s(d)}")
        a(f"s_xor_b32 {s(adr)}, {s(adr)}, 8192")
    a(f"s_sub_u32 {s(n)}, {s(n)}, 1")
    a("s_cbranch_scc0 L_near")
    cx.stamp(1, 4)
    a("s_barrier")
    for c in range(2):
        a(f"v_mov_b32 {v(vt + 1)}, {s(best + c)}")
        a(f"ds_min_u32 {v(vt)}, {v(vt + 1)} offset:{4 * c}")
    a("s_waitcnt lgkmcnt(0)")
    a("s_barrier")
    a(f"s_cmp_lg_u32 {s(sW)}, 0")
    a("s_cbranch_scc1 L_col_skip")
    a(f"ds_read_b64 {v(vt + 2, 2)}, {v(vt)}")
    a(f"v_lshlrev_b32 {v(vt)}, 4, v0")
    a("s_mov_b64 exec, 0xff")
    a.label("L_col")
    a(f"v_mov_b32 {v(vt + 1)}, 0")
    a(f"buffer_atomic_add {v(vt + 1)}, {v(vt)}, {s(R_DBG, 4)}, 0 offen offset:8 sc0")
    a("s_waitcnt vmcnt(0) lgkmcnt(0)")
    a(f"v_cmp_gt_u32 vcc, {n_init}, {v(vt + 1)}")
    cx.retry("L_cols")
    cx.tail.label("L_cols")
    cx.tail("s_sleep 8")
    cx.tail("s_branch L_col")
    cx.stamp(2, 4)
    a("s_mov_b64 exec, 1")
    a(f"v_cmp_lt_u32 vcc, {v(vt + 3)}, {v(vt + 2)}")
    if cx.diag:
        a(f"buffer_store_dwordx2 {v(vt + 2, 2)}, {v(vt)}, {s(R_DBG, 4)}, 0 offen offset:240 sc1")
    a.nop(2)
    a(f"v_cndmask_b32 {v(vt + 1)}, 1, 2, vcc")
    a(f"buffer_store_dword {v(vt + 1)}, {v(vt)}, {s(R_DBG, 4)}, 0 offen offset:{DBG_GO} sc1")
    a("s_mov_b64 exec, -1")
    if cx.diag and cx.group == 4:
        a(f"s_mov_b32 {s(sS)}, {cx.keep + 1}")
        cx.save_stamps()
    a.label("L_col_skip")


def wait_ready(cx, vt, n_init, wave, first_v=False, early=False, keep=None, nv=1):
    a = cx.a
    skip, lp = a.newlabel("nrdy"), a.newlabel("wrdy")
    a(f"s_cmp_lg_u32 {s(sW)}, {wave}")
    a(f"s_cbranch_scc1 {skip}")
    a(f"v_mov_b32 {v(vt)}, 0")
    if early:
        a("s_sleep 64")
    a.label(lp)
    a(f"buffer_load_dword {v(vt + 1)}, {v(vt)}, {s(R_DBG, 4)}, 0 offen offset:{DBG_GO} sc1")
    a("s_waitcnt vmcnt(0)")
    a(f"v_cmp_gt_u32 vcc, 1, {v(vt + 1)}")
    cx.retry(lp + "s")
    cx.tail.label(lp + "s")
    cx.tail("s_sleep 4")
    cx.tail(f"s_branch {lp}")
    if keep is not None:
        a(f"v_mov_b32 {v(vt)}, {keep}")
        a(f"ds_write_b32 {v(vt)}, {v(vt + 1)}")
        a("s_waitcnt lgkmcnt(0)")
    if first_v:
        a(f"s_lshl_b32 {s(sT0)}, {s(sX)}, {RING_SH}")
        a(f"s_add_u32 {s(sT0)}, {s(sT0)}, {hex(WS_RING + RING_FV)}")
        a(f"v_min_u32 {v(vt)}, 47, v0")
        a(f"v_lshl_add_u32 {v(vt)}, {v(vt)}, 2, {s(sT0)}")
        a.label(lp + "v")
        a(f"buffer_load_dword {v(vt + 1)}, {v(vt)}, {s(R_WS, 4)}, 0 offen sc1")
        a("s_waitcnt vmcnt(0)")
        a(f"v_cmp_gt_u32 vcc, {nv}, {v(vt + 1)}")
        cx.retry(lp + "w")
        cx.tail.label(lp + "w")
        cx.tail(f"s_sleep {first_v}")
        cx.tail(f"s_branch {lp}v")
    a.label(skip)


def ring_next(a, reg, base, stride, depth):
    a(f"s_add_u32 {s(reg)}, {s(reg)}, {stride}")
    a(f"s_cmp_ge_u32 {s(reg)}, {hex(base + depth * stride)}")
    a(f"s_cselect_b32 vcc_lo, {depth * stride}, 0")
    a(f"s_sub_u32 {s(reg)}, {s(reg)}, vcc_lo")


def sub_srd(a, r, nbytes):
    a(f"s_mov_b32 {s(r + 2)}, {hex(nbytes)}")
    a(f"s_mov_b32 {s(r + 3)}, 0x20000")


def set_base(a, r, off):
    a(f"s_add_u32 {s(r)}, {s(R_WS)}, {s(off)}")
    a(f"s_addc_u32 {s(r + 1)}, {s(R_WS + 1)}, 0")


def slots_init(a, cur, oth, reg, ring):
    sub_srd(a, cur, SLOT)
    sub_srd(a, oth, SLOT)
    a(f"s_xor_b32 {s(reg)}, {s(ring)}, {SLOT}")
    slots_flip(a, cur, oth, reg)


def slots_flip(a, cur, oth, reg):
    set_base(a, oth, reg)
    a(f"s_xor_b32 {s(reg)}, {s(reg)}, {SLOT}")
    set_base(a, cur, reg)


def permute_addr(a, vaddr, vt):
    a(f"v_bfe_u32 {v(vt)}, v0, 1, 2")
    a(f"v_and_b32 {v(vaddr)}, 49, v0")
    a(f"v_lshl_add_u32 {v(vaddr)}, {v(vt)}, 2, {v(vaddr)}")
    a(f"v_bfe_u32 {v(vt)}, v0, 3, 1")
    a(f"v_lshl_add_u32 {v(vaddr)}, {v(vt)}, 1, {v(vaddr)}")
    a(f"v_lshlrev_b32 {v(vaddr)}, 2, {v(vaddr)}")


def permute_columns(a, first, n, vaddr, vt=None):
    if vt is not None:
        permute_addr(a, vaddr, vt)
    for i in range(n):
        a(f"ds_bpermute_b32 {v(first + i)}, {v(vaddr)}, {v(first + i)}")
        if i % 8 == 7:
            a("s_waitcnt lgkmcnt(6)")
    a("s_waitcnt lgkmcnt(0)")


def help_fetch(cx, vt):
    a = cx.a
    if cx.hrow >= 640:
        return
    a(f"s_sub_u32 s44, {s(sT)}, {N_P + N_O}")
    a(f"s_mul_i32 s45, {s(sW)}, 10")
    a("s_add_u32 s44, s44, s45")
    a(f"s_mul_i32 s44, s44, {8 * 12288}")
    a(f"s_mul_i32 s45, {s(sX)}, 1536")
    a("s_add_u32 s44, s44, s45")
    a(f"s_add_u32 s44, s44, {cx.hrow * 12288}")
    a(f"v_lshrrev_b32 {v(vt)}, 3, v0")
    a(f"v_mul_u32_u24 {v(vt)}, 12288, {v(vt)}")
    a(f"v_bfe_u32 {v(vt + 1)}, v0, 2, 1")
    for ptr in (P_WQ, P_WK, P_WV):
        srd(a, R_2, ptr, 640 * 6144 * 2)
        a(f"s_add_u32 s46, {s(ptr)}, s45")
        a("s_sub_u32 s46, 0x180, s46")
        a("s_and_b32 s46, s46, 0x380")
        a("s_cmp_lt_u32 s46, 0x200")
        a("s_cselect_b32 s47, 0x400, 0")
        a(f"v_mad_u32_u24 {v(vt + 2)}, {v(vt + 1)}, s47, {v(vt)}")
        a("s_add_u32 s46, s46, s44")
        a(f"buffer_load_dword {v(vt + 3)}, {v(vt + 2)}, {s(R_2, 4)}, s46 offen{' nt' if cx.hnt else ''}")
```

```python
import math
from common import *
from role_o import f32

sA_, sH, sPH, sRING, sTMP, sM, sBL, sMO, sXO, sT2 = 61, 62, 63, 64, 65, 66, 67, 68, 69, 70
LW = 15360


def pair_reduce(a, op, x, y, t):
    a.nop(2)
    a(f"v_permlane32_swap_b32 {v(x)}, {v(y)}")
    a(f"{op} {v(x)}, {v(x)}, {v(y)}")
    a(f"v_mov_b32 {v(y)}, {v(x)}")
    a.nop(2)
    a(f"v_permlane16_swap_b32 {v(x)}, {v(y)}")
    a(f"{op} {v(x)}, {v(x)}, {v(y)}")
    a(f"v_mov_b32 {v(y)}, {v(x)}")
    a.nop(2)
    a(f"v_permlane32_swap_b32 {v(x)}, {v(y)}")


def flag_wait(cx, vaddr, vt, sreg, label, sleep=2):
    a = cx.a
    l2 = label + "_s"
    a.label(label)
    a(f"buffer_load_dword {v(vt)}, {v(vaddr)}, {s(R_WS, 4)}, 0 offen sc1")
    a("s_waitcnt vmcnt(0)")
    a(f"v_cmp_gt_i32 vcc, {s(sreg)}, {v(vt)}")
    cx.retry(l2)
    cx.tail.label(l2)
    cx.tail(f"s_sleep {sleep}")
    cx.tail(f"s_branch {label}")


def lane0_addr(a, dst, sreg, t0, t1):
    a("v_cmp_eq_u32 vcc, 0, v0")
    a(f"v_mov_b32 {v(t0)}, {hex(OOB)}")
    a(f"v_mov_b32 {v(t1)}, {s(sreg)}")
    a(f"v_cndmask_b32 {v(dst)}, {v(t0)}, {v(t1)}, vcc")


def role_ax(cx, n_init):
    a = cx.a
    vL16, vFP, vFO, vFA, vFB, vKM, vVR, vMR, vST, vPF, vPF2, vCNT = range(1, 13)
    T0, T1, T2, T3 = 14, 15, 16, 17
    DG, MM = 20, 24
    SA0, SAM, SB0, SB1, SBM = 28, 32, 36, 40, 44
    PA, PB = 48, 52
    VF = 60
    OA = 200
    CV = 92
    Q, K = 100, 148
    sSC = 52
    a.label("L_role_ax")
    a(f"s_sub_u32 {s(sA_)}, {s(sT)}, {N_P + N_O}")
    a(f"s_and_b32 {s(sH)}, {s(sW)}, 3")
    a(f"s_lshr_b32 {s(sPH)}, {s(sW)}, 2")
    a(f"s_lshl_b32 {s(sPH)}, {s(sPH)}, 1")
    a(f"s_add_u32 {s(sPH)}, {s(sPH)}, {s(sA_)}")
    a(f"s_lshl_b32 {s(sRING)}, {s(sX)}, {RING_SH}")
    a(f"s_add_u32 {s(sRING)}, {s(sRING)}, {hex(WS_RING)}")
    srd(a, R_0, P_BX, 2048 * 640 * 2)
    a(f"v_lshlrev_b32 {v(vL16)}, 4, v0")
    a(f"v_lshrrev_b32 {v(T0)}, 4, v0")
    a(f"v_and_b32 {v(T1)}, 15, v0")
    a(f"s_mul_i32 {s(sM)}, {s(sH)}, 48")
    a(f"s_add_u32 {s(sM)}, {s(sM)}, {s(sRING)}")
    a(f"s_add_u32 {s(sM)}, {s(sM)}, {RING_FQ}")
    a(f"v_min_u32 {v(T2)}, 11, v0")
    a(f"v_lshl_add_u32 {v(vFP)}, {v(T2)}, 2, {s(sM)}")
    a(f"s_add_u32 {s(sM)}, {s(sRING)}, {RING_FO}")
    a(f"v_and_b32 {v(T2)}, 3, v0")
    a(f"v_lshl_add_u32 {v(vFO)}, {v(T2)}, 2, {s(sM)}")
    a(f"s_lshl_b32 {s(sM)}, {s(sPH)}, 2")
    a(f"s_add_u32 {s(sM)}, {s(sM)}, {s(sH)}")
    a(f"s_lshl_b32 {s(sM)}, {s(sM)}, 2")
    a(f"s_add_u32 {s(sM)}, {s(sM)}, {s(sRING)}")
    a(f"s_add_u32 {s(sM)}, {s(sM)}, {RING_FA}")
    lane0_addr(a, vFA, sM, T2, T3)
    a(f"v_add_u32 {v(vFB)}, {RING_FB - RING_FA}, {v(vFA)}")
    a(f"s_sub_u32 {s(sM)}, {s(sPH)}, 3")
    a(f"v_mov_b32 {v(vCNT)}, {s(sM)}")
    a(f"buffer_store_dword {v(vCNT)}, {v(vFA)}, {s(R_WS, 4)}, 0 offen")
    a(f"buffer_store_dword {v(vCNT)}, {v(vFB)}, {s(R_WS, 4)}, 0 offen")
    a(f"v_and_b32 {v(T2)}, 7, v0")
    a(f"v_lshlrev_b32 {v(T2)}, 4, {v(T2)}")
    a(f"v_lshl_add_u32 {v(vKM)}, {v(T0)}, 7, {v(T2)}")
    a(f"s_mul_i32 {s(sT2)}, {s(sW)}, {LW}")
    a(f"v_bfe_u32 {v(T2)}, v0, 1, 1")
    a(f"v_lshlrev_b32 {v(T2)}, 8, {v(T2)}")
    a(f"v_lshrrev_b32 {v(T3)}, 2, v0")
    a(f"v_lshl_add_u32 {v(T2)}, {v(T3)}, 4, {v(T2)}")
    a(f"v_and_b32 {v(T3)}, 1, v0")
    a(f"v_lshl_add_u32 {v(T2)}, {v(T3)}, 3, {v(T2)}")
    a(f"v_add_u32 {v(vVR)}, {s(sT2)}, {v(T2)}")
    a(f"v_bfe_u32 {v(T2)}, v0, 2, 3")
    a(f"v_mul_u32_u24 {v(T2)}, 384, {v(T2)}")
    a(f"v_and_b32 {v(T3)}, 3, v0")
    a(f"v_lshl_add_u32 {v(T2)}, {v(T3)}, 3, {v(T2)}")
    a(f"v_add_u32 {v(T2)}, 12288, {v(T2)}")
    a(f"v_add_u32 {v(vMR)}, {s(sT2)}, {v(T2)}")
    a(f"v_and_b32 {v(T2)}, 1, {v(T0)}")
    a(f"v_lshlrev_b32 {v(T2)}, 10, {v(T2)}")
    a(f"v_lshrrev_b32 {v(T3)}, 1, {v(T0)}")
    a(f"v_lshl_add_u32 {v(T2)}, {v(T3)}, 8, {v(T2)}")
    a(f"v_lshl_add_u32 {v(vST)}, {v(T1)}, 4, {v(T2)}")
    a(f"s_mul_i32 {s(sM)}, {s(sH)}, 10240")
    a(f"v_lshl_add_u32 {v(vPF)}, v0, 7, {s(sM)}")
    a(f"s_add_u32 {s(sM)}, {s(sM)}, 8192")
    a(f"v_lshl_add_u32 {v(vPF2)}, {v(T1)}, 7, {s(sM)}")
    for r in (PB + 6, PB + 7, VF + 6, VF + 7, VF + 12, VF + 13, VF + 18, VF + 19):
        a(f"v_mov_b32 {v(r)}, 0")
    a(f"v_mov_b32 {v(T3)}, 0xff800000")
    for i in range(4):
        a(f"v_lshl_add_u32 {v(T2)}, {v(T0)}, 2, {i}")
        a(f"v_cmp_gt_u32 vcc, {v(T2)}, {v(T1)}")
        a.nop(2)
        a(f"v_cndmask_b32 {v(DG + i)}, 0, {v(T3)}, vcc")
    a(f"v_cmp_lt_u32 vcc, 1, {v(T0)}")
    a.nop(2)
    for i in range(4):
        a(f"v_cndmask_b32 {v(MM + i)}, 0, {v(T3)}, vcc")
    a(f"s_mov_b32 {s(sSC)}, {f32(192 ** -0.5 * math.log2(math.e))}")
    a(f"s_lshl_b32 {s(sM)}, {s(sX)}, 2")
    a(f"s_add_u32 {s(sM)}, {s(sM)}, {s(sH)}")
    a(f"s_lshl_b32 {s(sTMP)}, {s(sPH)}, 5")
    a(f"s_add_u32 {s(sM)}, {s(sM)}, {s(sTMP)}")
    a(f"s_mul_i32 {s(sBL)}, {s(sM)}, {BLK}")
    a(f"s_mul_i32 {s(sMO)}, {s(sM)}, 3072")
    a(f"s_mul_i32 {s(sXO)}, {s(sPH)}, 40960")
    a(f"s_mov_b32 {s(sS)}, {s(sPH)}")
    a("s_waitcnt vmcnt(0)")
    signal_ready(cx, T2)
    help_fetch(cx, 250)
    a(f"buffer_load_dword {v(T2)}, {v(vPF)}, {s(R_0, 4)}, {s(sXO)} offen")
    a(f"buffer_load_dword {v(T2)}, {v(vPF2)}, {s(R_0, 4)}, {s(sXO)} offen")
    def touch(bases, small):
        a(f"v_lshlrev_b32 {v(T3)}, 7, v0")
        a(f"v_and_b32 {v(T1)}, 0xfff, {v(T3)}")
        for base in bases:
            a(f"s_add_u32 {s(sTMP)}, {s(sBL)}, {hex(base)}")
            a(f"buffer_load_dword {v(T2)}, {v(T3)}, {s(R_WS, 4)}, {s(sTMP)} offen sc1")
            a(f"s_add_u32 {s(sTMP)}, {s(sTMP)}, 8192")
            a(f"buffer_load_dword {v(T2)}, {v(T1)}, {s(R_WS, 4)}, {s(sTMP)} offen sc1")
        a(f"v_min_u32 {v(T1)}, {23 * 128}, {v(T3)}")
        for base in small:
            a(f"s_add_u32 {s(sTMP)}, {s(sMO)}, {hex(base)}")
            a(f"buffer_load_dword {v(T2)}, {v(T1)}, {s(R_WS, 4)}, {s(sTMP)} offen sc1")
    order = (WS_V, WS_K, WS_Q, WS_O)
    touch(order[:cx.touch], (WS_KM, WS_VM))
    wait_ready(cx, 18, n_init, 0, 4 if cx.tlate == 2 else False, True)
    a("s_barrier")
    if cx.tlate:
        touch(order[cx.touch:], ())
    if cx.pf8:
        a(f"s_add_u32 {s(sXO)}, {s(sXO)}, {4 * 40960}")
        a(f"buffer_load_dword {v(T2)}, {v(vPF)}, {s(R_0, 4)}, {s(sXO)} offen")
        a(f"buffer_load_dword {v(T2)}, {v(vPF2)}, {s(R_0, 4)}, {s(sXO)} offen")

    def three(base, fn):
        for part in range(3):
            a(f"s_add_u32 {s(sTMP)}, {s(sBL)}, {hex(base + part * 4096)}")
            for o in range(4):
                fn(4 * part + o, o * 1024, part)

    a.label("L_ax_loop")
    a(f"s_add_u32 {s(sM)}, {s(sS)}, 1")
    a(f"s_add_u32 {s(sXO)}, {s(sXO)}, {4 * 40960}")
    a(f"v_mov_b32 {v(vCNT)}, {s(sM)}")
    flag_wait(cx, vFP, T2, sS, "L_ax_w1", 8)
    cx.stamp(0)
    three(WS_Q, lambda k, o, p: a(f"buffer_load_dwordx4 {v(Q + 4 * k, 4)}, {v(vL16)}, {s(R_WS, 4)}, {s(sTMP)} offen offset:{o} sc1"))
    three(WS_K, lambda k, o, p: a(f"buffer_load_dwordx4 {v(K + 4 * k, 4)}, {v(vL16)}, {s(R_WS, 4)}, {s(sTMP)} offen offset:{o} sc1"))

    def vdma(k, o, p):
        if o == 0:
            a(f"s_add_u32 m0, {s(sT2)}, {p * 4096}")
            a("s_nop 0")
        a(f"buffer_load_dwordx4 {v(vL16)}, {s(R_WS, 4)}, {s(sTMP)} offen offset:{o} sc1 lds")
    three(WS_V, vdma)
    a(f"buffer_load_dword {v(T2)}, {v(vPF)}, {s(R_0, 4)}, {s(sXO)} offen")
    a(f"buffer_load_dword {v(T2)}, {v(vPF2)}, {s(R_0, 4)}, {s(sXO)} offen")
    a("s_waitcnt vmcnt(14)")
    cx.stamp(1)
    for t in range(6):
        for acc, kt, qt, c0 in ((SA0, 0, 0, v(DG, 4)), (SB0, 0, 1, "0"), (SB1, 1, 1, v(DG, 4))):
            c = c0 if t == 0 else v(acc, 4)
            a(f"v_mfma_f32_16x16x32_bf16 {v(acc, 4)}, {v(K + 8 * t + 4 * kt, 4)}, {v(Q + 8 * t + 4 * qt, 4)}, {c}")
    flag_wait(cx, vFP, T2, sM, "L_ax_w2", 1)
    cx.stamp(2)
    a(f"s_add_u32 {s(sTMP)}, {s(sMO)}, {hex(WS_KM)}")
    for t in range(6):
        a(f"buffer_load_dwordx4 {v(K + 4 * t, 4)}, {v(vKM)}, {s(R_WS, 4)}, {s(sTMP)} offen offset:{t * 512} sc1")
    a(f"s_add_u32 m0, {s(sT2)}, 12288")
    a(f"s_add_u32 {s(sTMP)}, {s(sMO)}, {hex(WS_VM)}")
    for o in range(3):
        a(f"buffer_load_dwordx4 {v(vL16)}, {s(R_WS, 4)}, {s(sTMP)} offen offset:{o * 1024} sc1 lds")
    a(f"buffer_load_dword {v(T3)}, {v(vFO)}, {s(R_WS, 4)}, 0 offen sc1")
    for t in range(6):
        a(f"s_waitcnt vmcnt({9 - t})")
        for acc, qt in ((SAM, 0), (SBM, 1)):
            c = v(MM, 4) if t == 0 else v(acc, 4)
            a(f"v_mfma_f32_16x16x32_bf16 {v(acc, 4)}, {v(K + 4 * t, 4)}, {v(Q + 8 * t + 4 * qt, 4)}, {c}")
    a("s_waitcnt vmcnt(0)")
    a(f"buffer_store_dword {v(vCNT)}, {v(vFA)}, {s(R_WS, 4)}, 0 offen")
    cx.stamp(3)

    def vread(tau):
        b = VF + 6 * (tau % 3)
        a(f"ds_read_b64_tr_b16 {v(b, 2)}, {v(vMR)} offset:{tau * 32}")
        for u in range(2):
            a(f"ds_read_b64_tr_b16 {v(b + 2 + 2 * u, 2)}, {v(vVR)} offset:{(tau >> 1) * 2048 + (tau & 1) * 512 + u * 1024}")
    vread(0)
    A = [SA0 + i for i in range(4)] + [SAM + i for i in range(4)]
    B = [SB0 + i for i in range(8)] + [SBM + i for i in range(4)]
    X, Y = T0, T1

    def tree(op3, op2, dst, regs):
        a(f"{op3} {v(dst)}, {v(regs[0])}, {v(regs[1])}, {v(regs[2])}")
        k = 3
        while k + 1 < len(regs):
            a(f"{op3} {v(dst)}, {v(dst)}, {v(regs[k])}, {v(regs[k + 1])}")
            k += 2
        if k < len(regs):
            a(f"{op2} {v(dst)}, {v(dst)}, {v(regs[k])}")
    tree("v_max3_f32", "v_max_f32", Y, B)
    tree("v_max3_f32", "v_max_f32", X, A)
    pair_reduce(a, "v_max_f32", X, Y, T2)
    a(f"v_mul_f32 {v(X)}, {s(sSC)}, {v(X)}")
    a(f"v_mul_f32 {v(Y)}, {s(sSC)}, {v(Y)}")
    for regs, m in ((A, X), (B, Y)):
        for r in regs:
            a(f"v_fma_f32 {v(r)}, {v(r)}, {s(sSC)}, -{v(m)}")
    for r in A + B:
        a(f"v_exp_f32 {v(r)}, {v(r)}")
    for regs, m in ((A, X), (B, Y)):
        a(f"v_add_f32 {v(m)}, {v(regs[0])}, {v(regs[1])}")
        for r in regs[2:]:
            a(f"v_add_f32 {v(m)}, {v(m)}, {v(r)}")
    pair_reduce(a, "v_add_f32", X, Y, T2)
    a(f"v_rcp_f32 {v(X)}, {v(X)}")
    a(f"v_rcp_f32 {v(Y)}, {v(Y)}")
    for regs, m in ((A, X), (B, Y)):
        for r in regs:
            a(f"v_mul_f32 {v(r)}, {v(r)}, {v(m)}")
    for dst, src in ((PA, SAM), (PA + 2, SA0), (PB, SBM), (PB + 2, SB0), (PB + 4, SB1)):
        for i in range(2):
            a(f"v_cvt_pk_bf16_f32 {v(dst + i)}, {v(src + 2 * i)}, {v(src + 2 * i + 1)}")
    a(f"s_sub_u32 {s(sM)}, {s(sS)}, {cx.rq - 1}")
    a(f"v_cmp_gt_i32 vcc, {s(sM)}, {v(T3)}")
    a("s_cbranch_vccz L_ax_free")
    flag_wait(cx, vFO, T3, sM, "L_ax_w3", 2)
    a.label("L_ax_free")
    cx.stamp(4)

    def out(tau):
        o, c = OA + 8 * (tau % 3), CV + 4 * (tau & 1)
        L = [f"v_cvt_pk_bf16_f32 {v(c + i)}, {v(o + 2 * i)}, {v(o + 2 * i + 1)}" for i in (0, 2, 1, 3)]
        L.append(f"s_add_u32 {s(sTMP)}, {s(sBL)}, {hex(WS_O + (tau >> 2) * 4096)}")
        L.append(f"v_permlane16_swap_b32 {v(c)}, {v(c + 2)}")
        L.append(f"v_permlane16_swap_b32 {v(c + 1)}, {v(c + 3)}")
        L.append(f"buffer_store_dwordx4 {v(c, 4)}, {v(vST)}, {s(R_WS, 4)}, {s(sTMP)} offen offset:{((tau >> 1) & 1) * 2048 + (tau & 1) * 512}")
        return L
    vread(1)
    for tau in range(12):
        b, o = VF + 6 * (tau % 3), OA + 8 * (tau % 3)
        L = out(tau - 2) if tau >= 2 else []
        if tau < 10:
            vread(tau + 2)
        a(f"s_waitcnt lgkmcnt({3 * min(2, 11 - tau)})")
        a(f"v_mfma_f32_16x16x32_bf16 {v(o + 4, 4)}, {v(b, 4)}, {v(PB, 4)}, 0")
        for x in L[:2]:
            a(x)
        a(f"v_mfma_f32_16x16x32_bf16 {v(o, 4)}, {v(b, 4)}, {v(PA, 4)}, 0")
        for x in L[2:5]:
            a(x)
        a(f"v_mfma_f32_16x16x32_bf16 {v(o + 4, 4)}, {v(b + 4, 4)}, {v(PB + 4, 4)}, {v(o + 4, 4)}")
        for x in L[5:]:
            a(x)
    for x in out(10) + out(11):
        a(x)
    a(f"s_add_u32 {s(sS)}, {s(sS)}, 4")
    if cx.rq != 4:
        ring_next(a, sBL, 0, 4 * SEGSTR, cx.rq // 4)
        ring_next(a, sMO, 0, 4 * MSEG, cx.rq // 4)
    a("s_waitcnt vmcnt(0)")
    a(f"buffer_store_dword {v(vCNT)}, {v(vFB)}, {s(R_WS, 4)}, 0 offen")
    cx.stamp(5)
    cx.save_stamps(3)
    a(f"s_cmp_lt_u32 {s(sS)}, 64")
    a("s_cbranch_scc1 L_ax_loop")
    cx.dump_stamps(8, 14)
    a("s_endpgm")
```

```python
import math
import struct
from common import *

L_VX = 0
L_UM = 98304
L_P = 110592
L_OWN = 114688
L_NEAR = 115712

sI, sRING, sTMP, sM = 62, 63, 64, 65
sA, sB2, sC, sD, sE, sF = 66, 67, 68, 69, 70, 71
R_CUR, R_OTH, R_C = R_1, R_2, R_3
T0, T1, T2, T3, T4, T5 = 20, 21, 22, 23, 24, 25


def f32(x):
    return hex(struct.unpack("<I", struct.pack("<f", x))[0])


def role_o(cx, n_init):
    a = cx.a
    a.label("L_role_o")
    cx.stamp(0, 4)
    a(f"s_sub_u32 {s(sI)}, {s(sT)}, {N_P}")
    a(f"s_lshl_b32 {s(sRING)}, {s(sX)}, {RING_SH}")
    a(f"s_add_u32 {s(sRING)}, {s(sRING)}, {hex(WS_RING)}")
    srd(a, R_0, P_WO, 6144 * 640 * 2)
    srd(a, R_1, P_MEM0, 8 * 640 * 2)
    vSTG = 26
    a(f"v_lshrrev_b32 {v(T0)}, 3, v0")
    a(f"v_and_b32 {v(T1)}, 2, {v(T0)}")
    a(f"s_and_b32 {s(sTMP)}, {s(sW)}, 1")
    a(f"s_lshl_b32 {s(sTMP)}, {s(sTMP)}, 2")
    a(f"v_or_b32 {v(T1)}, {s(sTMP)}, {v(T1)}")
    a(f"v_and_b32 {v(T2)}, 7, v0")
    a(f"v_xor_b32 {v(T1)}, {v(T1)}, {v(T2)}")
    a(f"v_lshlrev_b32 {v(T1)}, 4, {v(T1)}")
    a(f"s_mul_i32 {s(sM)}, {s(sX)}, 768")
    a(f"s_lshl_b32 {s(sTMP)}, {s(sW)}, 3")
    a(f"s_add_u32 {s(sTMP)}, {s(sTMP)}, {s(sM)}")
    a(f"v_add_u32 {v(T0)}, {s(sTMP)}, {v(T0)}")
    a(f"v_mul_u32_u24 {v(T0)}, 1280, {v(T0)}")
    a(f"s_lshl_b32 {s(sTMP)}, {s(sI)}, 7")
    a(f"v_add3_u32 {v(vSTG)}, {v(T0)}, {v(T1)}, {s(sTMP)}")
    a(f"v_lshrrev_b32 {v(T0)}, 4, v0")
    a(f"v_and_b32 {v(T1)}, 15, v0")
    a(f"v_lshrrev_b32 {v(T2)}, 2, {v(T1)}")
    a(f"v_and_b32 {v(T3)}, 1, {v(T1)}")
    a(f"v_lshl_add_u32 {v(T4)}, {v(T2)}, 1, {v(T3)}")
    a(f"v_bfe_u32 {v(T5)}, v0, 1, 1")
    a(f"s_mov_b32 {s(sS)}, 0")
    a(f"s_cmp_ge_u32 {s(sW)}, 4")
    a("s_cbranch_scc1 L_o_u")
    s_wave(cx, n_init)
    a.label("L_o_u")
    u_wave(cx, n_init)


def stage_wo(cx):
    a = cx.a
    if cx.osleep:
        a(f"s_sleep {cx.osleep}")
    a(f"s_lshl_b32 {s(sTMP)}, {s(sW)}, 10")
    for z in range(12):
        a(f"s_add_u32 m0, {s(sTMP)}, {z * 8192}")
        a(f"s_mov_b32 {s(sM)}, {z * 64 * 1280}")
        a(f"buffer_load_dwordx4 v26, {s(R_0, 4)}, {s(sM)} offen nt lds")
    a("s_waitcnt vmcnt(0)")
    a("s_barrier")


def vx_dma(cx, vL16, sLDS, sSRC, n, between=None):
    a = cx.a
    for k in range(n):
        if k % 4 == 0:
            a(f"s_add_u32 m0, {s(sLDS)}, {L_VX + k * 1024}")
            a(f"s_add_u32 {s(sTMP)}, {s(sSRC)}, {k * 1024}")
        a(f"buffer_load_dwordx4 {v(vL16)}, {s(R_WS, 4)}, {s(sTMP)} offen offset:{k % 4 * 1024} sc1 lds")
        if between:
            between(k)
    ring_next(a, sSRC, WS_V, SEGSTR, cx.rq)


def vx_setup(a, sLDS, sSRC, first, n):
    a(f"s_mul_i32 {s(sSRC)}, {s(sX)}, {4 * BLK}")
    a(f"s_and_b32 {s(sLDS)}, {s(sW)}, 3")
    a(f"s_mul_i32 {s(sLDS)}, {s(sLDS)}, {n * 1024}")
    a(f"s_add_u32 {s(sLDS)}, {s(sLDS)}, {first * 1024}")
    a(f"s_add_u32 {s(sSRC)}, {s(sSRC)}, {s(sLDS)}")
    a(f"s_add_u32 {s(sSRC)}, {s(sSRC)}, {hex(WS_V)}")


def tr_addr(a, dst):
    a(f"v_bfe_u32 v27, v0, 2, 2")
    a(f"v_and_b32 {v(T2)}, 2, v27")
    a(f"v_and_b32 {v(T3)}, 1, {v(T0)}")
    a(f"v_lshl_or_b32 {v(T2)}, {v(T3)}, 2, {v(T2)}")
    a(f"v_or_b32 {v(T2)}, {v(T2)}, {v(T5)}")
    a(f"v_lshlrev_b32 {v(T2)}, 4, {v(T2)}")
    a(f"v_lshl_add_u32 {v(T2)}, {v(T0)}, 10, {v(T2)}")
    a(f"v_lshl_add_u32 {v(T2)}, v27, 7, {v(T2)}")
    a(f"v_and_b32 {v(T3)}, 1, v0")
    a(f"v_lshl_add_u32 {v(dst)}, {v(T3)}, 3, {v(T2)}")


def s_wave(cx, n_init):
    a = cx.a
    vNEG, vL16, vHU, vSX, vMSK, vPW, vPM, vOW, vDW, vDR, vVG, vUW, vIDX, vTR = range(1, 15)
    HT = 16
    vFD, vCN = 30, 31
    VM = 112
    ACC = 124
    UC = 140
    WO = 160
    CA = 32
    E2 = 40
    SC = 44
    E = 54
    PK = 60
    CR = 64
    TT = 28
    sVXO, sPH, sPS, sNO, sCS = sA, sB2, sC, sD, sF
    sLO, sHI, sSC = 40, 41, 42
    a(f"v_mov_b32 {v(vNEG)}, -1")
    a(f"v_lshlrev_b32 {v(vL16)}, 4, v0")
    hint_addr(a, vHU)
    a(f"v_and_b32 {v(T2)}, 60, v0")
    a(f"v_and_b32 {v(T3)}, 1, v0")
    a(f"v_lshl_or_b32 {v(T2)}, {v(T3)}, 1, {v(T2)}")
    a(f"v_or_b32 {v(T2)}, {v(T2)}, {v(T5)}")
    a(f"s_mul_i32 {s(sM)}, {s(sW)}, 3072")
    a(f"s_add_u32 {s(sM)}, {s(sM)}, {RING_VM}")
    a(f"v_lshl_add_u32 {v(vVG)}, {v(T2)}, 4, {s(sM)}")
    a(f"s_lshl_b32 {s(sM)}, {s(sW)}, 9")
    a(f"s_add_u32 {s(sM)}, {s(sM)}, {L_UM}")
    a(f"v_lshl_add_u32 {v(vUW)}, v0, 3, {s(sM)}")
    a(f"v_mul_u32_u24 {v(vIDX)}, 0xaaaa, {v(T5)}")
    a(f"v_add_u32 {v(vIDX)}, 0x4444, {v(vIDX)}")
    tr_addr(a, vTR)
    a(f"s_mul_i32 {s(sM)}, {s(sW)}, {6 * 4096}")
    a(f"v_add_u32 {v(vTR)}, {s(sM)}, {v(vTR)}")
    a(f"v_bfe_u32 {v(T3)}, v0, 3, 1")
    a(f"v_and_b32 {v(TT)}, 1, v0")
    a(f"v_bfe_u32 {v(T2)}, v0, 1, 2")
    a(f"v_lshl_add_u32 {v(T1)}, {v(T2)}, 2, {v(TT)}")
    a(f"v_lshl_add_u32 {v(T1)}, {v(T3)}, 1, {v(T1)}")
    a(f"s_lshl_b32 {s(sM)}, {s(sI)}, 14")
    a(f"s_lshl_b32 {s(sTMP)}, {s(sW)}, 11")
    a(f"s_add_u32 {s(sM)}, {s(sM)}, {s(sTMP)}")
    a(f"s_add_u32 {s(sCS)}, {s(sM)}, {hex(WS_C)}")
    a(f"s_lshl_b32 {s(sTMP)}, {s(sX)}, 8")
    a(f"s_add_u32 {s(sM)}, {s(sM)}, {s(sTMP)}")
    a(f"v_lshl_add_u32 {v(T2)}, v0, 2, {s(sM)}")
    for k in range(7):
        a(f"v_xor_b32 {v(CA + k)}, {(k + 1) * 256}, {v(T2)}")
    a(f"s_lshl_b32 {s(sTMP)}, {s(sW)}, 8")
    a(f"s_add_u32 {s(sTMP)}, {s(sTMP)}, {L_OWN}")
    a(f"v_lshl_add_u32 {v(vOW)}, v0, 2, {s(sTMP)}")
    a(f"s_lshl_b32 {s(sM)}, {s(sI)}, 2")
    a(f"s_add_u32 {s(sM)}, {s(sM)}, {s(sW)}")
    a(f"s_lshl_b32 {s(sTMP)}, {s(sM)}, 5")
    a(f"s_lshl_b32 {s(sM)}, {s(sM)}, 8")
    a(f"v_lshl_add_u32 {v(vDR)}, v0, 2, {s(sM)}")
    a(f"v_and_b32 {v(T2)}, 15, v0")
    a(f"v_lshlrev_b32 {v(T2)}, 1, {v(T2)}")
    a(f"v_lshl_add_u32 {v(T2)}, {v(T0)}, 6, {v(T2)}")
    a(f"v_add_u32 {v(vDW)}, {s(sM)}, {v(T2)}")
    a(f"v_mul_u32_u24 {v(T2)}, 2560, {v(T0)}")
    a(f"v_lshl_add_u32 {v(T2)}, {v(T1)}, 1, {v(T2)}")
    a(f"buffer_load_short_d16 {v(T3)}, {v(T2)}, {s(R_1, 4)}, {s(sTMP)} offen")
    a(f"buffer_load_short_d16 {v(TT)}, {v(T2)}, {s(R_1, 4)}, {s(sTMP)} offen offset:1280")
    a(f"s_add_u32 {s(sPS)}, {s(sRING)}, {SLOT}")
    a(f"buffer_store_dword {v(vNEG)}, {v(vDR)}, {s(R_WS, 4)}, {s(sPS)} offen")
    a(f"s_lshl_b32 {s(sM)}, {s(sI)}, 2")
    a(f"s_add_u32 {s(sM)}, {s(sM)}, {s(sW)}")
    a(f"s_lshl_b32 {s(sM)}, {s(sM)}, 2")
    a(f"s_add_u32 {s(sM)}, {s(sM)}, {s(sRING)}")
    a(f"s_add_u32 {s(sM)}, {s(sM)}, {RING_FD}")
    a("v_cmp_eq_u32 vcc, 0, v0")
    a(f"v_mov_b32 {v(T2)}, {hex(OOB)}")
    a(f"v_mov_b32 {v(T4)}, {s(sM)}")
    a(f"v_cndmask_b32 {v(vFD)}, {v(T2)}, {v(T4)}, vcc")
    a(f"v_mov_b32 {v(vCN)}, 0")
    a(f"buffer_store_dword {v(vCN)}, {v(vFD)}, {s(R_WS, 4)}, 0 offen")
    a("s_waitcnt vmcnt(2)")
    a(f"buffer_store_short {v(T3)}, {v(vDW)}, {s(R_WS, 4)}, {s(sRING)} offen")
    a(f"buffer_store_short {v(TT)}, {v(vDW)}, {s(R_WS, 4)}, {s(sRING)} offen offset:32")
    a("s_waitcnt vmcnt(0) lgkmcnt(0)")
    cx.stamp(1, 4)
    signal_ready(cx, T0)
    stage_wo(cx)
    for t in range(4):
        a(f"v_xor_b32 {v(T2)}, {32 * t}, {v(vTR)}")
        for k in range(6):
            for u in range(2):
                a(f"ds_read_b64_tr_b16 {v(WO + 24 * t + 4 * k + 2 * u, 2)}, {v(T2)} offset:{k * 4096 + u * 512}")
        a("s_waitcnt lgkmcnt(0)")
    permute_columns(a, WO, 96, T2, T3)
    a(f"s_mov_b32 {s(sLO)}, 0x3f80")
    a(f"s_mov_b32 {s(sHI)}, 0x3f800000")
    a(f"s_mov_b32 {s(sSC)}, {f32(192 ** -0.5 * math.log2(math.e))}")
    a(f"s_mov_b32 {s(sSC + 1)}, {s(sSC)}")
    cx.stamp(2, 4)
    if cx.ptest:
        a("s_sleep 100")
        a(f"s_mov_b32 {s(sS)}, {cx.keep + 1}")
        cx.save_stamps()
        a("s_sleep 100")
        cx.dump_stamps(8)
        a("s_endpgm")
    cx.stamp(3, 4)
    slots_init(a, R_CUR, R_OTH, sPS, sRING)
    a(f"s_mov_b32 {s(sPH)}, 0")
    a("s_barrier")
    cx.stamp(4, 4)
    vx_setup(a, sM, sVXO, 4 * cx.d1, 12 - cx.d1)
    vx_dma(cx, vL16, sM, sVXO, 12 - cx.d1)
    if cx.rtouch:
        a(f"s_lshl_b32 {s(sTMP)}, {s(sI)}, 2")
        a(f"s_add_u32 {s(sTMP)}, {s(sTMP)}, {s(sW)}")
        a(f"s_lshl_b32 {s(sTMP)}, {s(sTMP)}, 11")
        a(f"s_add_u32 {s(sTMP)}, {s(sTMP)}, {s(sRING)}")
        a(f"v_lshrrev_b32 {v(T3)}, 2, v0")
        a(f"v_lshlrev_b32 {v(T3)}, 7, {v(T3)}")
        a(f"buffer_load_dword {v(T4)}, {v(T3)}, {s(R_WS, 4)}, {s(sTMP)} offen sc1")
    near_pick(cx, sCS)
    own_side(a, sCS)
    a(f"s_and_b32 {s(sTMP)}, {s(sX)}, {cx.nrep - 1}")
    a(f"s_mul_i32 {s(sTMP)}, {s(sTMP)}, {C_REP}")
    a(f"s_add_u32 {s(sCS)}, {s(sCS)}, {s(sTMP)}")
    a(f"s_add_u32 {s(sCS)}, {s(sCS)}, {hex(WS_C)}")
    sub_srd(a, R_C, C_SLOT)
    set_base(a, R_C, sCS)
    a("s_waitcnt vmcnt(0)")
    a("s_barrier")
    for _ in range(cx.crounds):
        a("s_barrier")
    a("s_setprio 3")

    a.label("L_os_loop")
    a("s_barrier")
    cx.stamp(0)
    cx.stamp(0, 3)
    cx.stamp(5, 4)
    cx.stamp(0, 5)
    for i in range(16):
        a(f"v_mov_b32 {v(ACC + i)}, 0")
    a(f"v_add_u32 {v(vCN)}, 1, {v(vCN)}")
    if cx.udelay:
        a(f"s_sleep {cx.udelay}")
    hint_wait(cx, vHU, HT, "L_os_hint", cx.hn)
    cx.stamp(1)
    cx.stamp(1, 3)

    def vm_loads(o):
        for j in range(3):
            o(f"buffer_load_dwordx4 {v(VM + 4 * j, 4)}, {v(vVG)}, {s(R_CUR, 4)}, 0 offen offset:{1024 * j} sc1")
    vm_loads(a)
    a("s_barrier")
    a.label("L_os_pollv")
    for j in range(3):
        a(f"s_waitcnt vmcnt({2 - j})")
        if j == 0:
            cx.stamp(2)
        for t in range(4):
            a(f"v_smfmac_f32_16x16x64_bf16 {v(ACC + 4 * t, 4)}, {v(VM + 4 * j, 4)}, {v(WO + 24 * t + 8 * j, 8)}, {v(vIDX)}")
            if t < 2:
                r = VM + 4 * j + 2 * t
                a(f"v_max3_u32 {v(TT)}, {v(r)}, {v(r + 1)}, {v(TT) if j + t else 0}")
            elif j == 2 and t == 2:
                a(f"v_cmp_eq_u32 vcc, -1, {v(TT)}")
    cx.retry("L_os_vre", 3)
    cx.tail.label("L_os_vre")
    vm_loads(cx.tail)
    cx.tail.nop(3)
    for i in range(16):
        cx.tail(f"v_mov_b32 {v(ACC + i)}, 0")
    cx.tail("s_nop 0")
    cx.tail("s_branch L_os_pollv")
    a.nop(2)
    a("s_setprio 0")
    if cx.d1 < 12 and cx.d2 == 0:
        vx_dma(cx, vL16, sM, sVXO, 12 - cx.d1)
    for t in range(4):
        for i in range(2):
            a(f"v_cvt_pk_bf16_f32 {v(UC + 2 * t + i)}, {v(ACC + 4 * t + 2 * i)}, {v(ACC + 4 * t + 2 * i + 1)}")
        a(f"ds_write_b64 {v(vUW)}, {v(UC + 2 * t, 2)} offset:{2048 * t}")
    if cx.d1 < 12 and cx.d2 == 1:
        vx_dma(cx, vL16, sM, sVXO, 12 - cx.d1)
    a("s_waitcnt lgkmcnt(0)")
    cx.stamp(3)
    a("s_setprio 3")
    a("s_barrier")
    cx.stamp(4)
    cx.stamp(1, 5)
    a(f"buffer_store_dword {v(vNEG)}, {v(vDR)}, {s(R_CUR, 4)}, 0 offen")

    NR = cx.crounds

    def cloads(o, k):
        for x in range(7):
            o(f"buffer_load_dword {v(CR + 8 * k + x)}, {v(CA + x)}, {s(R_C, 4)}, 0 offen sc1")

    def csum(b, lo, hi):
        for x in range(lo, hi):
            a(f"v_dot2_f32_bf16 {v(E)}, {v(b + x)}, {s(sLO)}, {v(E2) if x == 0 else v(E)}")
            a(f"v_dot2_f32_bf16 {v(E + 1)}, {v(b + x)}, {s(sHI)}, {v(E2 + 1) if x == 0 else v(E + 1)}")

    if cx.d1 < 12:
        a("s_waitcnt vmcnt(1)")
    for k in range(NR):
        a("s_barrier")
        cx.stamp(2 + min(k, 1), 5)
        cloads(a, k)
        if k == 0:
            a(f"ds_read_b32 {v(TT)}, {v(vOW)}")
            a("s_waitcnt lgkmcnt(0)")
            a(f"v_lshlrev_b32 {v(E2)}, 16, {v(TT)}")
            a(f"v_and_b32 {v(E2 + 1)}, 0xffff0000, {v(TT)}")
    tl = cx.tail
    for k in range(NR):
        b = CR + 8 * k
        a.label(f"L_os_c{k}")
        a(f"s_waitcnt vmcnt({7 * (NR - 1)})")
        cx.stamp(4, 5)
        for q in range(4):
            a(f"v_bitop3_b32 {v(PK + q)}, {v(b + 2 * q)}, {v(b + min(2 * q + 1, 6))}, {s(sPH)} bitop3:0x7e")
        a(f"v_or3_b32 {v(PK)}, {v(PK)}, {v(PK + 1)}, {v(PK + 2)}")
        a(f"v_bitop3_b32 {v(PK)}, {v(PK)}, {v(PK + 3)}, 1 bitop3:0xa8")
        a(f"v_cmp_ne_u32 vcc, 0, {v(PK)}")
        csum(b, 0, cx.cspec)
        a(f"s_cbranch_vccnz L_os_r{k}")
        a.label(f"L_os_g{k}")
        csum(b, cx.cspec, 7)
        a(f"s_add_u32 {s(sS)}, {s(sS)}, 1")
        a(f"s_xor_b32 {s(sCS)}, {s(sCS)}, {C_SLOT}")
        a(f"s_bfe_u32 {s(sPH)}, {s(sS)}, 0x10001")
        a(f"v_cvt_pk_bf16_f32 {v(TT)}, {v(E)}, {v(E + 1)}")
        a(f"buffer_store_short {v(TT)}, {v(vDW)}, {s(R_OTH, 4)}, 0 offen")
        a(f"buffer_store_short_d16_hi {v(TT)}, {v(vDW)}, {s(R_OTH, 4)}, 0 offen offset:32")
        if k < NR - 1:
            a("s_branch L_os_csum")
        tl.label(f"L_os_r{k}")
        if cx.diag:
            tl("s_add_u32 s96, s96, 1")
        tl(f"s_sub_u32 {s(sB)}, {s(sB)}, 1")
        tl(f"s_cbranch_scc1 L_os_x{k}")
        cloads(tl, k)
        tl(f"s_branch L_os_c{(k + 1) % NR}")
        tl.label(f"L_os_x{k}")
        tl(f"s_mov_b32 {s(sB)}, 0")
        tl(f"s_branch L_os_g{k}")
    a.label("L_os_csum")
    cx.stamp(5, 5)
    cx.stamp(5)
    slots_flip(a, R_CUR, R_OTH, sPS)
    set_base(a, R_C, sCS)
    if cx.ddma:
        for i in range(cx.fdel):
            a(f"v_mov_b32 {v(ACC + i)}, 0")
        a(f"buffer_store_dword {v(vCN)}, {v(vFD)}, {s(R_WS, 4)}, 0 offen")
    cx.save_stamps()
    cx.trace(150)
    a(f"s_cmp_lt_u32 {s(sS)}, 63")
    a("s_cbranch_scc1 L_os_loop")
    cx.dump_stamps(8, 1, 150)
    if cx.wb:
        a(f"s_or_b32 {s(sTMP)}, {s(sI)}, {s(sW)}")
        a("s_cbranch_scc1 L_os_end")
        if cx.wb > 1:
            a(f"s_sleep {cx.wb}")
        a("buffer_wbl2 sc1")
        a("s_waitcnt vmcnt(0)")
        a.label("L_os_end")
    a("s_endpgm")


def near_pick(cx, reg):
    a = cx.a
    a(f"v_mov_b32 {v(T2)}, {L_NEAR}")
    a(f"ds_read_b32 {v(T0)}, {v(T2)}")
    a("s_waitcnt lgkmcnt(0)")
    a(f"v_readfirstlane_b32 {s(reg)}, {v(T0)}")
    a.nop(2)
    a(f"s_lshl_b32 {s(reg)}, {s(reg)}, 12")
    a(f"s_and_b32 {s(reg)}, {s(reg)}, 8192")


def own_side(a, reg):
    a(f"s_lshl_b32 {s(sTMP)}, {s(sX)}, 11")
    a(f"s_and_b32 {s(sTMP)}, {s(sTMP)}, 8192")
    a(f"s_xor_b32 {s(reg)}, {s(reg)}, {s(sTMP)}")


def hint_addr(a, vHU):
    a(f"s_and_b32 {s(sM)}, {s(sW)}, 3")
    a(f"s_mul_i32 {s(sM)}, {s(sM)}, 12")
    a(f"s_add_u32 {s(sM)}, {s(sM)}, {s(sRING)}")
    a(f"s_lshl_b32 {s(sTMP)}, {s(sI)}, 7")
    a(f"s_add_u32 {s(sM)}, {s(sM)}, {s(sTMP)}")
    a(f"s_add_u32 {s(sM)}, {s(sM)}, {RING_FP + 128}")
    a(f"v_min_u32 {v(T2)}, 2, v0")
    a(f"v_lshl_add_u32 {v(vHU)}, {v(T2)}, 2, {s(sM)}")


def hint_wait(cx, vHU, tt, label, n=3):
    a = cx.a
    for k in range(n - 1):
        a(f"buffer_load_dword {v(tt + k)}, {v(vHU)}, {s(R_WS, 4)}, 0 offen sc1")
    a.label(label)
    for k in range(n):
        a(f"buffer_load_dword {v(tt + (k + n - 1) % n)}, {v(vHU)}, {s(R_WS, 4)}, 0 offen sc1")
        a(f"s_waitcnt vmcnt({n - 1})")
        a(f"v_cmp_ge_u32 vcc, {s(sS)}, {v(tt + k)}")
        if k < n - 1:
            a(f"s_cbranch_vccz {label}_ok")
    cx.retry(label)
    a.label(label + "_ok")


def u_wave(cx, n_init):
    a = cx.a
    vNEG, vL16, vUR, vPR, vIDP, vCW, vFV, vTR, vOW, vPR1, vHD, vHC, vCW2, vSX, vMSK, vPW, vPM, vHU = range(1, 19)
    SC, E, PK = 48, 58, 64
    sLO, sHI, sSC = 40, 41, 42
    TT = 28
    F = 32
    ACC = 80
    PA = 96
    UB = 100
    WO = 132
    sCS, sCS2, sPH, sVXO, sPS = sA, sB2, sC, sD, sF
    HT = 228
    CWR = 230
    a(f"v_mov_b32 {v(vNEG)}, -1")
    a(f"v_lshlrev_b32 {v(vL16)}, 4, v0")
    a(f"s_lshl_b32 {s(sM)}, {s(sW)}, 11")
    a(f"s_add_u32 {s(sM)}, {s(sM)}, {L_UM - 4 * 2048}")
    a(f"v_lshl_add_u32 {v(vUR)}, v0, 3, {s(sM)}")
    a(f"s_lshl_b32 {s(sM)}, {s(sI)}, 2")
    a(f"s_add_u32 {s(sM)}, {s(sM)}, {s(sRING)}")
    a(f"s_add_u32 {s(sM)}, {s(sM)}, {RING_HD}")
    a(f"s_and_b32 {s(sTMP)}, {s(sW)}, 3")
    a(f"s_cselect_b32 {s(sM)}, {hex(OOB)}, {s(sM)}")
    a("v_cmp_gt_u32 vcc, 12, v0")
    a(f"v_mov_b32 {v(T2)}, {hex(OOB)}")
    a(f"v_lshl_add_u32 {v(T3)}, v0, 7, {s(sM)}")
    a(f"v_cndmask_b32 {v(vHD)}, {v(T2)}, {v(T3)}, vcc")
    a(f"v_mov_b32 {v(vHC)}, 0")
    a(f"buffer_store_dword {v(vHC)}, {v(vHD)}, {s(R_WS, 4)}, 0 offen")
    a(f"v_and_b32 {v(T2)}, 1, {v(T0)}")
    a(f"v_lshlrev_b32 {v(T3)}, 1, {v(T2)}")
    a(f"v_xor_b32 {v(T3)}, {v(T3)}, {v(T1)}")
    a(f"v_lshlrev_b32 {v(T3)}, 3, {v(T3)}")
    a(f"v_lshl_add_u32 {v(T3)}, {v(T2)}, 7, {v(T3)}")
    a(f"v_lshrrev_b32 {v(T2)}, 1, {v(T0)}")
    a(f"v_lshl_add_u32 {v(T3)}, {v(T2)}, 9, {v(T3)}")
    a(f"v_add_u32 {v(vPR)}, {L_P}, {v(T3)}")
    a(f"v_xor_b32 {v(vPR1)}, {256 + 64}, {v(vPR)}")
    a(f"v_mul_u32_u24 {v(vIDP)}, {hex(0xdede - 0x8484)}, {v(T5)}")
    a(f"v_add_u32 {v(vIDP)}, 0x8484, {v(vIDP)}")
    a(f"s_and_b32 {s(sE)}, {s(sW)}, 3")
    a(f"s_lshl_b32 {s(sM)}, {s(sI)}, 14")
    a(f"s_lshl_b32 {s(sTMP)}, {s(sE)}, 11")
    a(f"s_add_u32 {s(sM)}, {s(sM)}, {s(sTMP)}")
    a(f"s_lshl_b32 {s(sTMP)}, {s(sX)}, 8")
    a(f"s_add_u32 {s(sM)}, {s(sM)}, {s(sTMP)}")
    a(f"v_lshl_add_u32 {v(vCW)}, v0, 2, {s(sM)}")
    a(f"v_min_u32 {v(T2)}, 47, v0")
    a(f"s_add_u32 {s(sM)}, {s(sRING)}, {RING_FV}")
    a(f"v_lshl_add_u32 {v(vFV)}, {v(T2)}, 2, {s(sM)}")
    a(f"s_lshl_b32 {s(sTMP)}, {s(sE)}, 8")
    a(f"s_add_u32 {s(sTMP)}, {s(sTMP)}, {L_OWN}")
    a(f"v_lshl_add_u32 {v(vOW)}, v0, 2, {s(sTMP)}")
    for k in range(4 * cx.nrep):
        a(f"s_mov_b32 {s(sM)}, {hex(WS_C + (k >> 1 & 1) * C_SLOT + (k & 1) * 8192 + (k >> 2) * C_REP)}")
        a(f"buffer_store_dword {v(vNEG)}, {v(vCW)}, {s(R_WS, 4)}, {s(sM)} offen sc1")
    a(f"s_mul_i32 {s(sM)}, {s(sE)}, {3 * 768}")
    a(f"s_add_u32 {s(sM)}, {s(sM)}, {RING_SC}")
    a(f"v_lshl_add_u32 {v(vSX)}, v0, 2, {s(sM)}")
    a(f"v_or_b32 {v(vMSK)}, 8, {v(vSX)}")
    a(f"s_lshl_b32 {s(sTMP)}, {s(sE)}, 10")
    a(f"s_add_u32 {s(sTMP)}, {s(sTMP)}, {L_P}")
    a(f"v_bfe_u32 {v(T2)}, v0, 2, 1")
    a(f"v_bfe_u32 {v(T3)}, v0, 3, 1")
    a(f"v_and_b32 {v(TT)}, 1, v0")
    a(f"v_lshlrev_b32 {v(TT + 1)}, 1, {v(T3)}")
    a(f"v_xor_b32 {v(TT + 1)}, {v(TT + 1)}, {v(T0)}")
    a(f"v_lshlrev_b32 {v(TT + 1)}, 3, {v(TT + 1)}")
    a(f"v_lshl_add_u32 {v(TT + 1)}, {v(T3)}, 7, {v(TT + 1)}")
    a(f"v_lshl_add_u32 {v(TT + 1)}, {v(T2)}, 8, {v(TT + 1)}")
    a(f"v_add_u32 {v(TT + 1)}, {s(sTMP)}, {v(TT + 1)}")
    a(f"v_lshl_add_u32 {v(vPW)}, {v(T2)}, 6, {v(TT + 1)}")
    a(f"v_lshl_add_u32 {v(vPW)}, {v(TT)}, 5, {v(vPW)}")
    a(f"v_lshl_add_u32 {v(vPW)}, {v(T5)}, 2, {v(vPW)}")
    a(f"v_xor_b32 {v(T2)}, 1, {v(T2)}")
    a(f"v_lshl_add_u32 {v(vPM)}, {v(T2)}, 6, {v(TT + 1)}")
    a(f"v_lshl_add_u32 {v(vPM)}, {v(T5)}, 5, {v(vPM)}")
    a(f"v_lshl_add_u32 {v(vPM)}, {v(TT)}, 2, {v(vPM)}")
    for i in range(4):
        a(f"v_mov_b32 {v(PK + i)}, 0")
    a(f"v_add_u32 {v(T2)}, {s(sTMP)}, {v(vL16)}")
    a(f"ds_write_b128 {v(T2)}, {v(PK, 4)}")
    hint_addr(a, vHU)
    a(f"v_add_u32 {v(vHU)}, 64, {v(vHU)}")
    tr_addr(a, vTR)
    a(f"s_lshl_b32 {s(sTMP)}, {s(sE)}, 5")
    a(f"v_xor_b32 {v(vTR)}, {s(sTMP)}, {v(vTR)}")
    for h in range(4):
        a(f"v_mov_b32 {v(UB + 8 * h + 6)}, 0")
        a(f"v_mov_b32 {v(UB + 8 * h + 7)}, 0")
    a("s_waitcnt vmcnt(0)")
    signal_ready(cx, T0)
    stage_wo(cx)
    for t in range(24):
        if t == 12:
            a(f"v_add_u32 {v(vTR)}, {12 * 4096}, {v(vTR)}")
        for u in range(2):
            a(f"ds_read_b64_tr_b16 {v(WO + 4 * t + 2 * u, 2)}, {v(vTR)} offset:{(t % 12) * 4096 + u * 512}")
        if t % 4 == 3:
            a("s_waitcnt lgkmcnt(4)")
    a("s_waitcnt lgkmcnt(0)")
    permute_columns(a, WO, 96, T0, T1)
    if cx.ptest:
        a("s_endpgm")
    wait_ready(cx, T0, n_init, 4, 1, keep=L_NEAR)

    a("s_setprio 2")
    a(f"s_mov_b32 {s(sLO)}, 0x3f80")
    a(f"s_mov_b32 {s(sHI)}, 0x3f800000")
    a(f"s_mov_b32 {s(sSC)}, {f32(192 ** -0.5 * math.log2(math.e))}")
    a(f"s_mov_b32 {s(sSC + 1)}, {s(sSC)}")
    sub_srd(a, R_CUR, SLOT)
    a(f"s_mov_b32 {s(sPS)}, {s(sRING)}")
    set_base(a, R_CUR, sPS)

    def vflags(label, add):
        a(f"s_add_u32 {s(sTMP)}, {s(sS)}, {add}")
        a.label(label)
        a(f"buffer_load_dword {v(TT)}, {v(vFV)}, {s(R_WS, 4)}, 0 offen sc1")
        a("s_waitcnt vmcnt(0)")
        a(f"v_cmp_gt_u32 vcc, {s(sTMP)}, {v(TT)}")
        cx.retry(label)

    vx_setup(a, sM, sVXO, 0, cx.d1)
    a("s_barrier")
    vx_dma(cx, vL16, sM, sVXO, cx.d1)
    near_pick(cx, sCS2)
    own_side(a, sCS2)
    a(f"v_add_u32 {v(vCW2)}, {s(sCS2)}, {v(vCW)}")
    a(f"v_xor_b32 {v(vCW)}, 8192, {v(vCW2)}")
    for r in range(1, cx.nrep):
        a(f"v_add_u32 {v(CWR + 2 * r)}, {r * C_REP}, {v(vCW)}")
        a(f"v_add_u32 {v(CWR + 2 * r + 1)}, {r * C_REP}, {v(vCW2)}")
    a(f"s_mov_b32 {s(sCS)}, {hex(WS_C)}")
    sub_srd(a, R_C, C_SLOT)
    set_base(a, R_C, sCS)
    a("s_waitcnt vmcnt(0)")
    a("s_barrier")

    a.label("L_ou_loop")

    def cvt_head(h):
        b = ACC + 8 * (h & 1)
        return [f"v_cvt_pk_bf16_f32 {v(UB + 8 * h + 4 * m + i)}, {v(b + 4 * m + 2 * i)}, {v(b + 4 * m + 2 * i + 1)}"
                for m in range(2) for i in range(2)]

    D = 10

    def rd(k):
        a(f"ds_read_b128 {v(F + 4 * (k % 12), 4)}, {v(vL16)} offset:{L_VX + k * 1024}")

    def mm(k):
        h, t, m = k // 12, (k % 12) // 2, k % 2
        acc = ACC + 8 * (h & 1) + 4 * m
        c = "0" if t == 0 else v(acc, 4)
        a(f"v_mfma_f32_16x16x32_bf16 {v(acc, 4)}, {v(F + 4 * (k % 12), 4)}, {v(WO + 4 * (6 * h + t), 4)}, {c}")
    for k in range(D):
        rd(k)
    pend = []
    nbar = 0
    for k in range(36):
        if k % 2 == 0:
            a(f"s_waitcnt lgkmcnt({D - 2})")
        mm(k)
        rd(k + D)
        if k % 12 == 4 and k > 12:
            pend = cvt_head(k // 12 - 1)
        if pend and k % 2 == 1:
            a(pend.pop(0))
        if k >= cx.bk and (k - cx.bk) % cx.bgap == 0 and (k - cx.bk) // cx.bgap < cx.crounds:
            a("s_barrier")
            nbar += 1
        if k == cx.hd:
            a(f"buffer_store_dword {v(vHC)}, {v(vHD)}, {s(R_WS, 4)}, 0 offen")
        if k == cx.vfk:
            a(f"buffer_load_dword {v(HT)}, {v(vFV)}, {s(R_WS, 4)}, 0 offen sc1")
    assert nbar == cx.crounds
    rd(46)
    rd(47)
    a.nop(4)
    for x in cvt_head(2):
        a(x)
    if cx.hd >= 36:
        a.nop(4 * (cx.hd - 36))
        a(f"buffer_store_dword {v(vHC)}, {v(vHD)}, {s(R_WS, 4)}, 0 offen")
    cx.stamp(5)
    cx.save_stamps()
    a(f"s_add_u32 {s(sTMP)}, {s(sS)}, 2")
    a(f"s_waitcnt vmcnt({1 if cx.hd > cx.vfk else 0}) lgkmcnt(0)")
    a(f"v_cmp_gt_u32 vcc, {s(sTMP)}, {v(HT)}")
    a("s_cbranch_vccnz L_ou_vwait")
    a.label("L_ou_vok")
    a("s_barrier")
    cx.stamp(0)
    assert 4 * cx.d1 - D > cx.bk
    vx_dma(cx, vL16, sM, sVXO, cx.d1, lambda n: [mm(36 + 3 * n + i) for i in range(3)] if n < 4 else None)
    a.nop(2)
    for i in range(4):
        a(f"v_mov_b32 {v(PA + i)}, 0")
    a(f"v_add_u32 {v(vHC)}, 1, {v(vHC)}")
    a(f"s_bfe_u32 {s(sPH)}, {s(sS)}, 0x10001")
    for x in cvt_head(3):
        a(x)
    a("s_barrier")
    if cx.sdel:
        a.nop(cx.sdel)
    if cx.hb >= 0:
        hint_wait(cx, vHU, HT, "L_ou_hint", cx.hn)
    cx.stamp(1)

    def score_loads(o, bar=-1):
        for k in range(9):
            o(f"buffer_load_dword {v(SC + k)}, {v(vMSK if k % 3 == 2 else vSX)}, {s(R_CUR, 4)}, 0 offen offset:{256 * k} sc1")
            if k + 1 == bar:
                o("s_barrier")
    score_loads(a, cx.b1)
    a.label("L_os_polls")
    for j in range(3):
        a(f"s_waitcnt vmcnt({6 - 3 * j})")
        if j == 0:
            a(f"v_max3_u32 {v(TT)}, {v(SC)}, {v(SC + 1)}, {v(SC + 2)}")
        else:
            a(f"v_max3_u32 {v(TT)}, {v(TT)}, {v(SC + 3 * j)}, {v(SC + 3 * j + 1)}")
            a(f"v_max_u32 {v(TT)}, {v(TT)}, {v(SC + 3 * j + 2)}")
        if j == 2:
            a(f"v_cmp_eq_u32 vcc, -1, {v(TT)}")
        for k in range(6):
            c = v(E + k) if j else "0"
            a(f"v_dot2_f32_bf16 {v(E + k)}, {v(SC + 3 * j + k // 2)}, {s(sLO + k % 2)}, {c}")
    cx.retry("L_os_sre", 1)
    cx.tail.label("L_os_sre")
    score_loads(cx.tail)
    cx.tail("s_branch L_os_polls")
    cx.stamp(2)
    cx.stamp(5, 3)
    a.nop(1)
    a(f"v_max3_f32 {v(TT)}, {v(E)}, {v(E + 2)}, {v(E + 4)}")
    a(f"v_max3_f32 {v(TT + 1)}, {v(E + 1)}, {v(E + 3)}, {v(E + 5)}")
    DPP = ("quad_perm:[1,0,3,2]", "quad_perm:[2,3,0,1]", "row_half_mirror", "row_mirror")

    def across(op):
        for d in DPP:
            a.nop(1)
            for b in range(2):
                a(f"{op} {v(TT + b)}, {v(TT + b)}, {v(TT + b)} {d} row_mask:0xf bank_mask:0xf")
    across("v_max_f32_dpp")
    a(f"v_pk_mul_f32 {v(TT, 2)}, {v(TT, 2)}, {s(sSC, 2)}")
    for k in range(3):
        a(f"v_pk_fma_f32 {v(E + 2 * k, 2)}, {v(E + 2 * k, 2)}, {s(sSC, 2)}, {v(TT, 2)} neg_lo:[0,0,1] neg_hi:[0,0,1]")
    for k in range(6):
        a(f"v_exp_f32 {v(E + k)}, {v(E + k)}")
    a(f"v_pk_add_f32 {v(TT, 2)}, {v(E, 2)}, {v(E + 2, 2)}")
    a(f"v_pk_fma_f32 {v(TT, 2)}, {v(E + 4, 2)}, 0.5, {v(TT, 2)} op_sel_hi:[1,0,1]")
    a.nop(1)
    across("v_add_f32_dpp")
    a(f"v_rcp_f32 {v(TT)}, {v(TT)}")
    a(f"v_rcp_f32 {v(TT + 1)}, {v(TT + 1)}")
    a.nop(1)
    for k in range(3):
        a(f"v_pk_mul_f32 {v(E + 2 * k, 2)}, {v(E + 2 * k, 2)}, {v(TT, 2)}")
    for k in range(3):
        a(f"v_cvt_pk_bf16_f32 {v(PK + k)}, {v(E + 2 * k)}, {v(E + 2 * k + 1)}")
        if k == 1:
            a(f"ds_write2st64_b32 {v(vPW)}, {v(PK)}, {v(PK + 1)} offset1:2")
    a(f"ds_write_b32 {v(vPM)}, {v(PK + 2)}")
    a("s_waitcnt lgkmcnt(0)")
    cx.stamp(3)
    a("s_barrier")
    rds = []
    for h in range(4):
        rds.append(f"ds_read_b64_tr_b16 {v(F + 4 * h, 2)}, {v(vPR)} offset:{h * 1024}")
        rds.append(f"ds_read_b64_tr_b16 {v(F + 4 * h + 2, 2)}, {v(vPR1)} offset:{h * 1024}")
        rds.append(f"ds_read_b64 {v(UB + 8 * h + 2, 2)}, {v(vUR)} offset:{h * 512}")
    for x in rds:
        a(x)
    for h in range(4):
        a(f"s_waitcnt lgkmcnt({9 - 3 * h})")
        a(f"v_smfmac_f32_16x16x64_bf16 {v(PA, 4)}, {v(F + 4 * h, 4)}, {v(UB + 8 * h, 8)}, {v(vIDP)}")
    a(f"s_add_u32 {s(sS)}, {s(sS)}, 1")
    a.nop(7)
    a(f"v_pk_add_f32 {v(PA, 2)}, {v(PA, 2)}, {v(PA + 2, 2)}")
    a(f"v_cvt_pk_bf16_f32 {v(TT + 1)}, {v(PA)}, {v(PA + 1)}")
    a(f"v_and_or_b32 {v(TT)}, {v(TT + 1)}, -2, {s(sPH)}")
    for side, first in enumerate((vCW, vCW2)):
        for r in range(cx.nrep):
            a(f"buffer_store_dword {v(TT)}, {v(CWR + 2 * r + side if r else first)}, {s(R_C, 4)}, 0 offen sc1")
    a(f"ds_write_b32 {v(vOW)}, {v(TT)}")
    cx.stamp(4)
    a(f"s_xor_b32 {s(sCS)}, {s(sCS)}, {C_SLOT}")
    set_base(a, R_C, sCS)
    a(f"s_xor_b32 {s(sPS)}, {s(sPS)}, {SLOT}")
    set_base(a, R_CUR, sPS)
    a(f"s_cmp_lt_u32 {s(sS)}, 63")
    a("s_cbranch_scc1 L_ou_loop")
    a(f"buffer_store_dword {v(vHC)}, {v(vHD)}, {s(R_WS, 4)}, 0 offen")
    a("s_waitcnt lgkmcnt(0)")
    for k in range(cx.crounds):
        a(f"s_sleep {6 if k == 0 else 3}")
        a("s_barrier")
    cx.dump_stamps(8)
    a("s_endpgm")
    a.label("L_ou_vwait")
    if cx.diag:
        a("s_add_u32 s96, s96, 1")
    vflags("L_ou_vf", 2)
    a("s_branch L_ou_vok")
```

```python
from common import *
import role_ax

STG = 49152
XB0, XB1 = 98304, 0
L_MEM = 147456
L_QKX = 157696
L_KX = 49152

sH, sJ, sHH, sRING = 61, 62, 63, 64
sQ, sK, sPAR, sPARO, sXO, sM = 65, 66, 67, 68, 69, 70
sTMP = 71
sRE = sPARO
R_CUR, R_OTH = R_0, R_1

vXA0, vXA1, vMEM, vIDX, vNEG, vGST = 1, 2, 3, 4, 5, 6
vKXW, vKXR, vQKW, vQKR, vSC, vKM, vFQ = 7, 8, 9, 10, 11, 12, 13
vXG, vDG4, vDG1, vDL4, vDL1, vVR, vVP, vFL, vRS = 7, 8, 9, 10, 11, 12, 13, 14, 15
F = 16
ACC = 56
KXO = 72
XO = 80
CV = 88
W0 = 96
W1 = 176
T0, T1, T2, T3, T4, T5 = 56, 57, 58, 59, 60, 61
vSTV = 64
vSTG, vTR = 62, 63


def stage_chunk(a, cc):
    buf = (cc % 3) * STG
    for hi in range(2):
        for M in (0, 2, 1):
            a(f"s_add_u32 m0, {s(sTMP)}, {buf + M * 16384 + hi * 8192}")
            a(f"s_mov_b32 {s(sM)}, {(128 * cc + 64 * hi) * 12288}")
            a(f"buffer_load_dwordx4 {v(vSTV if M == 2 else vSTG)}, {s(R_0 + 4 * M, 4)}, {s(sM)} offen nt lds")


def read_chunk(a, cc, tiles):
    buf = (cc % 3) * STG
    a(f"v_add_u32 {v(T0)}, {buf}, {v(vTR)}")
    n = 0
    for M, reg in tiles:
        for tl in range(4):
            for u in range(2):
                r = reg + (4 * cc + tl) * 4 + 2 * u
                a(f"ds_read_b64_tr_b16 {v(r, 2)}, {v(T0)} offset:{M * 16384 + tl * 4096 + u * 512}")
                n += 1
                if n % 12 == 0:
                    a("s_waitcnt lgkmcnt(4)")
    a("s_waitcnt lgkmcnt(0)")


def x_dma(a, k):
    if k:
        a("s_add_u32 m0, m0, 896")
        a("s_nop 0")
    a(f"buffer_load_dwordx4 {v(vXG)}, {s(R_3, 4)}, {s(sXO)} offen offset:{128 * k} lds")


def xread(a, t, m):
    slot = (2 * t + m) % 10
    a(f"ds_read_b128 {v(F + 4 * slot, 4)}, {v(vXA0 + (t & 1))} offset:{m * 20480 + (t >> 1) * 1024}")


NOBG = 0


def background(a, tiles, hook=None):
    D = 4
    for t in range(D):
        xread(a, t, 0)
        xread(a, t, 1)
    for t in range(20):
        ahead = min(D - 1, 19 - t)
        a(f"s_waitcnt lgkmcnt({2 * ahead})")
        first = True
        for m in range(2):
            for ti, reg in enumerate(tiles):
                acc = ACC + 8 * ti + 4 * m
                slot = (2 * t + m) % 10
                c = "0" if t == 0 else v(acc, 4)
                if not NOBG or t == 0:
                    a(f"v_mfma_f32_16x16x32_bf16 {v(acc, 4)}, {v(reg + 4 * t, 4)}, {v(F + 4 * slot, 4)}, {c}")
                if first and t + D < 20:
                    xread(a, t + D, 0)
                    xread(a, t + D, 1)
                first = False
        if hook:
            hook(t)


def common_addr(cx):
    a = cx.a
    a(f"s_mul_i32 {s(sH)}, {s(sT)}, 11")
    a(f"s_lshr_b32 {s(sH)}, {s(sH)}, 5")
    a(f"s_mul_i32 {s(sJ)}, {s(sH)}, 3")
    a(f"s_sub_u32 {s(sJ)}, {s(sT)}, {s(sJ)}")
    a(f"s_lshl_b32 {s(sHH)}, {s(sX)}, 2")
    a(f"s_add_u32 {s(sHH)}, {s(sHH)}, {s(sH)}")
    a(f"s_lshl_b32 {s(sRING)}, {s(sX)}, {RING_SH}")
    a(f"s_add_u32 {s(sRING)}, {s(sRING)}, {hex(WS_RING)}")
    srd(a, R_0, P_WQ, 640 * 6144 * 2)
    srd(a, R_1, P_WK, 640 * 6144 * 2)
    srd(a, R_2, P_WV, 640 * 6144 * 2)
    srd(a, R_3, P_BX, 2048 * 640 * 2)
    a(f"v_lshrrev_b32 {v(T0)}, 3, v0")
    a(f"v_and_b32 {v(T1)}, 2, {v(T0)}")
    a(f"s_and_b32 {s(sTMP)}, {s(sW)}, 1")
    a(f"s_lshl_b32 {s(sTMP)}, {s(sTMP)}, 2")
    a(f"v_or_b32 {v(T1)}, {s(sTMP)}, {v(T1)}")
    a(f"v_and_b32 {v(T2)}, 7, v0")
    a(f"v_xor_b32 {v(T1)}, {v(T1)}, {v(T2)}")
    a(f"v_lshlrev_b32 {v(T1)}, 4, {v(T1)}")
    a(f"s_lshl_b32 {s(sTMP)}, {s(sW)}, 3")
    a(f"v_add_u32 {v(T0)}, {s(sTMP)}, {v(T0)}")
    a(f"v_mul_u32_u24 {v(T0)}, 12288, {v(T0)}")
    a(f"s_mul_i32 {s(sTMP)}, {s(sHH)}, 384")
    a(f"s_lshl_b32 {s(sM)}, {s(sJ)}, 7")
    a(f"s_add_u32 {s(sTMP)}, {s(sTMP)}, {s(sM)}")
    a(f"v_add3_u32 {v(vSTG)}, {v(T0)}, {v(T1)}, {s(sTMP)}")
    a(f"s_cmp_eq_u32 {s(sJ)}, 2")
    a(f"s_cselect_b32 {s(sM)}, -2, 1")
    a(f"s_lshl_b32 {s(sTMP)}, {s(sM)}, 7")
    a(f"v_add_u32 {v(vSTV)}, {s(sTMP)}, {v(vSTG)}")
    a(f"s_cmp_ge_u32 {s(sW)}, 4")
    a(f"s_cselect_b32 {s(sM)}, {s(sM)}, 0")
    a(f"s_add_u32 {s(sJ)}, {s(sJ)}, {s(sM)}")
    a(f"v_lshrrev_b32 {v(T0)}, 4, v0")
    a(f"v_bfe_u32 {v(T1)}, v0, 2, 2")
    a(f"v_and_b32 {v(T2)}, 2, {v(T1)}")
    a(f"v_and_b32 {v(T3)}, 1, {v(T0)}")
    a(f"v_lshl_or_b32 {v(T2)}, {v(T3)}, 2, {v(T2)}")
    a(f"v_bfe_u32 {v(T3)}, v0, 1, 1")
    a(f"s_and_b32 {s(sTMP)}, {s(sW)}, 3")
    a(f"s_lshl_b32 {s(sTMP)}, {s(sTMP)}, 1")
    a(f"v_or_b32 {v(T3)}, {s(sTMP)}, {v(T3)}")
    a(f"v_xor_b32 {v(T2)}, {v(T2)}, {v(T3)}")
    a(f"v_lshlrev_b32 {v(T2)}, 4, {v(T2)}")
    a(f"v_lshl_add_u32 {v(T2)}, {v(T0)}, 10, {v(T2)}")
    a(f"v_lshl_add_u32 {v(T2)}, {v(T1)}, 7, {v(T2)}")
    a(f"v_and_b32 {v(T3)}, 1, v0")
    a(f"v_lshl_add_u32 {v(vTR)}, {v(T3)}, 3, {v(T2)}")
    a(f"v_and_b32 {v(T1)}, 15, v0")
    a(f"v_lshrrev_b32 {v(T2)}, 1, {v(T1)}")
    a(f"v_xor_b32 {v(T2)}, {v(T2)}, {v(T0)}")
    a(f"v_lshlrev_b32 {v(T2)}, 4, {v(T2)}")
    a(f"v_and_b32 {v(T3)}, 7, v0")
    a(f"v_lshl_add_u32 {v(T2)}, {v(T3)}, 7, {v(T2)}")
    a(f"v_bfe_u32 {v(T3)}, v0, 3, 1")
    a(f"v_mul_u32_u24 {v(T3)}, 10240, {v(T3)}")
    a(f"v_add_u32 {v(T2)}, {v(T2)}, {v(T3)}")
    a(f"v_add_u32 {v(vXA0)}, {XB0}, {v(T2)}")
    a(f"v_xor_b32 {v(vXA1)}, 64, {v(vXA0)}")
    a(f"v_and_b32 {v(T2)}, 60, v0")
    a(f"v_and_b32 {v(T3)}, 1, v0")
    a(f"v_lshl_or_b32 {v(T2)}, {v(T3)}, 1, {v(T2)}")
    a(f"v_bfe_u32 {v(T3)}, v0, 1, 1")
    a(f"v_or_b32 {v(T2)}, {v(T2)}, {v(T3)}")
    a(f"v_lshlrev_b32 {v(vMEM)}, 4, {v(T2)}")
    a(f"v_add_u32 {v(vMEM)}, {L_MEM}, {v(vMEM)}")
    a(f"v_bfe_u32 {v(T3)}, v0, 1, 1")
    a(f"v_mul_u32_u24 {v(vIDX)}, 0xaaaa, {v(T3)}")
    a(f"v_add_u32 {v(vIDX)}, 0x4444, {v(vIDX)}")
    a(f"v_mov_b32 {v(vNEG)}, -1")
    a(f"s_and_b32 {s(sTMP)}, {s(sW)}, 3")
    a(f"s_lshr_b32 {s(sM)}, {s(sTMP)}, 1")
    a(f"s_lshl_b32 {s(sM)}, {s(sM)}, 11")
    a(f"s_and_b32 {s(sTMP)}, {s(sTMP)}, 1")
    a(f"s_lshl_b32 {s(sTMP)}, {s(sTMP)}, 9")
    a(f"s_add_u32 {s(sM)}, {s(sM)}, {s(sTMP)}")
    a(f"s_lshl_b32 {s(sTMP)}, {s(sJ)}, 12")
    a(f"s_add_u32 {s(sM)}, {s(sM)}, {s(sTMP)}")
    a(f"s_mul_i32 {s(sTMP)}, {s(sHH)}, {BLK}")
    a(f"s_add_u32 {s(sM)}, {s(sM)}, {s(sTMP)}")
    a(f"v_and_b32 {v(T2)}, 1, {v(T0)}")
    a(f"v_lshlrev_b32 {v(T2)}, 10, {v(T2)}")
    a(f"v_lshrrev_b32 {v(T3)}, 1, {v(T0)}")
    a(f"v_lshl_add_u32 {v(T2)}, {v(T3)}, 8, {v(T2)}")
    a(f"v_lshl_add_u32 {v(T2)}, {v(T1)}, 4, {v(T2)}")
    a(f"v_add_u32 {v(vGST)}, {s(sM)}, {v(T2)}")
    a(f"v_lshrrev_b32 {v(T2)}, 2, {v(T1)}")
    a(f"v_and_b32 {v(T3)}, 1, {v(T1)}")
    a(f"v_lshl_add_u32 {v(T4)}, {v(T2)}, 1, {v(T3)}")
    a(f"v_bfe_u32 {v(T5)}, v0, 1, 1")
    a(f"s_mov_b32 {s(sS)}, 0")
    a(f"s_mov_b32 {s(sRE)}, 1000")


def weights(cx, tiles, is_v, n_init):
    a = cx.a
    a(f"s_lshl_b32 {s(sTMP)}, {s(sW)}, 10")
    stage_chunk(a, 0)
    a("s_waitcnt vmcnt(6)")
    signal_ready(cx, T0)
    stage_chunk(a, 1)
    if is_v:
        permute_addr(a, T2, T3)
    for cc in range(5):
        a(f"s_waitcnt vmcnt({6 if cc < 4 else (10 if is_v else 0)})")
        if cc in (0, 2, 4):
            cx.stamp(1 + cc // 2, 4)
        a("s_barrier")
        if cc < 3 and not is_v:
            stage_chunk(a, cc + 2)
        if cc == 3 and is_v:
            a(f"s_mul_i32 {s(sM)}, {s(sW)}, 10240")
            a(f"s_add_u32 m0, {s(sM)}, {XB0 - 4 * 10240}")
            a(f"s_mov_b32 {s(sXO)}, 0")
            for k in range(10):
                x_dma(a, k)
        read_chunk(a, cc, tiles)
        if is_v:
            permute_columns(a, W0 + 16 * cc, 16, T2)
            if cc < 3:
                stage_chunk(a, cc + 2)
        if cc == 3 and not is_v and not cx.ptest:
            wait_ready(cx, T0, n_init, 3)
    a("s_waitcnt vmcnt(0)")
    a("s_barrier")
    cx.stamp(4, 4)
    if cx.ptest:
        a(f"s_mov_b32 {s(sS)}, {cx.keep + 1}")
        cx.save_stamps()
        cx.dump_stamps(8)
        a("s_endpgm")


def missing_check(cx, label, back, redo, vt):
    t = cx.tail
    t.label(label)
    t(f"v_max3_u32 {v(vt)}, {v(F)}, {v(F + 1)}, {v(F + 2)}")
    for i in range(3, 39, 2):
        t(f"v_max3_u32 {v(vt)}, {v(vt)}, {v(F + i)}, {v(F + i + 1)}")
    t(f"v_max_u32 {v(vt)}, {v(vt)}, {v(F + 39)}")
    t(f"v_cmp_eq_u32 vcc, -1, {v(vt)}")
    t(f"s_cbranch_vccz {back}")
    if cx.diag:
        t("s_add_u32 s99, s99, 1")
    t(f"s_sub_u32 {s(sRE)}, {s(sRE)}, 1")
    t(f"s_cbranch_scc0 {redo}")
    t(f"s_mov_b32 {s(sRE)}, 0")
    t(f"s_branch {back}")


def role_p(cx, n_init):
    a = cx.a
    global NOBG
    NOBG = cx.nobg
    a.label("L_role_p")
    cx.stamp(0, 4)
    common_addr(cx)
    a(f"s_cmp_ge_u32 {s(sW)}, 4")
    a("s_cbranch_scc1 L_p_v")
    qk_wave(cx, n_init)
    a.label("L_p_v")
    v_wave(cx, n_init)


def qk_wave(cx, n_init):
    a = cx.a
    a(f"s_lshl_b32 {s(sTMP)}, {s(sW)}, 10")
    a(f"s_add_u32 {s(sTMP)}, {s(sTMP)}, {L_KX}")
    a(f"v_lshl_add_u32 {v(vKXW)}, v0, 3, {s(sTMP)}")
    a(f"s_and_b32 {s(sTMP)}, {s(sW)}, 1")
    a(f"s_lshl_b32 {s(sTMP)}, {s(sTMP)}, 9")
    a(f"s_add_u32 {s(sTMP)}, {s(sTMP)}, {L_KX}")
    a(f"v_lshl_add_u32 {v(vKXR)}, v0, 3, {s(sTMP)}")
    a(f"v_lshrrev_b32 {v(T2)}, 1, {v(T0)}")
    a(f"v_lshlrev_b32 {v(T2)}, 3, {v(T2)}")
    a(f"v_xor_b32 {v(T2)}, {v(T2)}, {v(T1)}")
    a(f"v_lshlrev_b32 {v(T2)}, 3, {v(T2)}")
    a(f"v_lshl_add_u32 {v(T2)}, {v(T0)}, 7, {v(T2)}")
    a(f"s_lshl_b32 {s(sTMP)}, {s(sW)}, 9")
    a(f"s_add_u32 {s(sTMP)}, {s(sTMP)}, {L_QKX}")
    a(f"v_add_u32 {v(vQKW)}, {s(sTMP)}, {v(T2)}")
    a(f"v_lshrrev_b32 {v(T2)}, 2, v0")
    a(f"v_mov_b32 {v(vQKR)}, {L_QKX}")
    l3 = a.newlabel("p_w3")
    a(f"s_cmp_lg_u32 {s(sW)}, 3")
    a(f"s_cbranch_scc1 {l3}")
    a(f"v_and_b32 {v(T2)}, 3, {v(T2)}")
    a(f"v_and_b32 {v(T3)}, 1, {v(T0)}")
    a(f"v_lshl_add_u32 {v(T2)}, {v(T3)}, 3, {v(T2)}")
    a(f"v_lshrrev_b32 {v(T3)}, 1, {v(T0)}")
    a(f"v_lshl_add_u32 {v(vQKR)}, {v(T3)}, 9, {v(vQKR)}")
    a.label(l3)
    a(f"v_lshlrev_b32 {v(T3)}, 3, {v(T5)}")
    a(f"v_xor_b32 {v(T2)}, {v(T2)}, {v(T3)}")
    a(f"v_lshl_add_u32 {v(vQKR)}, {v(T2)}, 3, {v(vQKR)}")
    a(f"v_and_b32 {v(T3)}, 3, v0")
    a(f"v_lshl_add_u32 {v(vQKR)}, {v(T3)}, 7, {v(vQKR)}")
    a(f"s_mul_i32 {s(sM)}, {s(sT)}, 768")
    a(f"s_add_u32 {s(sM)}, {s(sM)}, {RING_SC}")
    a(f"s_lshl_b32 {s(sTMP)}, {s(sW)}, 8")
    a(f"s_cmp_eq_u32 {s(sW)}, 3")
    a(f"s_cselect_b32 {s(sTMP)}, {hex(OOB)}, {s(sTMP)}")
    a(f"s_add_u32 {s(sM)}, {s(sM)}, {s(sTMP)}")
    a(f"v_lshl_add_u32 {v(vSC)}, v0, 2, {s(sM)}")
    a(f"s_mul_i32 {s(sM)}, {s(sHH)}, 3072")
    a(f"s_lshl_b32 {s(sTMP)}, {s(sJ)}, 10")
    a(f"s_add_u32 {s(sM)}, {s(sM)}, {s(sTMP)}")
    a(f"v_lshlrev_b32 {v(T2)}, 7, {v(T0)}")
    a(f"v_lshl_add_u32 {v(T2)}, {v(T4)}, 4, {v(T2)}")
    a(f"v_xor_b32 {v(T3)}, 1, {v(T5)}")
    a(f"v_lshl_add_u32 {v(T2)}, {v(T3)}, 30, {v(T2)}")
    a(f"v_add_u32 {v(vKM)}, {s(sM)}, {v(T2)}")
    a(f"s_add_u32 {s(sPAR)}, {s(sRING)}, {SLOT}")
    for so in (sRING, sPAR):
        a(f"buffer_store_dword {v(vNEG)}, {v(vSC)}, {s(R_WS, 4)}, {s(so)} offen")
    a(f"s_lshl_b32 {s(sM)}, {s(sT)}, 2")
    a(f"s_add_u32 {s(sM)}, {s(sM)}, {s(sW)}")
    a(f"s_lshl_b32 {s(sM)}, {s(sM)}, 2")
    a(f"s_add_u32 {s(sM)}, {s(sM)}, {s(sRING)}")
    a(f"s_add_u32 {s(sM)}, {s(sM)}, {RING_FQ}")
    role_ax.lane0_addr(a, vFQ, sM, T2, T3)
    a(f"buffer_store_dword {v(vNEG)}, {v(vFQ)}, {s(R_WS, 4)}, 0 offen")

    def done_flag(val):
        a(f"v_mov_b32 v14, {val}")
        a("s_waitcnt vmcnt(0)")
        a(f"buffer_store_dword v14, {v(vFQ)}, {s(R_WS, 4)}, 0 offen")
    weights(cx, [(0, W0), (1, W1)], False, n_init)
    slots_init(a, R_CUR, R_OTH, sPAR, sRING)
    a(f"s_mov_b32 {s(sQ)}, {hex(WS_Q)}")
    a(f"s_mov_b32 {s(sK)}, {hex(WS_K)}")
    a(f"s_mov_b32 {s(sM)}, {hex(WS_KM)}")
    a(f"s_mov_b32 {s(sS)}, -1")

    a.label("L_pqk_loop")
    a("s_setprio 0")
    cx.stamp(5)
    cx.stamp(0, 1)
    background(a, [W0, W1], hook=lambda t: done_flag(s(sS)) if t == 2 else None)
    cx.stamp(2, 1)
    a(f"s_cmp_eq_u32 {s(sS)}, -1")
    a("s_cbranch_scc1 L_pqk_first")
    a.label("L_pqk_crit")
    a("s_setprio 2")
    cx.stamp(3, 1)
    a("s_waitcnt vmcnt(0)")
    cx.stamp(4, 1)
    cx.stamp(0)
    a.label("L_pqk_a")
    a("s_barrier")
    cx.stamp(5, 4)
    cx.stamp(0, 7)
    cx.stamp(0, 2)
    reads = [f"ds_read_b128 {v(F + 4 * t, 4)}, {v(vMEM)} offset:{t * 1024}" for t in range(10)]
    reads += [f"ds_read_b64 {v(KXO + 2 * w, 2)}, {v(vKXR)} offset:{w * 1024}" for w in range(4)]
    order = []
    for t in range(10):
        order.append((1, t))
        if t < 10 - cx.oc:
            order.append((0, t))
    order += [(0, t) for t in range(10 - cx.oc, 10)]
    if cx.qdelay:
        a.nop(cx.qdelay)
    issued = cx.qd
    for x in reads[:issued]:
        a(x)
    seen = -1
    for n, (ti, t) in enumerate(order):
        if t > seen:
            a(f"s_waitcnt lgkmcnt({issued - 1 - t})")
            seen = t
        a(f"v_smfmac_f32_16x16x64_bf16 {v(CV + 4 * ti, 4)}, {v(F + 4 * t, 4)}, {v((W0, W1)[ti] + 8 * t, 8)}, {v(vIDX)}")
        if n in (0, 12, 19):
            cx.stamp({0: 1, 12: 2, 19: 3}[n], 7)
        if issued < 14:
            a(reads[issued])
            issued += 1
    gap = max(0, 8 - max(cx.oc, 1))
    a.nop(gap)
    a(f"v_pk_add_f32 {v(CV + 4, 2)}, {v(CV + 4, 2)}, {v(CV + 6, 2)}")
    a(f"v_cvt_pk_bf16_f32 v15, {v(CV + 4)}, {v(CV + 5)}")
    a.nop(max(0, 6 - gap))
    a(f"v_pk_add_f32 {v(CV, 2)}, {v(CV, 2)}, {v(CV + 2, 2)}")
    a(f"v_cvt_pk_bf16_f32 v14, {v(CV)}, {v(CV + 1)}")
    a(f"ds_write_b64 {v(vQKW)}, v[14:15]")
    cx.stamp(4, 7)
    if cx.ddma:
        a(f"v_cmp_u_f32 vcc, {v(CV)}, {v(CV + 1)}")
        a("s_cbranch_vccnz L_pqk_nan")
        a.label("L_pqk_ok")
        missing_check(cx, "L_pqk_nan", "L_pqk_ok", "L_pqk_redo", CV + 2)
        tl = cx.tail
        tl.label("L_pqk_redo")
        for i in range(8):
            tl(f"v_mov_b32 {v(CV + i)}, 0")
        tl("s_waitcnt lgkmcnt(0)")
        tl("s_barrier")
        tl("s_branch L_pqk_a")
    a(f"s_cmp_ge_u32 {s(sW)}, 2")
    a("s_cbranch_scc1 L_pqk_23")

    def exchange(offs):
        a("s_waitcnt lgkmcnt(0)")
        cx.stamp(1)
        cx.stamp(3, 2)
        cx.stamp(5, 7)
        a("s_barrier")
        cx.stamp(4, 2)
        for i, o in enumerate(offs):
            a(f"ds_read_b64_tr_b16 {v(XO + 2 * i, 2)}, {v(vQKR)} offset:{o}")

    def scores(B):
        exchange([0, 512, 1024, 1536])
        a("s_waitcnt lgkmcnt(2)")
        a(f"v_mfma_f32_16x16x32_bf16 {v(CV, 4)}, {v(XO, 4)}, {v(B, 4)}, 0")
        a("s_waitcnt lgkmcnt(0)")
        a(f"v_mfma_f32_16x16x32_bf16 {v(CV, 4)}, {v(XO + 4, 4)}, {v(B + 4, 4)}, {v(CV, 4)}")
        a.nop(8)
        a(f"v_cvt_pk_bf16_f32 v14, {v(CV)}, {v(CV + 1)}")
        a(f"buffer_store_dword v14, {v(vSC)}, {s(R_CUR, 4)}, 0 offen")
        cx.stamp(2)
        cx.stamp(5, 2)
        a("s_barrier")
        a("s_branch L_pqk_join")

    scores(KXO)
    a.label("L_pqk_23")
    a(f"s_cmp_eq_u32 {s(sW)}, 3")
    a("s_cbranch_scc1 L_pqk_3")
    scores(XO)
    a.label("L_pqk_3")
    exchange([0, 32, 1024, 1056])
    a("s_waitcnt lgkmcnt(0)")
    a("s_barrier")
    a(f"buffer_store_dwordx4 {v(XO, 4)}, {v(vKM)}, {s(R_WS, 4)}, {s(sM)} offen")
    a(f"buffer_store_dwordx4 {v(XO + 4, 4)}, {v(vKM)}, {s(R_WS, 4)}, {s(sM)} offen offset:512")
    a.label("L_pqk_join")
    a(f"buffer_store_dword {v(vNEG)}, {v(vSC)}, {s(R_OTH, 4)}, 0 offen")
    ring_next(a, sM, WS_KM, MSEG, cx.rq)
    slots_flip(a, R_CUR, R_OTH, sPAR)
    a(f"s_cmp_eq_u32 {s(sS)}, 63")
    a("s_cbranch_scc1 L_pqk_end")
    a.label("L_pqk_out")
    a("s_setprio 0")
    for i in range(8):
        a(f"v_cvt_pk_bf16_f32 {v(F + i)}, {v(ACC + 2 * i)}, {v(ACC + 2 * i + 1)}")
    a(f"ds_write_b64 {v(vKXW)}, {v(F + 4, 2)}")
    a(f"ds_write_b64 {v(vKXW)}, {v(F + 6, 2)} offset:512")
    a(f"v_permlane16_swap_b32 {v(F)}, {v(F + 2)}")
    a(f"v_permlane16_swap_b32 {v(F + 1)}, {v(F + 3)}")
    a(f"buffer_store_dwordx4 {v(F, 4)}, {v(vGST)}, {s(R_WS, 4)}, {s(sQ)} offen")
    for i in range(8):
        a(f"v_mov_b32 {v(CV + i)}, 0")
    a("s_waitcnt lgkmcnt(0)")
    a(f"v_permlane16_swap_b32 {v(F + 4)}, {v(F + 6)}")
    a(f"v_permlane16_swap_b32 {v(F + 5)}, {v(F + 7)}")
    a(f"buffer_store_dwordx4 {v(F + 4, 4)}, {v(vGST)}, {s(R_WS, 4)}, {s(sK)} offen")
    a(f"v_xor_b32 {v(vXA0)}, {XB0 ^ XB1}, {v(vXA0)}")
    a(f"v_xor_b32 {v(vXA1)}, {XB0 ^ XB1}, {v(vXA1)}")
    ring_next(a, sQ, WS_Q, SEGSTR, cx.rq)
    a(f"s_add_u32 {s(sK)}, {s(sQ)}, {hex(WS_K - WS_Q)}")
    a(f"s_add_u32 {s(sS)}, {s(sS)}, 1")
    cx.save_stamps(cx.keepp)
    a(f"s_cmp_lt_u32 {s(sS)}, 63")
    a("s_cbranch_scc1 L_pqk_loop")
    done_flag(63)
    a("s_branch L_pqk_crit")
    a.label("L_pqk_end")
    done_flag(64)
    cx.dump_stamps(8)
    a("s_endpgm")
    a.label("L_pqk_first")
    a("s_barrier")
    a.nop(4)
    a("s_branch L_pqk_out")


def v_wave(cx, n_init):
    a = cx.a
    DR, DR2 = 64, 176
    vZ, vST, vFA, vFAD, vFD = 76, 77, 78, 79, 80
    sDL = sQ
    sHD = sJ
    sVX = sK
    a(f"s_and_b32 {s(sTMP)}, {s(sW)}, 3")
    a(f"v_lshrrev_b32 {v(T2)}, 3, v0")
    a(f"s_lshl_b32 {s(sM)}, {s(sTMP)}, 3")
    a(f"v_add_u32 {v(T2)}, {s(sM)}, {v(T2)}")
    a(f"v_bfe_u32 {v(T3)}, {v(T2)}, 1, 3")
    a(f"v_and_b32 {v(vXG)}, 7, v0")
    a(f"v_xor_b32 {v(T3)}, {v(T3)}, {v(vXG)}")
    a(f"v_mul_u32_u24 {v(T2)}, 1280, {v(T2)}")
    a(f"v_lshl_add_u32 {v(vXG)}, {v(T3)}, 4, {v(T2)}")
    a(f"s_mul_i32 {s(sM)}, {s(sTMP)}, 2560")
    a(f"v_lshl_add_u32 {v(vDG4)}, v0, 4, {s(sM)}")
    a(f"v_lshl_add_u32 {v(vDG1)}, v0, 2, {s(sM)}")
    a(f"s_add_u32 {s(sDL)}, {s(sM)}, {L_MEM}")
    a(f"s_mul_i32 {s(sM)}, {s(sTMP)}, 40")
    a(f"s_add_u32 {s(sM)}, {s(sM)}, {s(sRING)}")
    a(f"s_add_u32 {s(sM)}, {s(sM)}, {RING_FD}")
    a(f"v_min_u32 {v(T2)}, 9, v0")
    a(f"v_lshl_add_u32 {v(vFD)}, {v(T2)}, 2, {s(sM)}")
    a(f"v_add_u32 {v(vDL4)}, {L_MEM}, {v(vDG4)}")
    a(f"v_add_u32 {v(vDL1)}, {L_MEM + 2048}, {v(vDG1)}")
    a(f"s_mul_i32 {s(sM)}, {s(sH)}, 3")
    a(f"s_add_u32 {s(sM)}, {s(sM)}, {s(sJ)}")
    a(f"s_lshl_b32 {s(sM)}, {s(sM)}, 2")
    a(f"s_add_u32 {s(sM)}, {s(sM)}, {s(sTMP)}")
    a(f"s_lshl_b32 {s(sXO)}, {s(sM)}, 2")
    a(f"s_add_u32 {s(sXO)}, {s(sXO)}, {s(sRING)}")
    a(f"s_add_u32 {s(sXO)}, {s(sXO)}, {RING_FV}")
    a(f"v_cmp_eq_u32 vcc, 0, v0")
    a(f"v_mov_b32 {v(T2)}, {hex(OOB)}")
    a(f"v_mov_b32 {v(T3)}, {s(sXO)}")
    a(f"v_cndmask_b32 {v(vFL)}, {v(T2)}, {v(T3)}, vcc")
    a(f"s_lshl_b32 {s(sM)}, {s(sM)}, 8")
    a(f"s_add_u32 {s(sM)}, {s(sM)}, {RING_VM}")
    a(f"v_lshl_add_u32 {v(vRS)}, v0, 2, {s(sM)}")
    a(f"v_lshlrev_b32 {v(T2)}, 6, {v(T0)}")
    a(f"v_lshl_add_u32 {v(T2)}, {v(T1)}, 1, {v(T2)}")
    a(f"v_add_u32 {v(vVR)}, {s(sM)}, {v(T2)}")
    a(f"s_mul_i32 {s(sM)}, {s(sHH)}, 3072")
    a(f"s_lshl_b32 {s(sXO)}, {s(sJ)}, 7")
    a(f"s_add_u32 {s(sM)}, {s(sM)}, {s(sXO)}")
    a(f"s_lshl_b32 {s(sXO)}, {s(sTMP)}, 5")
    a(f"s_add_u32 {s(sM)}, {s(sM)}, {s(sXO)}")
    a(f"v_mul_u32_u24 {v(T2)}, 768, {v(T0)}")
    a(f"v_bfe_u32 {v(T3)}, v0, 1, 2")
    a(f"v_lshl_add_u32 {v(T2)}, {v(T3)}, 3, {v(T2)}")
    a(f"v_bfe_u32 {v(T3)}, v0, 3, 1")
    a(f"v_lshl_add_u32 {v(T2)}, {v(T3)}, 2, {v(T2)}")
    a(f"v_and_b32 {v(T3)}, 1, v0")
    a(f"v_lshl_add_u32 {v(T2)}, {v(T3)}, 1, {v(T2)}")
    a(f"v_add_u32 {v(vVP)}, {s(sM)}, {v(T2)}")
    a(f"v_and_b32 {v(T2)}, 1, {v(T0)}")
    a(f"v_lshrrev_b32 {v(T3)}, 1, {v(T0)}")
    a(f"v_sub_u32 {v(T2)}, {v(T3)}, {v(T2)}")
    a(f"v_mul_i32_i24 {v(T2)}, 768, {v(T2)}")
    a(f"v_add_u32 {v(vGST)}, {v(vGST)}, {v(T2)}")
    a(f"s_lshl_b32 {s(sM)}, {s(sH)}, 2")
    a(f"s_add_u32 {s(sM)}, {s(sM)}, {s(sRING)}")
    a(f"s_add_u32 {s(sM)}, {s(sM)}, {RING_FA}")
    a(f"v_bfe_u32 {v(T2)}, v0, 2, 2")
    a(f"v_lshl_add_u32 {v(vFA)}, {v(T2)}, 4, {s(sM)}")
    vPF, vCNT = 74, 75
    a(f"s_lshl_b32 {s(sM)}, {s(sT)}, 2")
    a(f"s_add_u32 {s(sM)}, {s(sM)}, {s(sRING)}")
    a(f"s_add_u32 {s(sM)}, {s(sM)}, {RING_FP}")
    a(f"s_cmp_eq_u32 {s(sW)}, 4")
    a(f"s_cselect_b32 {s(sM)}, {s(sM)}, {hex(OOB)}")
    a("v_cmp_gt_u32 vcc, 11, v0")
    a(f"v_mov_b32 {v(T2)}, {hex(OOB)}")
    a(f"v_lshl_add_u32 {v(T3)}, v0, 7, {s(sM)}")
    a(f"v_cndmask_b32 {v(vPF)}, {v(T2)}, {v(T3)}, vcc")
    a(f"v_mov_b32 {v(vCNT)}, 0")
    a(f"s_add_u32 {s(sPAR)}, {s(sRING)}, {SLOT}")
    a(f"buffer_store_dword {v(vNEG)}, {v(vRS)}, {s(R_WS, 4)}, {s(sRING)} offen")
    a(f"buffer_store_dword {v(vNEG)}, {v(vRS)}, {s(R_WS, 4)}, {s(sPAR)} offen")
    a(f"buffer_store_dword {v(vCNT)}, {v(vFL)}, {s(R_WS, 4)}, 0 offen")
    a(f"buffer_store_dword {v(vCNT)}, {v(vPF)}, {s(R_WS, 4)}, 0 offen")
    a(f"buffer_store_dword {v(vCNT)}, {v(vPF)}, {s(R_WS, 4)}, 0 offen offset:64")
    weights(cx, [(2, W0)], True, n_init)
    slots_init(a, R_CUR, R_OTH, sPAR, sRING)
    a(f"s_mov_b32 {s(sVX)}, {hex(WS_V)}")
    a(f"s_mov_b32 {s(sM)}, {hex(WS_VM)}")
    sXL = sH
    a(f"s_mul_i32 {s(sXL)}, {s(sW)}, 10240")
    a(f"s_add_u32 {s(sXL)}, {s(sXL)}, {XB1 - 4 * 10240 & 0xffffffff}")

    a(f"s_mov_b32 {s(sS)}, -1")
    a(f"s_lshl_b32 {s(sHD)}, {s(sT)}, 7")
    a(f"s_add_u32 {s(sHD)}, {s(sHD)}, {s(sRING)}")
    a(f"s_add_u32 {s(sHD)}, {s(sHD)}, {RING_HD}")
    a(f"v_min_u32 {v(vZ)}, 9, v0")
    a(f"v_lshl_add_u32 {v(vZ)}, {v(vZ)}, 2, {s(sHD)}")
    a(f"v_mov_b32 {v(vST)}, 0")

    a.label("L_pv_loop")
    a("s_setprio 2")
    cx.stamp(5)
    a(f"s_add_u32 {s(sXO)}, {s(sXO)}, {32 * 1280}")
    a(f"s_mov_b32 m0, {s(sXL)}")
    a(f"s_xor_b32 {s(sXL)}, {s(sXL)}, {XB0 ^ XB1}")
    cx.stamp(0, 1)
    if cx.ax:
        a(f"buffer_load_dword {v(vFAD)}, {v(vFA)}, {s(R_WS, 4)}, 0 offen sc1")
    background(a, [W0], hook=lambda t: x_dma(a, t // 2) if t % 2 == 1 else None)
    cx.stamp(2, 1)
    a(f"v_add_u32 {v(vCNT)}, 1, {v(vCNT)}")
    a.nop(3)
    for i in range(4):
        a(f"v_cvt_pk_bf16_f32 {v(CV + 2 * (i & 1) + (i >> 1))}, {v(ACC + 2 * i)}, {v(ACC + 2 * i + 1)}")
    a(f"v_xor_b32 {v(vXA0)}, {XB0 ^ XB1}, {v(vXA0)}")
    a(f"v_xor_b32 {v(vXA1)}, {XB0 ^ XB1}, {v(vXA1)}")
    a(f"v_permlane32_swap_b32 {v(CV)}, {v(CV + 1)}")
    a(f"v_permlane32_swap_b32 {v(CV + 2)}, {v(CV + 3)}")
    if cx.ax:
        a(f"s_sub_u32 {s(sTMP)}, {s(sS)}, {cx.rq + 1}")
        a("s_waitcnt vmcnt(10)")
        a(f"v_cmp_gt_i32 vcc, {s(sTMP)}, {v(vFAD)}")
        a("s_cbranch_vccz L_pv_free")
        role_ax.flag_wait(cx, vFA, vFAD, sTMP, "L_pv_wfree", 1)
        a.label("L_pv_free")
    a(f"buffer_store_dwordx4 {v(CV, 4)}, {v(vGST)}, {s(R_WS, 4)}, {s(sVX)} offen")
    ring_next(a, sVX, WS_V, SEGSTR, cx.rq)
    cx.stamp(3, 1)
    a("s_waitcnt vmcnt(0)")
    cx.stamp(5, 1)
    a(f"buffer_store_dword {v(vCNT)}, {v(vFL)}, {s(R_WS, 4)}, 0 offen")
    a(f"s_cmp_eq_u32 {s(sS)}, -1")
    a("s_cbranch_scc1 L_pv_first")
    a.label("L_pv_crit")
    for i in range(4):
        a(f"v_mov_b32 {v(ACC + i)}, 0")
    a(f"v_add_u32 {v(vST)}, 1, {v(vST)}")
    a("s_setprio 3")
    cx.stamp(3)
    n = cx.hn
    a(f"s_mov_b32 m0, {s(sDL)}")
    if cx.vsleep:
        a(f"s_sleep {cx.vsleep}")
    for k in range(n - 1):
        a(f"buffer_load_dword {v(CV + 4 + k)}, {v(vZ)}, {s(R_WS, 4)}, 0 offen sc1")
    a.label("L_pv_hint")
    for k in range(n):
        a(f"buffer_load_dword {v(CV + 4 + (k + n - 1) % n)}, {v(vZ)}, {s(R_WS, 4)}, 0 offen sc1")
        a(f"s_waitcnt vmcnt({n - 1})")
        a(f"v_cmp_gt_u32 vcc, {s(sS)}, {v(CV + 4 + k)}")
        if k < n - 1:
            a("s_cbranch_vccz L_pv_hok")
    cx.retry("L_pv_hint", 1)
    a.label("L_pv_hok")
    cx.stamp(4)

    def dloads(b):
        a(f"buffer_load_dwordx4 {v(b, 4)}, {v(vDG4)}, {s(R_CUR, 4)}, 0 offen sc1")
        a(f"buffer_load_dwordx4 {v(b + 4, 4)}, {v(vDG4)}, {s(R_CUR, 4)}, 0 offen offset:1024 sc1")
        a(f"buffer_load_dword {v(b + 8)}, {v(vDG1)}, {s(R_CUR, 4)}, 0 offen offset:2048 sc1")
        a(f"buffer_load_dword {v(b + 9)}, {v(vDG1)}, {s(R_CUR, 4)}, 0 offen offset:2304 sc1")

    def dcheck(b, n):
        a(f"s_waitcnt vmcnt({n + 3})")
        a(f"ds_write_b128 {v(vDL4)}, {v(b, 4)}")
        a(f"v_max3_u32 {v(CV)}, {v(b)}, {v(b + 1)}, {v(b + 2)}")
        a(f"s_waitcnt vmcnt({n + 2})")
        a(f"ds_write_b128 {v(vDL4)}, {v(b + 4, 4)} offset:1024")
        a(f"v_max3_u32 {v(CV)}, {v(CV)}, {v(b + 3)}, {v(b + 4)}")
        a(f"v_max3_u32 {v(CV)}, {v(CV)}, {v(b + 5)}, {v(b + 6)}")
        a(f"s_waitcnt vmcnt({n})")
        a(f"ds_write2st64_b32 {v(vDL1)}, {v(b + 8)}, {v(b + 9)} offset1:1")
        a(f"v_max3_u32 {v(CV)}, {v(CV)}, {v(b + 7)}, {v(b + 8)}")
        a(f"v_max_u32 {v(CV)}, {v(CV)}, {v(b + 9)}")
        a(f"v_cmp_eq_u32 vcc, -1, {v(CV)}")

    if cx.ddma:
        a.label("L_pv_shot")
        cx.stamp(0, 6)
        a(f"buffer_load_dword {v(CV)}, {v(vFD)}, {s(R_WS, 4)}, 0 offen sc1")
        a(f"buffer_load_dwordx4 {v(vDG4)}, {s(R_CUR, 4)}, 0 offen sc1 lds")
        a(f"buffer_load_dwordx4 {v(vDG4)}, {s(R_CUR, 4)}, 0 offen offset:1024 sc1 lds")
        a(f"buffer_load_dword {v(vDG1)}, {s(R_CUR, 4)}, 0 offen offset:2048 sc1 lds")
        a(f"buffer_load_dword {v(vDG1)}, {s(R_CUR, 4)}, 0 offen offset:2304 sc1 lds")
        cx.stamp(1, 6)
        a("s_waitcnt vmcnt(4)")
        cx.stamp(2, 6)
        if cx.ddma == 1:
            a(f"v_cmp_gt_u32 vcc, {s(sS)}, {v(CV)}")
            cx.retry("L_pv_shot", 0)
        cx.stamp(3, 6)
        a("s_waitcnt vmcnt(0)")
        cx.stamp(4, 6)
        main, cx.a = a, Asm()
        cx.a.uid = 5000
        a = cx.a
        a.label("L_pv_redo")
        for i in range(4):
            a(f"v_mov_b32 {v(ACC + i)}, 0")
        a("s_barrier")
    a.label("L_pv_poll")
    dloads(DR)
    dcheck(DR, 0)
    if cx.ob:
        cx.retry("L_pv_again", 0)
        cx.tail.label("L_pv_again")
        cx.tail("s_waitcnt lgkmcnt(0)")
        cx.tail("s_branch L_pv_poll")
    a("s_waitcnt lgkmcnt(0)")
    if not cx.ob:
        cx.retry("L_pv_poll", 0)
    if cx.ddma:
        a("s_branch L_pv_a")
        cx.tail.lines += a.lines
        a = cx.a = main
        a.label("L_pv_a")
    cx.stamp(0)
    a("s_barrier")
    cx.stamp(5, 6)
    cx.stamp(0, 7)
    cx.stamp(0, 2)
    for t in range(cx.vd):
        a(f"ds_read_b128 {v(F + 4 * t, 4)}, {v(vMEM)} offset:{t * 1024}")
    for t in range(10):
        a(f"s_waitcnt lgkmcnt({min(cx.vd - 1, 9 - t)})")
        a(f"v_smfmac_f32_16x16x64_bf16 {v(ACC, 4)}, {v(F + 4 * t, 4)}, {v(W0 + 8 * t, 8)}, {v(vIDX)}")
        if t + cx.vd < 10:
            a(f"ds_read_b128 {v(F + 4 * (t + cx.vd), 4)}, {v(vMEM)} offset:{(t + cx.vd) * 1024}")
        if t in (0, 9):
            cx.stamp(1 + t // 9, 7)
        if t == cx.hu:
            a(f"buffer_store_dword {v(vST)}, {v(vPF)}, {s(R_WS, 4)}, 0 offen")
    cx.stamp(1)
    a.nop(8)
    a(f"v_add_f32 {v(ACC)}, {v(ACC)}, {v(ACC + 2)}")
    a(f"v_add_f32 {v(ACC + 1)}, {v(ACC + 1)}, {v(ACC + 3)}")
    if cx.ddma:
        a(f"v_cmp_u_f32 vcc, {v(ACC)}, {v(ACC + 1)}")
    a(f"v_cvt_pk_bf16_f32 {v(CV)}, {v(ACC)}, {v(ACC + 1)}")
    if cx.ddma:
        a("s_cbranch_vccnz L_pv_nan")
        a.label("L_pv_ok")
        missing_check(cx, "L_pv_nan", "L_pv_ok", "L_pv_redo", CV + 1)
    a(f"buffer_store_short {v(CV)}, {v(vVR)}, {s(R_CUR, 4)}, 0 offen")
    a(f"buffer_store_short_d16_hi {v(CV)}, {v(vVR)}, {s(R_CUR, 4)}, 0 offen offset:32")
    cx.stamp(2)
    cx.stamp(5, 2)
    cx.stamp(3, 7)
    if cx.oa:
        a("s_setprio 0")
        a("s_barrier")
        a("s_barrier")
    a(f"buffer_store_dword {v(vNEG)}, {v(vRS)}, {s(R_OTH, 4)}, 0 offen")
    if cx.memdbg:
        a("s_waitcnt vmcnt(0)")
        a(f"s_lshl_b32 {s(sTMP)}, {s(sS)}, 3")
        a(f"s_add_u32 {s(sTMP)}, {s(sTMP)}, {s(sX)}")
        a(f"s_lshl_b32 {s(sTMP)}, {s(sTMP)}, 16")
        a(f"s_add_u32 {s(sTMP)}, {s(sTMP)}, {hex(WS_MEMDBG)}")
        a(f"buffer_store_dwordx4 {v(DR, 4)}, {v(vDG4)}, {s(R_WS, 4)}, {s(sTMP)} offen")
        a(f"buffer_store_dwordx4 {v(DR + 4, 4)}, {v(vDG4)}, {s(R_WS, 4)}, {s(sTMP)} offen offset:1024")
        a(f"buffer_store_dword {v(DR + 8)}, {v(vDG1)}, {s(R_WS, 4)}, {s(sTMP)} offen offset:2048")
        a(f"buffer_store_dword {v(DR + 9)}, {v(vDG1)}, {s(R_WS, 4)}, {s(sTMP)} offen offset:2304")
    slots_flip(a, R_CUR, R_OTH, sPAR)
    a(f"s_add_u32 {s(sS)}, {s(sS)}, 1")
    a(f"buffer_store_short {v(CV)}, {v(vVP)}, {s(R_WS, 4)}, {s(sM)} offen")
    a(f"buffer_store_short_d16_hi {v(CV)}, {v(vVP)}, {s(R_WS, 4)}, {s(sM)} offen offset:384")
    ring_next(a, sM, WS_VM, MSEG, cx.rq)
    if 0 <= cx.hb < 100:
        a.nop(cx.hb)
        a(f"buffer_store_dword {v(vST)}, {v(vPF)}, {s(R_WS, 4)}, 0 offen offset:64")
    cx.stamp(4, 7)
    a("s_setprio 0")
    cx.trace(200)
    if not cx.oa:
        a("s_barrier")
        if cx.hb == 100:
            a("s_waitcnt vmcnt(0)")
            a(f"buffer_store_dword {v(vST)}, {v(vPF)}, {s(R_WS, 4)}, 0 offen offset:64")
        a(f"s_waitcnt vmcnt({1 if cx.hb >= 0 else 0})")
        a("s_barrier")
    cx.save_stamps(cx.keepp)
    a(f"s_cmp_lt_u32 {s(sS)}, 63")
    a("s_cbranch_scc1 L_pv_loop")
    a(f"s_cmp_eq_u32 {s(sS)}, 63")
    a("s_cbranch_scc1 L_pv_crit")
    cx.dump_stamps(8, 1, 200)
    a("s_endpgm")
    a.label("L_pv_first")
    a(f"s_mov_b32 {s(sS)}, 0")
    a("s_barrier")
    a("s_branch L_pv_loop")
```
